```python
import torch

def _softmax(x, axis=-1):
    return torch.softmax(x, dim=axis)
def _gelu(x):
    return torch.nn.functional.gelu(x, approximate="tanh")
def _silu(x):
    return torch.nn.functional.silu(x)
def _sigmoid(x):
    return torch.sigmoid(x)
def _layernorm(x, axis=-1, eps=1e-5):
    m = x.mean(dim=axis, keepdim=True)
    v = x.var(dim=axis, keepdim=True, unbiased=False)
    return (x - m) / torch.sqrt(v + eps)
def _scatter_add(tgt, idx, src, axis=0):
    return tgt.clone().index_add_(axis, idx, src)
def _segment_sum(src, seg, n):
    out = torch.zeros((n,) + src.shape[1:], dtype=src.dtype)
    return out.index_add_(0, seg, src)
def _pad(x, pw):
    flat = tuple(v for pair in reversed(pw) for v in pair)
    return torch.nn.functional.pad(x, flat)

kernel_name = 'sequential_preLN__sliding_block_cached__mixer_token_mlp__decode'

def setup_inputs():

    _w = (lambda a: (lambda t: t.to(torch.bfloat16) if t.is_floating_point() else t)(torch.as_tensor(a)))
    def _A_setup():
        B, Sq, D = 4, 1, 512
        Hq, Hkv, Sk, Dh = 32, 8, 8192, 128
        assert Hq % Hkv == 0, (Hq, Hkv)
        return {
            "x": _w((lambda *s: torch.randn(*s, dtype=torch.bfloat16) * 0.05)(B, Sq, D)),
            "k_cache": _w((lambda *s: torch.randn(*s, dtype=torch.bfloat16) * 3.2)(B, Hkv, Sk, Dh)),
            "v_cache": _w((lambda *s: torch.randn(*s, dtype=torch.bfloat16) * 0.8)(B, Hkv, Sk, Dh)),
            "wq": _w((lambda *s: torch.randn(*s, dtype=torch.bfloat16) * 3.2)(D, Hq * Dh) * (D ** -0.5)),
            "wo": _w((lambda *s: torch.randn(*s, dtype=torch.bfloat16) * 0.8)(Hq * Dh, D) * ((Hq * Dh) ** -0.5)),
        }
    _A_in = _A_setup()

    def _B_setup():
        B, S, D, F = 4, 1, 512, 1792
        return {
            "x": _w((lambda *s: torch.randn(*s, dtype=torch.bfloat16) * 0.05)(B, S, D)),
            "w1": _w((lambda *s: torch.randn(*s, dtype=torch.bfloat16) * 1.6)(S, F) * (S ** -0.5)),
            "b1": _w((lambda *s: torch.randn(*s, dtype=torch.bfloat16) * 1.6)(F) * 0.02),
            "w2": _w((lambda *s: torch.randn(*s, dtype=torch.bfloat16) * 1.6)(F, S) * (F ** -0.5)),
            "b2": _w((lambda *s: torch.randn(*s, dtype=torch.bfloat16) * 0.8)(S) * 0.02),
        }
    _B_in = _B_setup()

    return {
        "A_x": _A_in["x"],
        "A_k_cache": _A_in["k_cache"],
        "A_v_cache": _A_in["v_cache"],
        "A_wq": _A_in["wq"],
        "A_wo": _A_in["wo"],
        "B_x": _B_in["x"],
        "B_w1": _B_in["w1"],
        "B_b1": _B_in["b1"],
        "B_w2": _B_in["w2"],
        "B_b2": _B_in["b2"],
    }

def reference(A_x, A_k_cache, A_v_cache, A_wq, A_wo, B_x, B_w1, B_b1, B_w2, B_b2):
    def _A_ref(x, k_cache, v_cache, wq, wo):
        B, Sq, D = x.shape
        Hq, Dh = 32, 128
        Hkv, Sk = k_cache.shape[1], k_cache.shape[2]
        W = min(4096, max(256, Sk // 4))
        rep = Hq // Hkv
        q = (lambda x, *d: x.permute(*d))((x @ wq).reshape(B, Sq, Hq, Dh), 0, 2, 1, 3)
        k = (lambda x, n, axis: torch.repeat_interleave(x, n, dim=axis))(k_cache[:, :, Sk - W:, :], rep, axis=1)
        v = (lambda x, n, axis: torch.repeat_interleave(x, n, dim=axis))(v_cache[:, :, Sk - W:, :], rep, axis=1)
        scores = torch.einsum("bhqd,bhkd->bhqk", q, k) * (Dh ** -0.5)
        p = _softmax(scores, axis=-1)
        o = torch.einsum("bhqk,bhkd->bhqd", p, v)
        return (lambda x, *d: x.permute(*d))(o, 0, 2, 1, 3).reshape(B, Sq, Hq * Dh) @ wo

    def _B_ref(x, w1, b1, w2, b2):
        B, S, D = x.shape
        h = _layernorm(x, axis=-1)
        u = torch.einsum("bsd,sf->bdf", h, w1) + b1
        u = _gelu(u)
        y = torch.einsum("bdf,fs->bds", u, w2) + b2
        return (lambda x, *d: x.permute(*d))(y, 0, 2, 1)

    x = A_x
    h = x + _A_ref(_layernorm(x, axis=-1), A_k_cache, A_v_cache, A_wq, A_wo)
    h2 = h + _B_ref(_layernorm(h, axis=-1), B_w1, B_b1, B_w2, B_b2)
    return h2
```

```python
import re
NAME = "sequential_preLN__sliding_block_cached__mixer_token_mlp__decode"
HEADER_COMMENT = """; Kernarg layout (104 bytes, ptrs only, base s[0:1]):
;   0 A_x  8 A_k_cache  16 A_v_cache  24 A_wq  32 A_wo  40 B_x  48 B_w1  56 B_b1  64 B_w2  72 B_b2  80 d_out  88 d_debug  96 d_ws
"""
TRANS = ("v_exp_f32", "v_rcp_f32", "v_rsq_f32", "v_sqrt_f32", "v_log_f32", "v_sin_f32", "v_cos_f32")
_reg_re = re.compile(r"^(-|\|)?(abs\()?([vs])(?:(\d+)|\[(\d+):(\d+)\])\)?\|?$")
def regs_of(tok):
    tok = tok.strip()
    if tok == "vcc": return {("s", 106), ("s", 107)}
    if tok == "vcc_lo": return {("s", 106)}
    if tok == "exec": return {("s", 126), ("s", 127)}
    if tok == "m0": return {("s", 124)}
    m = _reg_re.match(tok)
    if not m: return set()
    k = m.group(3)
    if m.group(4) is not None: return {(k, int(m.group(4)))}
    return {(k, i) for i in range(int(m.group(5)), int(m.group(6)) + 1)}

class Ins:
    def __init__(self, text):
        self.text = text
        body = text.split(";")[0].strip()
        parts = body.split(None, 1)
        self.mn = parts[0]
        rest = parts[1] if len(parts) > 1 else ""
        toks = [t.strip() for t in re.split(r",(?![^\[]*\])", rest)] if rest else []
        ops = []; mods = []
        for i, t in enumerate(toks):
            sub = t.split()
            if not sub: continue
            ops.append(sub[0]); mods += sub[1:]
        self.ops = ops; self.mods = mods
        mn = self.mn
        self.mfma = mn.startswith("v_mfma")
        self.valu = mn.startswith("v_") and not self.mfma
        self.trans = mn.startswith(TRANS)
        self.ds = mn.startswith("ds_")
        self.vmem = mn.startswith(("buffer_", "global_"))
        self.salu = mn.startswith("s_")
        self.dpp = "_dpp" in mn or any(m.startswith(("quad_perm", "row_", "wave_")) for m in mods)
        self.perml = mn.startswith("v_permlane")
        self.rdlane = mn.startswith(("v_readlane", "v_readfirstlane"))
        self.ldsdma = self.vmem and ("lds" in mods or "_lds_" in mn)
        R = [regs_of(o) for o in ops]
        self.w = set(); self.r = set()
        if self.mfma:
            self.w = R[0]; self.A = R[1]; self.B = R[2]; self.C = R[3] if len(R) > 3 else set(); self.r = self.A | self.B | self.C
        elif self.valu:
            if self.perml: self.w = R[0] | R[1]; self.r = R[0] | R[1]
            elif mn.startswith(("v_add_co", "v_sub_co", "v_addc_co", "v_subb_co", "v_div_scale", "v_mad_u64")):
                self.w = R[0] | R[1]; self.r = set().union(*R[2:])
            else:
                self.w = R[0]; self.r = set().union(*R[1:]) if len(R) > 1 else set()
                if mn.startswith(("v_fmac", "v_dot2c", "v_writelane")) or self.dpp: self.r |= R[0]
                if mn.startswith("v_cndmask") and len(ops) == 3: self.r |= regs_of("vcc")
        elif self.ds:
            if "read" in mn or "_rtn" in mn or mn.startswith(("ds_bpermute", "ds_permute", "ds_swizzle")):
                self.w = R[0]; self.r = set().union(*R[1:])
            else: self.r = set().union(*R) if R else set()
        elif self.vmem:
            if "load" in mn and not self.ldsdma: self.w = R[0]; self.r = set().union(*R[1:])
            else: self.r = set().union(*R) if R else set()
            self.widestore = "store" in mn and ("x4" in mn or "x3" in mn)
            if self.widestore:
                self.sdata = R[0] if mn.startswith("buffer") else R[1]
        elif self.salu:
            if mn.startswith(("s_cmp", "s_cbranch", "s_branch", "s_waitcnt", "s_nop", "s_sleep", "s_barrier", "s_setprio", "s_endpgm", "s_bitcmp")):
                self.r = set().union(*R) if R else set()
            else:
                self.w = R[0] if R else set(); self.r = set().union(*R[1:]) if len(R) > 1 else set()
                if "saveexec" in mn: self.w |= regs_of("exec")
        self.states = 1
        if mn == "s_nop": self.states = int(ops[0], 0) + 1

def need(p, c):
    n = 0
    vw = {x for x in p.w if x[0] == "v"}; sw = {x for x in p.w if x[0] == "s"}
    if p.valu:
        if p.mn.startswith("v_dot") and vw & (c.r | c.w):
            if not (c.mn == p.mn and len(c.ops) == 4 and not (vw & (regs_of(c.ops[1]) | regs_of(c.ops[2])))): n = max(n, 3)
        if c.valu and c.dpp and vw & c.r: n = max(n, 2)
        if c.perml and vw & c.r: n = max(n, 2)
        if c.mfma and vw & c.r: n = max(n, 2)
        if c.rdlane and vw & c.r: n = max(n, 1)
        if p.trans and (c.valu or c.mfma) and not c.trans and vw & c.r: n = max(n, 1)
        if p.trans and (c.vmem or c.ds) and vw & c.r: n = max(n, 1)
        if sw:
            if c.valu and sw & c.r: n = max(n, 4 if c.mn.startswith(("v_readlane", "v_writelane")) else 2)
            if c.vmem and sw & c.r: n = max(n, 5)
            if c.salu and sw & c.r: n = max(n, 1)
    if p.mfma:
        if c.mfma:
            if p.w & (c.A | c.B): n = max(n, 8)
            elif p.w & c.C and p.w != c.C: n = max(n, 6)
            elif p.w & c.w and p.w != c.C: n = max(n, 8)
        elif (c.valu or c.vmem or c.ds) and (p.w & (c.r | c.w)): n = max(n, 8)
        if c.valu and p.C & c.w: n = max(n, 3)
    if p.salu and ("s", 124) in p.w and (c.ldsdma or c.mn.startswith(("v_writelane", "v_readlane"))): n = max(n, 1)
    if p.vmem and getattr(p, "widestore", False):
        if (c.valu or c.mfma) and p.sdata & c.w: n = max(n, 2)
        elif p.sdata & c.w: n = max(n, 1)
    return n

class A:
    def __init__(self, auto=True):
        self.lines = []
        self.uid = 0
        self.hist = []
        self.auto = auto
        self.nnops = 0
    def emit(self, l):
        l = l.strip()
        if not l: return
        if l.startswith(";") or l.startswith("."):
            self.lines.append("    " + l); return
        if re.match(r"^[\w.]+:\s*(;.*)?$", l):
            self.lines.append(l); return
        ins = Ins(l)
        if self.auto:
            req = 0; dist = 0
            for p in reversed(self.hist):
                k = need(p, ins) - dist
                req = max(req, k)
                dist += p.states
                if dist > 12: break
            if req > 0:
                nop = Ins(f"s_nop {req-1}")
                self.lines.append(f"    s_nop {req-1}"); self.hist.append(nop); self.nnops += 1
        self.lines.append("    " + l)
        self.hist.append(ins)
        if len(self.hist) > 16: self.hist = self.hist[-16:]
    def __call__(self, s):
        for l in s.strip("\n").split("\n"):
            self.emit(l)
    def label(self, base="L"):
        self.uid += 1
        return f"{base}_{self.uid}"
    def text(self):
        return "\n".join(self.lines) + "\n"

def wrap(body, grid, block, lds, vgpr, sgpr=102, kname=None, denorm=False):
    kname = kname or NAME + "_kernel"
    acc = (vgpr + 3) // 4 * 4
    s = HEADER_COMMENT
    s += f"; @launch grid=({grid},1,1) block=({block},1,1) lds={lds}\n"
    s += '.amdgcn_target "amdgcn-amd-amdhsa--gfx950"\n.text\n'
    s += f".globl {kname}\n.p2align 8\n.type {kname},@function\n{kname}:\n"
    s += body
    s += '.section .rodata,"a"\n.p2align 6\n'
    s += f".amdhsa_kernel {kname}\n"
    s += f"  .amdhsa_next_free_vgpr {vgpr}\n  .amdhsa_next_free_sgpr {sgpr}\n  .amdhsa_accum_offset {acc}\n"
    s += "  .amdhsa_group_segment_fixed_size 0\n  .amdhsa_kernarg_size 104\n  .amdhsa_user_sgpr_count 2\n"
    s += "  .amdhsa_user_sgpr_kernarg_segment_ptr 1\n  .amdhsa_system_sgpr_workgroup_id_x 1\n"
    if denorm:
        s += "  .amdhsa_float_denorm_mode_32 3\n"
    s += ".end_amdhsa_kernel\n"
    return s
```

```python
import sys, struct
from asmgen import *

def f32bits(x): return struct.unpack("<I", struct.pack("<f", x))[0]

K_L = 0; V_L = 65536; WQ_L = 98304; WO_L = 0
MISC = 131072
XN = 0; QI = 4096; FL = 5120; ST = 5376; OS = 6144; AS = 10240; ROW = 14336; TAB = 16384
LDS_TOTAL = MISC + 24576
FL_QPROJ = FL + 0; FL_QREADY = FL + 4; FL_KLAND = FL + 8; FL_VLAND = FL + 12; FL_WOLAND = FL + 16
FL_STATS = FL + 20; CNT_QK = FL + 24; CNT_O = FL + 28; CNT_A = FL + 32; CNT_ROW = FL + 36; FL_WQLAND = FL + 40; CNT_ST = FL + 44; FL_OREADY = FL + 48; FL_WT = FL + 52
WT = 6144
STS = 5632
QG = 0x10000; STG = 0x20000; OG = 0x40000; AG = 0x80000; TG = 0xA0000; SG = 0x100000; DBGA = 0x600000
WS_BYTES = 0x800000
MIRROR = 0x200000
TAB_E0 = 114
LOG2E = 1.4426950408889634
SCALE = 128 ** -0.5
GC0 = -2.0 * 0.7978845608028654 * LOG2E
GC1 = GC0 * 0.044715
MASK4 = "0x000f000f"

def gen(dbg=False, pol="nt", prefetch=True, DQ=20, DW=16, slp=2, PD=2, DWQ=32, SQ=4, SS=5, SA=3, SB=3, abl="", stp="sc1", ldp="sc1", nowpoll=False):
    a = A()
    POL = " " + pol if pol else ""
    nstamp = [0]
    def stamp():
        if dbg:
            i = nstamp[0]; nstamp[0] += 1
            assert i < 12
            a(f"s_memrealtime s[{70+2*i}:{71+2*i}]")
            a("s_waitcnt lgkmcnt(0)")
    def dump_stamps():
        if dbg:
            n = nstamp[0]
            a("s_mov_b64 exec, -1")
            a("s_waitcnt vmcnt(0) lgkmcnt(0)")
            for i in range(12):
                a(f"v_mov_b32 v{100+i}, " + (f"s{70+2*i}" if i < n else "0"))
            a(f"""
            s_mul_i32 s10, s2, 10
            s_add_u32 s10, s10, s3
            s_mul_i32 s10, s10, 64
            s_add_u32 s10, s10, {DBGA}
            v_mov_b32 v99, s10
            s_mov_b64 exec, 1
            buffer_store_dwordx4 v[100:103], v99, s[44:47], 0 offen
            buffer_store_dwordx4 v[104:107], v99, s[44:47], 0 offen offset:16
            buffer_store_dwordx4 v[108:111], v99, s[44:47], 0 offen offset:32
            """)
        nstamp[0] = 0
    def srd(d, ptr, nbytes):
        a(f"""
        s_mov_b32 s{d}, s{ptr}
        s_and_b32 s{d+1}, s{ptr+1}, 0xffff
        s_mov_b32 s{d+2}, {nbytes}
        s_mov_b32 s{d+3}, 0x20000
        """)
    def lds_wait(off, val, vt=3):
        L = a.label("Lw"); D = a.label("Lwd")
        a(f"""
        s_mov_b32 s13, 0x40000
        {L}:
        ds_read_b32 v{vt}, v2 offset:{off}
        s_waitcnt lgkmcnt(0)
        v_readfirstlane_b32 s12, v{vt}
        s_cmp_ge_u32 s12, {val}
        s_cbranch_scc1 {D}
        s_sub_u32 s13, s13, 1
        s_cbranch_scc1 {D}
        s_sleep 1
        s_branch {L}
        {D}:
        """)
    def lds_set(off, val, vt=3):
        a(f"""
        v_mov_b32 v{vt}, {val}
        ds_write_b32 v2, v{vt} offset:{off}
        """)
    def lds_count(off, vt=3):
        a(f"""
        v_mov_b32 v{vt}, 1
        s_mov_b64 exec, 1
        ds_add_rtn_u32 v{vt}, v2, v{vt} offset:{off}
        s_mov_b64 exec, -1
        s_waitcnt lgkmcnt(0)
        v_readfirstlane_b32 s12, v{vt}
        """)
    def dual_sel(mask):
        a(f"""
        s_and_b32 s12, s13, {mask}
        s_cmp_eq_u32 s12, 0
        s_cselect_b32 s67, {MIRROR}, 0
        s_add_u32 s67, s67, s66
        """)
    def poll(loads, pbase=None, depth=1, sleep=None, dual=None):
        sleep = slp if sleep is None else sleep
        a("s_mov_b32 s13, 0x3fff")
        L = a.label("Lp"); D = a.label("Lpd")
        a(f"{L}:")
        if dual: dual_sel(dual)
        for (d, va, so, imm) in loads:
            a(f"buffer_load_dwordx4 v[{d}:{d+3}], v{va}, s[44:47], {'s67' if dual else so} offen offset:{imm} sc1")
        a("s_waitcnt vmcnt(0)")
        for i, (d, va, so, imm) in enumerate(loads):
            if i == 0:
                a(f"v_cmp_ne_u64 s[14:15], s[60:61], v[{d+2}:{d+3}]")
            else:
                a(f"v_cmp_ne_u64 vcc, s[60:61], v[{d+2}:{d+3}]")
                a("s_or_b64 s[14:15], s[14:15], vcc")
        a(f"""
        s_cmp_eq_u64 s[14:15], 0
        s_cbranch_scc1 {D}
        s_sub_u32 s13, s13, 1
        s_cbranch_scc1 {D}
        s_sleep {sleep}
        s_branch {L}
        {D}:
        """)
    def pub2(vd, va, so, imm=0):
        a(f"buffer_store_dwordx4 v[{vd}:{vd+3}], v{va}, s[44:47], {so} offen offset:{imm}")
    def pub2m(vd, va, so, imm=0):
        a(f"buffer_store_dwordx4 v[{vd}:{vd+3}], v{va}, s[44:47], {so} offen offset:{imm} sc1")
    def poll_trig(loads, flag, nspin=6):
        L = a.label("Lp"); D = a.label("Lpd"); S = a.label("Lps")
        a("s_mov_b32 s13, 0x3fff")
        a(f"{L}:")
        dual_sel(3)
        for (d, va, so, imm) in loads:
            a(f"buffer_load_dwordx4 v[{d}:{d+3}], v{va}, s[44:47], s67 offen offset:{imm} sc1")
        a("s_waitcnt vmcnt(0)")
        for i, (d, va, so, imm) in enumerate(loads):
            if i == 0:
                a(f"v_cmp_ne_u64 s[14:15], s[60:61], v[{d+2}:{d+3}]")
            else:
                a(f"v_cmp_ne_u64 vcc, s[60:61], v[{d+2}:{d+3}]")
                a("s_or_b64 s[14:15], s[14:15], vcc")
        a(f"""
        s_cmp_eq_u64 s[14:15], 0
        s_cbranch_scc1 {D}
        s_sub_u32 s13, s13, 1
        s_cbranch_scc1 {D}
        s_mov_b32 s14, {nspin}
        {S}:
        s_sleep 1
        ds_read_b32 v3, v2 offset:{flag}
        s_waitcnt lgkmcnt(0)
        v_readfirstlane_b32 s12, v3
        s_cmp_lg_u32 s12, 0
        s_cbranch_scc1 {L}
        s_sub_u32 s14, s14, 1
        s_cbranch_scc0 {S}
        s_branch {L}
        {D}:
        """)
    def allreduce(regs, op, tmps):
        for m in ("quad_perm:[1,0,3,2]", "quad_perm:[2,3,0,1]", "row_half_mirror", "row_mirror"):
            for r in regs:
                a(f"v_{op}_f32_dpp v{r}, v{r}, v{r} {m} row_mask:0xf bank_mask:0xf")
        xrow(regs, op, tmps)
    def xrow(regs, op, tmps):
        for sw in ("v_permlane16_swap_b32", "v_permlane32_swap_b32"):
            for r, t in zip(regs, tmps): a(f"v_mov_b32 v{t}, v{r}")
            for r, t in zip(regs, tmps): a(f"{sw} v{r}, v{t}")
            for r, t in zip(regs, tmps): a(f"v_{op}_f32 v{r}, v{r}, v{t}")
    def rbf(dst, src):
        a(f"v_cvt_pk_bf16_f32 v{dst}, v{src}, v{src}")
        a(f"v_lshlrev_b32 v{dst}, 16, v{dst}")
    def unpack(dlo, dhi, src):
        a(f"v_lshlrev_b32 v{dlo}, 16, v{src}")
        a(f"v_and_b32 v{dhi}, 0xffff0000, v{src}")
    def layernorm(rows, tmpb):
        n = len(rows)
        S = [tmpb + i for i in range(n)]; T = [tmpb + n + i for i in range(n)]; Mb = [tmpb + 2*n + i for i in range(n)]
        D = [tmpb + 3*n + 8*i for i in range(n)]
        for x, s, t in zip(rows, S, T):
            a(f"v_add_f32 v{s}, v{x}, v{x+1}"); a(f"v_add_f32 v{t}, v{x+2}, v{x+3}")
        for x, s, t in zip(rows, S, T):
            a(f"v_add_f32 v{s}, v{s}, v{x+4}"); a(f"v_add_f32 v{t}, v{t}, v{x+5}")
        for x, s, t in zip(rows, S, T):
            a(f"v_add_f32 v{s}, v{s}, v{x+6}"); a(f"v_add_f32 v{t}, v{t}, v{x+7}")
        for s, t in zip(S, T): a(f"v_add_f32 v{s}, v{s}, v{t}")
        allreduce(S, "add", T)
        for s in S: a(f"v_mul_f32 v{s}, {f32bits(1/512):#x}, v{s}")
        for x, s, d in zip(rows, S, D):
            for i in range(8): a(f"v_sub_f32 v{d+i}, v{x+i}, v{s}")
        for s, m in zip(S, Mb): rbf(m, s)
        for s, t, d in zip(S, T, D):
            a(f"v_mul_f32 v{s}, v{d}, v{d}"); a(f"v_mul_f32 v{t}, v{d+1}, v{d+1}")
        for i in range(2, 8, 2):
            for s, t, d in zip(S, T, D):
                a(f"v_fmac_f32 v{s}, v{d+i}, v{d+i}"); a(f"v_fmac_f32 v{t}, v{d+i+1}, v{d+i+1}")
        for s, t in zip(S, T): a(f"v_add_f32 v{s}, v{s}, v{t}")
        allreduce(S, "add", T)
        for s in S: a(f"v_mul_f32 v{s}, {f32bits(1/512):#x}, v{s}")
        for s in S: rbf(s, s)
        for s in S: a(f"v_add_f32 v{s}, {f32bits(1e-5):#x}, v{s}")
        for s in S: rbf(s, s)
        for s in S: a(f"v_sqrt_f32 v{s}, v{s}")
        for s in S: rbf(s, s)
        for s in S: a(f"v_rcp_f32 v{s}, v{s}")
        for x, m, d in zip(rows, Mb, D):
            for i in range(8): a(f"v_sub_f32 v{d+i}, v{x+i}, v{m}")
        for x, d in zip(rows, D):
            for i in range(0, 8, 2): a(f"v_cvt_pk_bf16_f32 v{x+i}, v{d+i}, v{d+i+1}")
        for x, d in zip(rows, D):
            for i in range(0, 8, 2): unpack(d+i, d+i+1, x+i)
        for s, d in zip(S, D):
            for i in range(8): a(f"v_mul_f32 v{d+i}, v{d+i}, v{s}")
        return D

    a(f"""
    s_cmp_ge_u32 s2, 256
    s_cbranch_scc1 L_end
    s_load_dwordx16 s[16:31], s[0:1], 0
    s_load_dwordx8 s[32:39], s[0:1], 64
    s_load_dwordx2 s[40:41], s[0:1], 96
    v_lshrrev_b32 v1, 6, v0
    v_and_b32 v0, 63, v0
    v_readfirstlane_b32 s3, v1
    v_mov_b32 v2, {MISC}
    v_lshl_add_u32 v3, v0, 2, v2
    v_mov_b32 v4, 0
    ds_write_b32 v3, v4 offset:{FL}
    s_and_b32 s4, s2, 7
    s_lshr_b32 s5, s2, 3
    s_and_b32 s6, s5, 3
    s_lshr_b32 s7, s5, 2
    s_lshl_b32 s8, s6, 3
    s_add_u32 s8, s8, s4
    s_waitcnt lgkmcnt(0)
    s_barrier
    s_load_dwordx2 s[62:63], s[40:41], 0
    """)
    srd(44, 40, WS_BYTES)
    a("""
    s_cmp_eq_u32 s3, 0
    s_cbranch_scc1 L_roleL
    s_cmp_eq_u32 s3, 1
    s_cbranch_scc1 L_roleQ
    s_branch L_roleW
    """)
    def get_tag():
        a("""
        s_waitcnt lgkmcnt(0)
        s_add_u32 s60, s62, 0x7f4a7c15
        s_addc_u32 s61, s63, 0x9e3779b9
        """)

    a("L_roleL:")
    a("s_setprio 3")
    stamp()
    srd(48, 18, 0x4000000); srd(52, 20, 0x4000000); srd(56, 24, 0x400000); srd(64, 22, 0x400000)
    a("""
    v_lshrrev_b32 v4, 4, v0
    v_and_b32 v5, 15, v0
    """)
    for n in range(4):
        a(f"""
        v_add_u32 v6, {4*n}, v4
        v_xor_b32 v7, v6, v5
        v_lshlrev_b32 v7, 4, v7
        v_lshl_add_u32 v{20+n}, v4, 8, v7
        """)
    a(f"""
    v_lshrrev_b32 v4, 2, v0
    v_and_b32 v5, 3, v0
    v_lshlrev_b32 v5, 4, v5
    v_lshl_add_u32 v24, v4, 8, v5
    v_lshl_add_u32 v25, v4, 10, v5
    v_lshl_add_u32 v26, v4, 13, v5
    s_lshl_b32 s9, s8, 21
    s_add_u32 s9, s9, {6144*256}
    s_lshl_b32 s10, s7, 16
    s_add_u32 s96, s9, s10
    s_lshr_b32 s10, s7, 2
    s_lshl_b32 s10, s10, 18
    s_add_u32 s97, s9, s10
    s_and_b32 s10, s7, 3
    s_lshl_b32 s10, s10, 6
    s_add_u32 s97, s97, s10
    s_lshl_b32 s98, s4, 19
    s_sub_u32 s10, s5, 16
    s_lshl_b32 s10, s10, 6
    s_add_u32 s98, s98, s10
    s_lshl_b32 s99, s4, 10
    s_lshl_b32 s10, s5, 6
    s_add_u32 s99, s99, s10
    v_mov_b32 v27, 0
    s_lshl_b32 s11, s4, 19
    buffer_load_dword v28, v27, s[52:55], s97 offen
    buffer_load_dword v29, v27, s[56:59], s11 offen
    s_cmp_ge_u32 s5, 16
    s_cbranch_scc1 L_L_wo
    """)
    def stream(segs, D):
        items = []
        for s in segs:
            for n in range(s["n"]): items.append((s, n))
        ev = {}
        base = 0
        for s in segs:
            for k, f in s.get("events", {}).items(): ev.setdefault(base + k, []).append(f)
            base += s["n"]
        N = len(items)
        landed = -1
        def fire(upto):
            nonlocal landed
            for i in range(landed + 1, upto + 1):
                for f in ev.get(i, []): f()
            landed = max(landed, upto)
        for gi, (s, n) in enumerate(items):
            if n in s.get("pre", {}): s["pre"][n]()
            if n == 0:
                a(f"s_mov_b32 s64x, {s['soff']}".replace("s64x", "s94")); a(f"s_mov_b32 s95, {s['lds']}")
            Dc = s.get("D", D)
            if gi >= Dc and gi % 2 == 0:
                a(f"s_waitcnt vmcnt({Dc - 2})")
                fire(gi - 1 - (Dc - 2))
            if n % 4 == 0:
                a("s_mov_b32 m0, s95"); a("s_add_u32 s95, s95, 4096")
            vreg = s["v"] + (n & 3 if s["kind"] == "K" else 0)
            a(f"buffer_load_dwordx4 v{vreg}, s[{s['srd']}:{s['srd']+3}], s94 offen offset:{(n&3)*1024}{POL} lds")
            step = s["step"]
            inc = step - 1024 if (n & 3) != 3 else step - 1024 + 4096
            if inc: a(f"s_add_u32 s94, s94, {inc}")
        for i in sorted(ev):
            if i > landed:
                a(f"s_waitcnt vmcnt({N - 1 - i})")
                fire(i)
    def setf(off, val, st=False):
        def f():
            lds_set(off, val)
            if st: stamp()
        return f
    segK = lambda: dict(kind="K", n=64, v=20, srd=48, soff="s96", lds=K_L, step=1024, events={63: setf(FL_KLAND, 1, True)})
    segV = lambda pre: dict(kind="V", n=64, v=24, srd=52, soff="s97", lds=V_L, step=4096, pre=pre,
                            events={8*w + 7: setf(FL_VLAND, w + 1, w == 7) for w in range(8)})
    stream([dict(kind="WQ", n=32, v=26, srd=64, soff="s99", lds=WQ_L, step=16*8192, D=DWQ, events={8*c + 7: setf(FL_WQLAND, c + 1) for c in range(4)}),
            segK(), segV({32: lambda: (None if abl else lds_wait(FL_QPROJ, 1))})], DQ)
    if dbg: a("s_memrealtime s[76:77]")
    a("s_branch L_L_done")
    a("L_L_wo:")
    nstamp[0] = 1
    stream([segK(), segV({}),
            dict(kind="WO", n=32, v=25, srd=56, soff="s98", lds=WO_L, step=16384, pre={0: lambda: (None if abl else lds_wait(CNT_QK, 8))}, events={31: setf(FL_WOLAND, 1, True)})], DW)
    a("L_L_done:")
    dump_stamps()
    a("s_endpgm")

    a("L_roleQ:")
    a("s_setprio 2")
    stamp()
    if "Q0" in abl:
        a("s_branch L_Q_done")
    srd(48, 16, 4096); srd(56, 36, 4096)
    a(f"""
    v_lshlrev_b32 v4, 4, v0
    s_lshl_b32 s10, s6, 10
    """)
    for b in range(4):
        a(f"buffer_load_dwordx4 v[{8+4*b}:{11+4*b}], v4, s[48:51], 0 offen offset:{1024*b}")
    a(f"""
    buffer_load_dwordx4 v[112:115], v4, s[48:51], s10 offen
    buffer_load_dwordx4 v[104:107], v4, s[56:59], s10 offen
    """)
    if not prefetch: a("buffer_load_dwordx4 v[108:111], v4, s[56:59], s10 offen")
    if prefetch:
        a(f"""
        s_getpc_b64 s[10:11]
        L_pc_here:
        s_sub_u32 s10, s10, L_pc_here - {NAME}_kernel
        s_subb_u32 s11, s11, 0
        s_lshl_b32 s12, s5, 10
        v_add_u32 v7, s12, v4
        v_min_u32 v7, L_code_end - {NAME}_kernel - 16, v7
        global_load_dwordx4 v[108:111], v7, s[10:11]
        """)
    a(f"""
    s_cmp_ge_u32 s5, 16
    s_cbranch_scc1 L_Q_gather
    s_waitcnt vmcnt(2)
    """)
    X = [24 + 8*b for b in range(4)]
    for b in range(4):
        for i in range(4): unpack(X[b] + 2*i, X[b] + 2*i + 1, 8 + 4*b + i)
    D = layernorm(X, 56)
    for b in range(4):
        for i in range(4): a(f"v_cvt_pk_bf16_f32 v{8+4*b+i}, v{D[b]+2*i}, v{D[b]+2*i+1}")
    a("v_add_u32 v5, v4, v2")
    for b in range(4):
        a(f"ds_write_b128 v5, v[{8+4*b}:{11+4*b}] offset:{XN + 1024*b}")
    get_tag()
    stamp()
    a(f"""
    v_lshrrev_b32 v5, 2, v0
    v_and_b32 v6, 3, v0
    v_lshlrev_b32 v7, 3, v6
    v_lshl_add_u32 v5, v5, 6, v7
    v_add_u32 v5, {WQ_L}, v5
    v_lshrrev_b32 v7, 4, v0
    v_lshlrev_b32 v7, 3, v7
    v_lshl_add_u32 v6, v6, 10, v7
    v_add_u32 v6, v6, v2
    """)
    for i in range(16):
        a(f"ds_read2_b64 v[{8+4*i}:{11+4*i}], v6 offset0:{8*i} offset1:{8*i+4}")
        if i == 7: a("s_waitcnt lgkmcnt(0)")
    for c in range(4):
        lds_wait(FL_WQLAND, c + 1)
        if c == 3: stamp()
        for ii in range(4):
            i = 4*c + ii
            for ct in range(2):
                r = 120 + 8*ii + 4*ct
                a(f"ds_read_b64_tr_b16 v[{r}:{r+1}], v5 offset:{2048*i + 32*ct}")
                a(f"ds_read_b64_tr_b16 v[{r+2}:{r+3}], v5 offset:{2048*i + 32*ct + 1024}")
            if ii == 2: a("s_waitcnt lgkmcnt(8)")
        for ii in range(4):
            i = 4*c + ii
            if ii: a(f"s_waitcnt lgkmcnt({12 - 4*ii})")
            for ct in range(2):
                r = 120 + 8*ii + 4*ct
                cc = "0" if i == 0 else f"v[{72+4*ct}:{75+4*ct}]"
                a(f"v_mfma_f32_16x16x32_bf16 v[{72+4*ct}:{75+4*ct}], v[{r}:{r+3}], v[{8+4*i}:{11+4*i}], {cc}")
    lds_set(FL_QPROJ, 1)
    a(f"""
    v_and_b32 v6, 3, v0
    v_lshrrev_b32 v7, 4, v0
    v_lshlrev_b32 v7, 4, v7
    v_lshl_add_u32 v6, v6, 14, v7
    s_lshl_b32 s10, s4, 11
    s_lshl_b32 s11, s5, 7
    s_add_u32 s10, s10, s11
    s_add_u32 s10, s10, {QG}
    v_mov_b32 v82, s60
    v_mov_b32 v83, s61
    v_mov_b32 v86, s60
    v_mov_b32 v87, s61
    v_cvt_pk_bf16_f32 v80, v72, v73
    v_cvt_pk_bf16_f32 v81, v74, v75
    v_cvt_pk_bf16_f32 v84, v76, v77
    v_cvt_pk_bf16_f32 v85, v78, v79
    s_mov_b32 exec_lo, {MASK4}
    s_mov_b32 exec_hi, {MASK4}
    s_add_u32 s11, s10, {MIRROR}
    buffer_store_dwordx4 v[80:83], v6, s[44:47], s10 offen
    buffer_store_dwordx4 v[84:87], v6, s[44:47], s10 offen offset:64
    buffer_store_dwordx4 v[80:83], v6, s[44:47], s11 offen sc1
    buffer_store_dwordx4 v[84:87], v6, s[44:47], s11 offen offset:64 sc1
    s_mov_b64 exec, -1
    """)
    stamp()
    a("s_branch L_Q_gather2")
    a("L_Q_gather:")
    get_tag()
    if dbg:
        a("s_memrealtime s[72:73]"); a("s_memrealtime s[74:75]"); a("s_memrealtime s[76:77]"); a("s_waitcnt lgkmcnt(0)")
    a("L_Q_gather2:")
    if "Q1" in abl: a("s_branch L_Q_done")
    a(f"""
    s_lshl_b32 s10, s6, 14
    s_lshl_b32 s11, s4, 11
    s_add_u32 s10, s10, s11
    s_add_u32 s66, s10, {QG}
    """)
    poll([(8, 4, "s66", 0), (12, 4, "s66", 1024)], sleep=SQ, dual=7)
    a(f"""
    v_lshl_add_u32 v5, v0, 3, v2
    ds_write_b64 v5, v[8:9] offset:{QI}
    ds_write_b64 v5, v[12:13] offset:{QI + 512}
    """)
    lds_set(FL_QREADY, 1)
    stamp()
    a(f"""
    s_lshl_b32 s10, s8, 12
    s_add_u32 s66, s10, {STG}
    """)
    poll([(8 + 4*i, 4, "s66", 1024*i) for i in range(4)], sleep=SS, dual=7)
    a(f"""
    v_max_f32 v24, v8, v12
    v_max3_f32 v24, v24, v16, v20
    v_max_f32_dpp v24, v24, v24 row_ror:4 row_mask:0xf bank_mask:0xf
    v_max_f32_dpp v24, v24, v24 row_ror:8 row_mask:0xf bank_mask:0xf
    """)
    xrow([24], "max", [25])
    a(f"s_mov_b32 s10, {f32bits(LOG2E):#x}")
    for i in range(4):
        a(f"v_sub_f32 v{26+i}, v{8+4*i}, v24")
    for i in range(4):
        a(f"v_mul_f32 v{26+i}, s10, v{26+i}")
    for i in range(4):
        a(f"v_exp_f32 v{26+i}, v{26+i}")
    a(f"""
    v_mul_f32 v30, v26, v9
    v_fmac_f32 v30, v27, v13
    v_fmac_f32 v30, v28, v17
    v_fmac_f32 v30, v29, v21
    v_add_f32_dpp v30, v30, v30 row_ror:4 row_mask:0xf bank_mask:0xf
    v_add_f32_dpp v30, v30, v30 row_ror:8 row_mask:0xf bank_mask:0xf
    """)
    xrow([30], "add", [25])
    a(f"""
    v_rcp_f32 v25, v30
    v_fma_f32 v31, -v30, v25, 1.0
    v_fmac_f32 v25, v31, v25
    s_mov_b64 exec, 15
    ds_write_b64 v5, v[24:25] offset:{ST}
    s_mov_b64 exec, -1
    """)
    lds_set(FL_STATS, 1)
    stamp()
    a(f"""
    s_cmp_lt_u32 s5, 16
    s_cbranch_scc1 L_Q_notwo
    v_and_b32 v6, 3, v0
    v_lshlrev_b32 v6, 8, v6
    v_bfe_u32 v7, v0, 2, 3
    v_lshl_add_u32 v6, v7, 15, v6
    s_lshl_b32 s10, s4, 12
    s_add_u32 s66, s10, {OG + 3*1024 + 15*16}
    s_mov_b32 exec_hi, 0
    """)
    poll([(8, 6, "s66", 0)], sleep=SA, dual=7)
    a("s_mov_b64 exec, -1")
    lds_set(FL_OREADY, 1)
    a("s_branch L_Q_done")
    a("L_Q_notwo:")
    a(f"""
    s_cmp_lg_u32 s4, 0
    s_cbranch_scc1 L_Q_done
    s_cmp_ge_u32 s5, 4
    s_cbranch_scc1 L_Q_done
    v_lshl_add_u32 v5, v0, 2, v2
    """)
    for bt in range(4):
        a(f"s_mov_b32 s66, {TG + bt * 8192}")
        a(f"s_mov_b32 s67, {TG + bt * 8192 + 4096}")
        poll([(8 + 4*i, 4, "s66" if i < 4 else "s67", 1024*(i & 3)) for i in range(8)])
        for i in range(8):
            a(f"ds_write_b32 v5, v{8+4*i} offset:{TAB + (bt * 8 + i) * 256}")
    stamp()
    FW1 = 116; FB1 = 68; FW2 = 144
    srd(64, 28, 3584); srd(48, 30, 3584); srd(52, 32, 3584)
    a("v_lshlrev_b32 v6, 3, v0")
    for i in range(7):
        a(f"buffer_load_dwordx2 v[{8+2*i}:{9+2*i}], v6, s[64:67], 0 offen offset:{512*i}")
        a(f"buffer_load_dwordx2 v[{22+2*i}:{23+2*i}], v6, s[48:51], 0 offen offset:{512*i}")
        a(f"buffer_load_dwordx2 v[{FW2+2*i}:{FW2+2*i+1}], v6, s[52:55], 0 offen offset:{512*i}")
    srd(64, 34, 2)
    a("v_mov_b32 v7, 0")
    a("buffer_load_ushort v158, v7, s[64:67], 0 offen")
    a("s_waitcnt vmcnt(0)")
    for i in range(14):
        unpack(FW1 + 2*i, FW1 + 2*i + 1, 8 + i)
        unpack(FB1 + 2*i, FB1 + 2*i + 1, 22 + i)
    a("v_lshlrev_b32 v158, 16, v158")
    for i in range(4): unpack(24 + 2*i, 25 + 2*i, 112 + i)
    lds_wait(CNT_ROW, 8)
    stamp()
    a(f"""
    v_lshl_add_u32 v5, v0, 5, v2
    ds_read_b128 v[8:11], v5 offset:{ROW}
    ds_read_b128 v[12:15], v5 offset:{ROW + 16}
    s_waitcnt lgkmcnt(0)
    """)
    for i in range(4): a(f"v_cvt_pk_bf16_f32 v{16+i}, v{8+2*i}, v{9+2*i}")
    for i in range(4): unpack(8 + 2*i, 9 + 2*i, 16 + i)
    for i in range(8): a(f"v_add_f32 v{8+i}, v{24+i}, v{8+i}")
    for i in range(4): a(f"v_cvt_pk_bf16_f32 v{16+i}, v{8+2*i}, v{9+2*i}")
    for i in range(4): unpack(32 + 2*i, 33 + 2*i, 16 + i)
    for i in range(8): a(f"v_mov_b32 v{24+i}, v{32+i}")
    D = layernorm([24], 56)[0]
    for i in range(4): a(f"v_cvt_pk_bf16_f32 v{16+i}, v{D+2*i}, v{D+2*i+1}")
    for i in range(4): unpack(24 + 2*i, 25 + 2*i, 16 + i)
    D = layernorm([24], 56)[0]
    for i in range(4): a(f"v_cvt_pk_bf16_f32 v{16+i}, v{D+2*i}, v{D+2*i+1}")
    for i in range(4):
        a(f"v_and_b32 v{24+2*i}, 0xffff, v{16+i}")
        a(f"v_lshrrev_b32 v{25+2*i}, 16, v{16+i}")
    a("s_movk_i32 s10, 0x800")
    a("s_mov_b64 s[14:15], 0")
    for i in range(8):
        a(f"""
        v_and_b32 v{40+i}, 0x7fff, v{24+i}
        v_subrev_u32 v{40+i}, {TAB_E0 << 7}, v{40+i}
        v_cmp_le_u32 vcc, s10, v{40+i}
        v_and_b32 v{40+i}, 0x7ff, v{40+i}
        v_lshrrev_b32 v{48+i}, 15, v{24+i}
        v_lshl_or_b32 v{40+i}, v{48+i}, 11, v{40+i}
        s_or_b64 s[14:15], s[14:15], vcc
        v_lshl_add_u32 v{40+i}, v{40+i}, 1, v2
        ds_read_u16 v{48+i}, v{40+i} offset:{TAB}
        """)
    a(f"""
    s_waitcnt lgkmcnt(0)
    s_cmp_eq_u64 s[14:15], 0
    s_cbranch_scc1 L_Q_nofb
    """)
    a(f"""
    v_mov_b32 v42, {f32bits(GC0):#x}
    v_mov_b32 v43, {f32bits(GC0):#x}
    v_mov_b32 v44, 1.0
    v_mov_b32 v45, 1.0
    s_mov_b32 s92, {f32bits(GC1):#x}
    s_mov_b32 s93, {f32bits(GC1):#x}
    """)
    for i in range(8):
        Lf = a.label("Lfb"); Ld = a.label("Lfbd")
        a(f"""
        v_and_b32 v46, 0x7fff, v{24+i}
        v_subrev_u32 v46, {TAB_E0 << 7}, v46
        v_cmp_le_u32 s[94:95], s10, v46
        {Lf}:
        s_cmp_eq_u64 s[94:95], 0
        s_cbranch_scc1 {Ld}
        s_ff1_i32_b64 s96, s[94:95]
        s_bitset0_b64 s[94:95], s96
        s_mov_b32 m0, s96
        s_nop 1
        v_readlane_b32 s68, v{24+i}, m0
        s_call_b64 s[98:99], L_eval
        s_nop 3
        v_writelane_b32 v{48+i}, s68, m0
        s_branch {Lf}
        {Ld}:
        """)
    a("s_branch L_Q_nofb")
    a(f"""
    L_eval:
    s_nop 3
    s_lshl_b32 s68, s68, 16
    s_mov_b32 s69, s68
    v_mov_b32 v40, 0
    """)
    for p in range(0, 14, 2):
        gelu_pairs(a, [(FW1 + 2*p, FB1 + 2*p, FW2 + p, 8), (FW1 + 2*p + 2, FB1 + 2*p + 2, FW2 + p + 1, 16)], 40, "s[68:69]", "s[92:93]", 42, 44)
    allreduce([40], "add", [41])
    rbf(40, 40)
    a(f"""
    v_add_f32 v40, v40, v158
    v_cvt_pk_bf16_f32 v40, v40, v40
    v_and_b32 v40, 0xffff, v40
    v_readfirstlane_b32 s68, v40
    s_setpc_b64 s[98:99]
    """)
    a("L_Q_nofb:")
    for i in range(8):
        a(f"v_lshlrev_b32 v{48+i}, 16, v{48+i}")
        a(f"v_add_f32 v{48+i}, v{32+i}, v{48+i}")
    for i in range(4): a(f"v_cvt_pk_bf16_f32 v{16+i}, v{48+2*i}, v{49+2*i}")
    a(f"""
    s_lshl_b32 s10, s5, 10
    buffer_store_dwordx4 v[16:19], v4, s[56:59], s10 offen
    s_cmp_lg_u32 s5, 0
    s_cbranch_scc1 L_Q_done
    v_mov_b32 v8, s60
    v_mov_b32 v9, s61
    v_mov_b32 v10, 0
    s_mov_b64 exec, 1
    buffer_store_dwordx2 v[8:9], v10, s[44:47], 0 offen
    s_mov_b64 exec, -1
    """)
    a("L_Q_done:")
    stamp()
    dump_stamps()
    a("s_endpgm")

    a("L_roleW:")
    stamp()
    if "W0" in abl:
        a("s_branch L_W_done")
    a("s_sub_u32 s9, s3, 2")
    srd(48, 28, 3584); srd(52, 30, 3584); srd(56, 32, 3584); srd(64, 34, 2)
    W1 = 8; B1 = 36; W2 = 64; TP = 80
    a(f"""
    v_lshlrev_b32 v4, 4, v0
    v_mov_b32 v5, 0
    buffer_load_ushort v6, v5, s[64:67], 0 offen
    s_cmp_lg_u32 s9, 0
    s_cbranch_scc1 L_W_wwait
    """)
    for k, sr in enumerate((48, 52, 56)):
        a(f"s_mov_b32 m0, {MISC + WT + 4096*k}")
        for i in range(4):
            a(f"buffer_load_dwordx4 v4, s[{sr}:{sr+3}], 0 offen offset:{1024*i} lds")
    a("s_waitcnt vmcnt(0)")
    lds_set(FL_WT, 1)
    a("L_W_wwait:")
    lds_wait(FL_WT, 1)
    a("v_lshl_add_u32 v4, v0, 3, v2")
    for i in range(7):
        a(f"ds_read_b64 v[{TP+2*i}:{TP+2*i+1}], v4 offset:{WT + 512*i}")
        a(f"ds_read_b64 v[{TP+14+2*i}:{TP+15+2*i}], v4 offset:{WT + 4096 + 512*i}")
    a("s_waitcnt lgkmcnt(0)")
    for i in range(7):
        a(f"ds_read_b64 v[{W2+2*i}:{W2+2*i+1}], v4 offset:{WT + 8192 + 512*i}")
    a("s_waitcnt vmcnt(0)")
    for i in range(14):
        unpack(W1 + 2*i, W1 + 2*i + 1, TP + i)
        unpack(B1 + 2*i, B1 + 2*i + 1, TP + 14 + i)
    a(f"""
    v_lshlrev_b32 v6, 16, v6
    v_mov_b32 v80, {f32bits(GC0):#x}
    v_mov_b32 v81, {f32bits(GC0):#x}
    v_mov_b32 v82, 1.0
    v_mov_b32 v83, 1.0
    s_mov_b32 s92, {f32bits(GC1):#x}
    s_mov_b32 s93, {f32bits(GC1):#x}
    """)
    get_tag()
    for e in range(2):
        a(f"""
        s_lshl_b32 s10, s2, 4
        s_lshl_b32 s11, s9, 1
        s_add_u32 s10, s10, s11
        s_add_u32 s10, s10, {e}
        s_lshr_b32 s11, s10, 11
        s_and_b32 s10, s10, 0x7ff
        s_add_u32 s10, s10, {TAB_E0 << 7}
        s_lshl_b32 s10, s10, 16
        s_lshl_b32 s11, s11, 31
        s_or_b32 s68, s10, s11
        s_mov_b32 s69, s68
        v_mov_b32 v{84+e}, 0
        """)
        for p in range(0, 14, 2):
            gelu_pairs(a, [(W1 + 2*p, B1 + 2*p, W2 + p, 88), (W1 + 2*p + 2, B1 + 2*p + 2, W2 + p + 1, 96)], 84 + e, "s[68:69]", "s[92:93]", 80, 82)
    allreduce([84, 85], "add", [86, 87])
    rbf(84, 84); rbf(85, 85)
    a(f"""
    v_add_f32 v84, v84, v6
    v_add_f32 v85, v85, v6
    v_cvt_pk_bf16_f32 v88, v84, v85
    v_mov_b32 v89, 0
    v_mov_b32 v90, s60
    v_mov_b32 v91, s61
    s_lshl_b32 s10, s2, 3
    s_add_u32 s10, s10, s9
    s_lshl_b32 s10, s10, 4
    s_add_u32 s10, s10, {TG}
    s_mov_b64 exec, 1
    buffer_store_dwordx4 v[88:91], v5, s[44:47], s10 offen sc1
    s_mov_b64 exec, -1
    """)
    stamp()
    if "W1" in abl: a("s_branch L_W_done")
    a(f"""
    v_and_b32 v4, 15, v0
    v_lshrrev_b32 v5, 4, v0
    v_xor_b32 v6, v4, v5
    v_lshlrev_b32 v6, 4, v6
    v_lshl_add_u32 v6, v4, 8, v6
    s_lshl_b32 s10, s9, 13
    v_add_u32 v8, s10, v6
    v_xor_b32 v9, 64, v8
    v_xor_b32 v10, 128, v8
    v_xor_b32 v11, 192, v8
    v_and_b32 v7, 3, v0
    v_lshlrev_b32 v12, 8, v7
    v_lshl_add_u32 v12, v5, 4, v12
    v_add_u32 v12, v12, v2
    """)
    lds_wait(FL_QREADY, 1)
    for s in range(4):
        a(f"ds_read_b128 v[{16+4*s}:{19+4*s}], v12 offset:{QI + 64*s}")
    lds_wait(FL_KLAND, 1)
    stamp()
    for T in range(2):
        for s in range(4):
            a(f"ds_read_b128 v[{32+16*T+4*s}:{35+16*T+4*s}], v{8+s} offset:{4096*T}")
    for T in range(2):
        a(f"s_waitcnt lgkmcnt({4 - 4*T})")
        for s in range(4):
            c = "0" if s == 0 else f"v[{64+4*T}:{67+4*T}]"
            a(f"v_mfma_f32_16x16x32_bf16 v[{64+4*T}:{67+4*T}], v[{32+16*T+4*s}:{35+16*T+4*s}], v[{16+4*s}:{19+4*s}], {c}")
    a(f"""
    v_mov_b32 v3, 1
    s_mov_b64 exec, 1
    ds_add_u32 v2, v3 offset:{CNT_QK}
    s_mov_b64 exec, -1
    s_mov_b32 s10, {f32bits(SCALE):#x}
    v_mov_b32 v74, s60
    v_mov_b32 v75, s61
    v_mov_b32 v78, s60
    v_mov_b32 v79, s61
    s_lshl_b32 s11, s8, 15
    s_lshl_b32 s12, s7, 12
    s_add_u32 s11, s11, s12
    s_lshl_b32 s12, s9, 9
    s_add_u32 s11, s11, s12
    s_add_u32 s11, s11, {SG}
    v_lshlrev_b32 v13, 4, v7
    v_lshl_add_u32 v13, v5, 6, v13
    """)
    for T in range(2):
        a(f"v_cvt_pk_bf16_f32 v{80+2*T}, v{64+4*T}, v{65+4*T}")
        a(f"v_cvt_pk_bf16_f32 v{81+2*T}, v{66+4*T}, v{67+4*T}")
    for i in range(4): unpack(64 + 2*i, 65 + 2*i, 80 + i)
    for i in range(8): a(f"v_mul_f32 v{64+i}, s10, v{64+i}")
    for T in range(2):
        a(f"v_cvt_pk_bf16_f32 v{72+4*T}, v{64+4*T}, v{65+4*T}")
        a(f"v_cvt_pk_bf16_f32 v{73+4*T}, v{66+4*T}, v{67+4*T}")
    a(f"""
    s_mov_b32 exec_lo, {MASK4}
    s_mov_b32 exec_hi, {MASK4}
    buffer_store_dwordx4 v[72:75], v13, s[44:47], s11 offen
    buffer_store_dwordx4 v[76:79], v13, s[44:47], s11 offen offset:256
    s_add_u32 s69, s11, {MIRROR}
    s_mov_b64 exec, -1
    """)
    unpack(64, 65, 72); unpack(66, 67, 73); unpack(68, 69, 76); unpack(70, 71, 77)
    a(f"""
    v_max3_f32 v84, v64, v65, v66
    v_max3_f32 v85, v67, v68, v69
    v_max3_f32 v84, v84, v70, v71
    v_max_f32 v84, v84, v85
    """)
    xrow([84], "max", [86])
    a(f"s_mov_b32 s10, {f32bits(LOG2E):#x}")
    for i in range(8): a(f"v_sub_f32 v{64+i}, v{64+i}, v84")
    for i in range(8): a(f"v_mul_f32 v{64+i}, s10, v{64+i}")
    for i in range(8): a(f"v_exp_f32 v{64+i}, v{64+i}")
    a(f"""
    v_add_f32 v85, v64, v65
    v_add_f32 v86, v66, v67
    v_add_f32 v87, v68, v69
    v_add_f32 v88, v70, v71
    v_add_f32 v85, v85, v86
    v_add_f32 v87, v87, v88
    v_add_f32 v85, v85, v87
    """)
    xrow([85], "add", [86])
    a(f"""
    v_mov_b32 v86, s60
    v_mov_b32 v87, s61
    s_lshl_b32 s11, s8, 12
    s_lshl_b32 s12, s7, 9
    s_add_u32 s11, s11, s12
    s_lshl_b32 s12, s9, 6
    s_add_u32 s11, s11, s12
    s_add_u32 s11, s11, {STG}
    v_lshlrev_b32 v14, 4, v0
    s_mov_b64 exec, 15
    s_add_u32 s12, s11, {MIRROR}
    buffer_store_dwordx4 v[84:87], v14, s[44:47], s11 offen
    buffer_store_dwordx4 v[84:87], v14, s[44:47], s12 offen sc1
    s_mov_b32 exec_lo, {MASK4}
    s_mov_b32 exec_hi, {MASK4}
    buffer_store_dwordx4 v[72:75], v13, s[44:47], s69 offen sc1
    buffer_store_dwordx4 v[76:79], v13, s[44:47], s69 offen offset:256 sc1
    s_mov_b64 exec, -1
    """)
    stamp()
    a(f"""
    v_bfe_u32 v15, v0, 2, 2
    v_lshl_add_u32 v15, v15, 9, v13
    s_lshl_b32 s11, s8, 15
    s_lshr_b32 s12, s7, 2
    s_lshl_b32 s12, s12, 14
    s_add_u32 s11, s11, s12
    s_lshl_b32 s12, s9, 11
    s_add_u32 s11, s11, s12
    s_add_u32 s66, s11, {SG}
    v_lshrrev_b32 v16, 2, v0
    v_lshlrev_b32 v17, 3, v7
    v_lshl_add_u32 v16, v16, 6, v17
    s_lshl_b32 s10, s9, 13
    s_add_u32 s10, s10, {V_L}
    v_add_u32 v17, s10, v16
    v_lshl_add_u32 v18, v7, 3, v2
    """)
    if nowpoll: lds_wait(FL_STATS, 1)
    poll_trig([(20, 15, "s66", 0), (24, 15, "s66", 256)], FL_STATS)
    stamp()
    unpack(28, 29, 20); unpack(30, 31, 21); unpack(32, 33, 24); unpack(34, 35, 25)
    lds_wait(FL_STATS, 1)
    a(f"""
    ds_read_b64 v[36:37], v18 offset:{ST}
    s_mov_b32 s10, {f32bits(LOG2E):#x}
    s_waitcnt lgkmcnt(0)
    """)
    for i in range(8): a(f"v_sub_f32 v{28+i}, v{28+i}, v36")
    for i in range(8): a(f"v_mul_f32 v{28+i}, s10, v{28+i}")
    for i in range(8): a(f"v_exp_f32 v{28+i}, v{28+i}")
    for i in range(8): a(f"v_mul_f32 v{28+i}, v{28+i}, v37")
    for i in range(4): a(f"v_cvt_pk_bf16_f32 v{40+i}, v{28+2*i}, v{29+2*i}")
    for c in range(1, 4):
        for i in range(4):
            a(f"v_mov_b32_dpp v{40+4*c+i}, v{40+i} row_shl:{4*c} row_mask:0xf bank_mask:0xf")
    a("s_add_u32 s11, s9, 1")
    lds_wait(FL_VLAND, "s11")
    stamp()
    for c in range(4):
        for dt in range(2):
            r = 56 + 8*c + 4*dt
            a(f"ds_read_b64_tr_b16 v[{r}:{r+1}], v17 offset:{2048*c + 32*dt}")
            a(f"ds_read_b64_tr_b16 v[{r+2}:{r+3}], v17 offset:{2048*c + 32*dt + 1024}")
        if c == 2: a("s_waitcnt lgkmcnt(8)")
    for c in range(4):
        if c == 1: a("s_waitcnt lgkmcnt(8)") if False else None
        a(f"s_waitcnt lgkmcnt({12 - 4*c})") if c > 0 else None
        for dt in range(2):
            r = 56 + 8*c + 4*dt
            cc = "0" if c == 0 else f"v[{88+4*dt}:{91+4*dt}]"
            a(f"v_mfma_f32_16x16x32_bf16 v[{88+4*dt}:{91+4*dt}], v[{r}:{r+3}], v[{40+4*c}:{43+4*c}], {cc}")
    a(f"""
    v_lshlrev_b32 v19, 7, v7
    v_lshl_add_u32 v19, v5, 4, v19
    s_lshl_b32 s10, s9, 9
    v_add3_u32 v19, v19, v2, s10
    s_mov_b32 exec_lo, {MASK4}
    s_mov_b32 exec_hi, {MASK4}
    ds_write_b128 v19, v[88:91] offset:{OS}
    ds_write_b128 v19, v[92:95] offset:{OS + 64}
    s_mov_b64 exec, -1
    """)
    lds_count(CNT_O)
    a(f"""
    v_lshl_add_u32 v20, v0, 3, v2
    s_cmp_lg_u32 s12, 7
    s_cbranch_scc1 L_W_onot
    """)
    def slot_sum(base):
        for w in range(8):
            a(f"ds_read_b64 v[{24+2*w}:{25+2*w}], v20 offset:{base + 512*w}")
        a("s_waitcnt lgkmcnt(0)")
        for w in range(1, 8):
            a(f"v_add_f32 v24, v24, v{24+2*w}")
            a(f"v_add_f32 v25, v25, v{25+2*w}")
        a("v_mov_b32 v26, s60"); a("v_mov_b32 v27, s61")
    slot_sum(OS)
    a(f"""
    v_lshlrev_b32 v21, 4, v4
    v_lshl_add_u32 v21, v5, 10, v21
    s_lshl_b32 s10, s6, 16
    s_lshr_b32 s11, s7, 2
    s_lshl_b32 s11, s11, 15
    s_add_u32 s10, s10, s11
    s_lshl_b32 s11, s4, 12
    s_add_u32 s10, s10, s11
    s_and_b32 s11, s7, 3
    s_lshl_b32 s11, s11, 8
    s_add_u32 s10, s10, s11
    s_add_u32 s10, s10, {OG}
    s_add_u32 s11, s10, {MIRROR}
    buffer_store_dwordx4 v[24:27], v21, s[44:47], s10 offen
    buffer_store_dwordx4 v[24:27], v21, s[44:47], s11 offen sc1
    L_W_onot:
    """)
    stamp()
    a("s_cmp_lt_u32 s5, 16")
    a("s_cbranch_scc1 L_W_qwg")
    a(f"""
    v_bfe_u32 v21, v0, 3, 1
    v_lshlrev_b32 v21, 15, v21
    v_lshl_add_u32 v21, v7, 16, v21
    v_bfe_u32 v22, v0, 2, 1
    v_lshl_add_u32 v21, v22, 7, v21
    v_lshl_add_u32 v21, v5, 5, v21
    s_lshl_b32 s10, s4, 12
    s_lshl_b32 s11, s9, 9
    s_add_u32 s10, s10, s11
    s_add_u32 s66, s10, {OG}
    s_lshl_b32 s10, s9, 12
    v_add_u32 v17, s10, v16
    """)
    lds_wait(FL_WOLAND, 1)
    for e in range(2):
        for ct in range(2):
            r = 56 + 8*e + 4*ct
            a(f"ds_read_b64_tr_b16 v[{r}:{r+1}], v17 offset:{WO_L + 2048*e + 32*ct}")
            a(f"ds_read_b64_tr_b16 v[{r+2}:{r+3}], v17 offset:{WO_L + 2048*e + 32*ct + 1024}")
    lds_wait(FL_OREADY, 1)
    poll([(24, 21, "s66", 0), (28, 21, "s66", 16), (32, 21, "s66", 256), (36, 21, "s66", 272)], sleep=4, dual=1)
    stamp()
    for r in (24, 25, 28, 29, 32, 33, 36, 37):
        a(f"v_add_f32_dpp v{r}, v{r}, v{r} row_ror:8 row_mask:0xf bank_mask:0xf")
    a(f"""
    v_cvt_pk_bf16_f32 v40, v24, v25
    v_cvt_pk_bf16_f32 v41, v28, v29
    v_cvt_pk_bf16_f32 v44, v32, v33
    v_cvt_pk_bf16_f32 v45, v36, v37
    v_mov_b32_dpp v42, v40 row_shl:4 row_mask:0xf bank_mask:0xf
    v_mov_b32_dpp v43, v41 row_shl:4 row_mask:0xf bank_mask:0xf
    v_mov_b32_dpp v46, v44 row_shl:4 row_mask:0xf bank_mask:0xf
    v_mov_b32_dpp v47, v45 row_shl:4 row_mask:0xf bank_mask:0xf
    s_waitcnt lgkmcnt(0)
    """)
    for e in range(2):
        for ct in range(2):
            r = 56 + 8*e + 4*ct
            cc = "0" if e == 0 else f"v[{88+4*ct}:{91+4*ct}]"
            a(f"v_mfma_f32_16x16x32_bf16 v[{88+4*ct}:{91+4*ct}], v[{r}:{r+3}], v[{40+4*e}:{43+4*e}], {cc}")
    a(f"""
    s_mov_b32 exec_lo, {MASK4}
    s_mov_b32 exec_hi, {MASK4}
    ds_write_b128 v19, v[88:91] offset:{AS}
    ds_write_b128 v19, v[92:95] offset:{AS + 64}
    s_mov_b64 exec, -1
    """)
    lds_count(CNT_A)
    a(f"""
    s_cmp_lg_u32 s12, 7
    s_cbranch_scc1 L_W_done
    """)
    slot_sum(AS)
    a(f"""
    v_lshlrev_b32 v21, 4, v4
    v_lshl_add_u32 v21, v5, 15, v21
    s_lshl_b32 s10, s4, 12
    s_sub_u32 s11, s5, 16
    s_lshl_b32 s11, s11, 8
    s_add_u32 s10, s10, s11
    s_add_u32 s10, s10, {AG}
    buffer_store_dwordx4 v[24:27], v21, s[44:47], s10 offen sc1
    s_branch L_W_done
    L_W_qwg:
    s_cmp_lg_u32 s4, 0
    s_cbranch_scc1 L_W_done
    s_cmp_ge_u32 s5, 4
    s_cbranch_scc1 L_W_done
    v_and_b32 v21, 31, v0
    v_lshlrev_b32 v22, 4, v21
    v_lshrrev_b32 v23, 5, v0
    v_lshl_add_u32 v22, v23, 14, v22
    s_lshl_b32 s10, s5, 15
    s_lshl_b32 s11, s9, 9
    s_add_u32 s10, s10, s11
    s_add_u32 s66, s10, {AG}
    s_add_u32 s67, s66, 4096
    s_add_u32 s68, s66, 8192
    s_add_u32 s69, s66, 12288
    """)
    poll([(24 + 4*i, 22, f"s{66+i}", 0) for i in range(4)], sleep=SB)
    stamp()
    a(f"""
    v_add_f32 v24, v24, v28
    v_add_f32 v25, v25, v29
    v_add_f32 v32, v32, v36
    v_add_f32 v33, v33, v37
    v_add_f32 v24, v24, v32
    v_add_f32 v25, v25, v33
    v_mov_b32 v26, v24
    v_mov_b32 v27, v25
    v_permlane32_swap_b32 v24, v26
    v_permlane32_swap_b32 v25, v27
    v_add_f32 v24, v24, v26
    v_add_f32 v25, v25, v27
    s_lshl_b32 s10, s9, 8
    v_lshl_add_u32 v21, v21, 3, v2
    v_add_u32 v21, s10, v21
    ds_write_b64 v21, v[24:25] offset:{ROW}
    v_mov_b32 v3, 1
    s_mov_b64 exec, 1
    ds_add_u32 v2, v3 offset:{CNT_ROW}
    s_mov_b64 exec, -1
    L_W_done:
    """)
    stamp()
    dump_stamps()
    a("L_end:")
    a("s_endpgm")
    a("L_code_end:")
    txt = a.text()
    out = []
    for l in txt.split("\n"):
        if l.rstrip().endswith(" sc1") and "buffer_store" in l: l = l.rstrip()[:-4] + (" " + stp if stp else "")
        elif l.rstrip().endswith(" sc1") and "buffer_load" in l: l = l.rstrip()[:-4] + (" " + ldp if ldp else "")
        out.append(l)
    return wrap("\n".join(out), 256, 640, LDS_TOTAL, 160, denorm=True)

def gelu_pairs(a, items, acc, st, sc1, vc0, vone):
    for (w, b, w2, t) in items: a(f"v_pk_mul_f32 v[{t}:{t+1}], v[{w}:{w+1}], {st}")
    for (w, b, w2, t) in items: a(f"v_cvt_pk_bf16_f32 v{t+2}, v{t}, v{t+1}")
    for (w, b, w2, t) in items:
        a(f"v_lshlrev_b32 v{t}, 16, v{t+2}"); a(f"v_and_b32 v{t+1}, 0xffff0000, v{t+2}")
    for (w, b, w2, t) in items: a(f"v_pk_add_f32 v[{t}:{t+1}], v[{t}:{t+1}], v[{b}:{b+1}]")
    for (w, b, w2, t) in items: a(f"v_cvt_pk_bf16_f32 v{t+2}, v{t}, v{t+1}")
    for (w, b, w2, t) in items:
        a(f"v_lshlrev_b32 v{t}, 16, v{t+2}"); a(f"v_and_b32 v{t+1}, 0xffff0000, v{t+2}")
    for (w, b, w2, t) in items: a(f"v_pk_mul_f32 v[{t+2}:{t+3}], v[{t}:{t+1}], v[{t}:{t+1}]")
    for (w, b, w2, t) in items: a(f"v_pk_fma_f32 v[{t+2}:{t+3}], v[{t+2}:{t+3}], {sc1}, v[{vc0}:{vc0+1}]")
    for (w, b, w2, t) in items: a(f"v_pk_mul_f32 v[{t+2}:{t+3}], v[{t+2}:{t+3}], v[{t}:{t+1}]")
    for (w, b, w2, t) in items:
        a(f"v_exp_f32 v{t+2}, v{t+2}"); a(f"v_exp_f32 v{t+3}, v{t+3}")
    for (w, b, w2, t) in items: a(f"v_pk_add_f32 v[{t+2}:{t+3}], v[{t+2}:{t+3}], v[{vone}:{vone+1}]")
    for (w, b, w2, t) in items:
        a(f"v_rcp_f32 v{t+2}, v{t+2}"); a(f"v_rcp_f32 v{t+3}, v{t+3}")
    for (w, b, w2, t) in items: a(f"v_pk_mul_f32 v[{t+2}:{t+3}], v[{t+2}:{t+3}], v[{t}:{t+1}]")
    for (w, b, w2, t) in items: a(f"v_cvt_pk_bf16_f32 v{t+4}, v{t+2}, v{t+3}")
    for (w, b, w2, t) in items: a(f"v_dot2_f32_bf16 v{acc}, v{t+4}, v{w2}, v{acc}")

if __name__ == "__main__":
    import argparse
    ap = argparse.ArgumentParser()
    ap.add_argument("-o", default="t/k1.s"); ap.add_argument("--dbg", action="store_true"); ap.add_argument("--pol", default="nt"); ap.add_argument("--nopf", action="store_true"); ap.add_argument("--dq", type=int, default=20); ap.add_argument("--dw", type=int, default=16); ap.add_argument("--slp", type=int, default=2); ap.add_argument("--e0", type=int, default=114); ap.add_argument("--pd", type=int, default=2); ap.add_argument("--sq", type=int, default=4); ap.add_argument("--ss", type=int, default=5); ap.add_argument("--sa", type=int, default=3); ap.add_argument("--sb", type=int, default=3); ap.add_argument("--abl", default=""); ap.add_argument("--stp", default="sc1"); ap.add_argument("--ldp", default="sc1"); ap.add_argument("--nowpoll", action="store_true"); ap.add_argument("--dwq", type=int, default=32)
    g = ap.parse_args()
    TAB_E0 = g.e0
    open(g.o, "w").write(gen(dbg=g.dbg, pol=g.pol, prefetch=not g.nopf, DQ=g.dq, DW=g.dw, slp=g.slp, PD=g.pd, DWQ=g.dwq, SQ=g.sq, SS=g.ss, SA=g.sa, SB=g.sb, abl=g.abl, stp=g.stp, ldp=g.ldp, nowpoll=g.nowpoll))
```

```python
import sys, struct
from asmgen import *

def f32bits(x): return struct.unpack("<I", struct.pack("<f", x))[0]

K_L = 0; V_L = 65536; WQ_L = 98304; WO_L = 0
MISC = 131072
XN = 0; QI = 4096; FL = 5120; ST = 5376; OS = 6144; AS = 10240; ROW = 14336; TAB = 16384
LDS_TOTAL = MISC + 24576
FL_QPROJ = FL + 0; FL_QREADY = FL + 4; FL_KLAND = FL + 8; FL_VLAND = FL + 12; FL_WOLAND = FL + 16
FL_STATS = FL + 20; CNT_QK = FL + 24; CNT_O = FL + 28; CNT_A = FL + 32; CNT_ROW = FL + 36; FL_WQLAND = FL + 40; CNT_ST = FL + 44; FL_OREADY = FL + 48; FL_WT = FL + 52
WT = 6144
STS = 5632
QG = 0x10000; STG = 0x20000; OG = 0x40000; AG = 0x80000; TG = 0xA0000; SG = 0x100000; DBGA = 0x600000
WS_BYTES = 0x800000
MIRROR = 0x200000
TAB_E0 = 114
LOG2E = 1.4426950408889634
SCALE = 128 ** -0.5
GC0 = -2.0 * 0.7978845608028654 * LOG2E
GC1 = GC0 * 0.044715
MASK4 = "0x000f000f"

def gen(dbg=False, pol="nt", prefetch=True, DQ=20, DW=16, slp=2, PD=2, DWQ=32, SQ=4, SS=5, SA=3, SB=3, abl="", stp="sc1", ldp="sc1", nowpoll=False, dbg2=False):
    a = A()
    POL = " " + pol if pol else ""
    nstamp = [0]
    def stamp():
        if dbg:
            i = nstamp[0]; nstamp[0] += 1
            assert i < 12
            a(f"s_memrealtime s[{70+2*i}:{71+2*i}]")
            a("s_waitcnt lgkmcnt(0)")
    def dump_stamps():
        if dbg:
            n = nstamp[0]
            a("s_mov_b64 exec, -1")
            a("s_waitcnt vmcnt(0) lgkmcnt(0)")
            for i in range(12):
                a(f"v_mov_b32 v{100+i}, " + (f"s{70+2*i}" if i < n else "0"))
            a(f"""
            s_mul_i32 s10, s2, 10
            s_add_u32 s10, s10, s3
            s_mul_i32 s10, s10, 64
            s_add_u32 s10, s10, {DBGA}
            v_mov_b32 v99, s10
            s_mov_b64 exec, 1
            buffer_store_dwordx4 v[100:103], v99, s[44:47], 0 offen
            buffer_store_dwordx4 v[104:107], v99, s[44:47], 0 offen offset:16
            buffer_store_dwordx4 v[108:111], v99, s[44:47], 0 offen offset:32
            """)
        nstamp[0] = 0
    def srd(d, ptr, nbytes):
        a(f"""
        s_mov_b32 s{d}, s{ptr}
        s_and_b32 s{d+1}, s{ptr+1}, 0xffff
        s_mov_b32 s{d+2}, {nbytes}
        s_mov_b32 s{d+3}, 0x20000
        """)
    def lds_wait(off, val, vt=3):
        L = a.label("Lw"); D = a.label("Lwd")
        a(f"""
        s_mov_b32 s13, 0x40000
        {L}:
        ds_read_b32 v{vt}, v2 offset:{off}
        s_waitcnt lgkmcnt(0)
        v_readfirstlane_b32 s12, v{vt}
        s_cmp_ge_u32 s12, {val}
        s_cbranch_scc1 {D}
        s_sub_u32 s13, s13, 1
        s_cbranch_scc1 {D}
        s_sleep 1
        s_branch {L}
        {D}:
        """)
    def lds_set(off, val, vt=3):
        a(f"""
        v_mov_b32 v{vt}, {val}
        ds_write_b32 v2, v{vt} offset:{off}
        """)
    def lds_count(off, vt=3):
        a(f"""
        v_mov_b32 v{vt}, 1
        s_mov_b64 exec, 1
        ds_add_rtn_u32 v{vt}, v2, v{vt} offset:{off}
        s_mov_b64 exec, -1
        s_waitcnt lgkmcnt(0)
        v_readfirstlane_b32 s12, v{vt}
        """)
    def dual_sel(mask):
        a(f"""
        s_and_b32 s12, s13, {mask}
        s_cmp_eq_u32 s12, 0
        s_cselect_b32 s67, {MIRROR}, 0
        s_add_u32 s67, s67, s66
        """)
    def poll(loads, pbase=None, depth=1, sleep=None, dual=None):
        sleep = slp if sleep is None else sleep
        a("s_mov_b32 s13, 0x3fff")
        L = a.label("Lp"); D = a.label("Lpd")
        a(f"{L}:")
        if dual: dual_sel(dual)
        for (d, va, so, imm) in loads:
            a(f"buffer_load_dwordx4 v[{d}:{d+3}], v{va}, s[44:47], {'s67' if dual else so} offen offset:{imm} sc1")
        a("s_waitcnt vmcnt(0)")
        for i, (d, va, so, imm) in enumerate(loads):
            if i == 0:
                a(f"v_cmp_ne_u64 s[14:15], s[60:61], v[{d+2}:{d+3}]")
            else:
                a(f"v_cmp_ne_u64 vcc, s[60:61], v[{d+2}:{d+3}]")
                a("s_or_b64 s[14:15], s[14:15], vcc")
        a(f"""
        s_cmp_eq_u64 s[14:15], 0
        s_cbranch_scc1 {D}
        s_sub_u32 s13, s13, 1
        s_cbranch_scc1 {D}
        s_sleep {sleep}
        s_branch {L}
        {D}:
        """)
    def pub2(vd, va, so, imm=0):
        a(f"buffer_store_dwordx4 v[{vd}:{vd+3}], v{va}, s[44:47], {so} offen offset:{imm}")
    def pub2m(vd, va, so, imm=0):
        a(f"buffer_store_dwordx4 v[{vd}:{vd+3}], v{va}, s[44:47], {so} offen offset:{imm} sc1")
    def poll_trig(loads, flag, nspin=6):
        L = a.label("Lp"); D = a.label("Lpd"); S = a.label("Lps")
        a("s_mov_b32 s13, 0x3fff")
        a(f"{L}:")
        dual_sel(3)
        for (d, va, so, imm) in loads:
            a(f"buffer_load_dwordx4 v[{d}:{d+3}], v{va}, s[44:47], s67 offen offset:{imm} sc1")
        a("s_waitcnt vmcnt(0)")
        for i, (d, va, so, imm) in enumerate(loads):
            if i == 0:
                a(f"v_cmp_ne_u64 s[14:15], s[60:61], v[{d+2}:{d+3}]")
            else:
                a(f"v_cmp_ne_u64 vcc, s[60:61], v[{d+2}:{d+3}]")
                a("s_or_b64 s[14:15], s[14:15], vcc")
        a(f"""
        s_cmp_eq_u64 s[14:15], 0
        s_cbranch_scc1 {D}
        s_sub_u32 s13, s13, 1
        s_cbranch_scc1 {D}
        s_mov_b32 s14, {nspin}
        {S}:
        s_sleep 1
        ds_read_b32 v3, v2 offset:{flag}
        s_waitcnt lgkmcnt(0)
        v_readfirstlane_b32 s12, v3
        s_cmp_lg_u32 s12, 0
        s_cbranch_scc1 {L}
        s_sub_u32 s14, s14, 1
        s_cbranch_scc0 {S}
        s_branch {L}
        {D}:
        """)
    def allreduce(regs, op, tmps):
        for m in ("quad_perm:[1,0,3,2]", "quad_perm:[2,3,0,1]", "row_half_mirror", "row_mirror"):
            for r in regs:
                a(f"v_{op}_f32_dpp v{r}, v{r}, v{r} {m} row_mask:0xf bank_mask:0xf")
        xrow(regs, op, tmps)
    def xrow(regs, op, tmps):
        for sw in ("v_permlane16_swap_b32", "v_permlane32_swap_b32"):
            for r, t in zip(regs, tmps): a(f"v_mov_b32 v{t}, v{r}")
            for r, t in zip(regs, tmps): a(f"{sw} v{r}, v{t}")
            for r, t in zip(regs, tmps): a(f"v_{op}_f32 v{r}, v{r}, v{t}")
    def rbf(dst, src):
        a(f"v_cvt_pk_bf16_f32 v{dst}, v{src}, v{src}")
        a(f"v_lshlrev_b32 v{dst}, 16, v{dst}")
    def unpack(dlo, dhi, src):
        a(f"v_lshlrev_b32 v{dlo}, 16, v{src}")
        a(f"v_and_b32 v{dhi}, 0xffff0000, v{src}")
    def layernorm(rows, tmpb):
        n = len(rows)
        S = [tmpb + i for i in range(n)]; T = [tmpb + n + i for i in range(n)]; Mb = [tmpb + 2*n + i for i in range(n)]
        D = [tmpb + 3*n + 8*i for i in range(n)]
        for x, s, t in zip(rows, S, T):
            a(f"v_add_f32 v{s}, v{x}, v{x+1}"); a(f"v_add_f32 v{t}, v{x+2}, v{x+3}")
        for x, s, t in zip(rows, S, T):
            a(f"v_add_f32 v{s}, v{s}, v{x+4}"); a(f"v_add_f32 v{t}, v{t}, v{x+5}")
        for x, s, t in zip(rows, S, T):
            a(f"v_add_f32 v{s}, v{s}, v{x+6}"); a(f"v_add_f32 v{t}, v{t}, v{x+7}")
        for s, t in zip(S, T): a(f"v_add_f32 v{s}, v{s}, v{t}")
        allreduce(S, "add", T)
        for s in S: a(f"v_mul_f32 v{s}, {f32bits(1/512):#x}, v{s}")
        for x, s, d in zip(rows, S, D):
            for i in range(8): a(f"v_sub_f32 v{d+i}, v{x+i}, v{s}")
        for s, m in zip(S, Mb): rbf(m, s)
        for s, t, d in zip(S, T, D):
            a(f"v_mul_f32 v{s}, v{d}, v{d}"); a(f"v_mul_f32 v{t}, v{d+1}, v{d+1}")
        for i in range(2, 8, 2):
            for s, t, d in zip(S, T, D):
                a(f"v_fmac_f32 v{s}, v{d+i}, v{d+i}"); a(f"v_fmac_f32 v{t}, v{d+i+1}, v{d+i+1}")
        for s, t in zip(S, T): a(f"v_add_f32 v{s}, v{s}, v{t}")
        allreduce(S, "add", T)
        for s in S: a(f"v_mul_f32 v{s}, {f32bits(1/512):#x}, v{s}")
        for s in S: rbf(s, s)
        for s in S: a(f"v_add_f32 v{s}, {f32bits(1e-5):#x}, v{s}")
        for s in S: rbf(s, s)
        for s in S: a(f"v_sqrt_f32 v{s}, v{s}")
        for s in S: rbf(s, s)
        for s in S: a(f"v_rcp_f32 v{s}, v{s}")
        for x, m, d in zip(rows, Mb, D):
            for i in range(8): a(f"v_sub_f32 v{d+i}, v{x+i}, v{m}")
        for x, d in zip(rows, D):
            for i in range(0, 8, 2): a(f"v_cvt_pk_bf16_f32 v{x+i}, v{d+i}, v{d+i+1}")
        for x, d in zip(rows, D):
            for i in range(0, 8, 2): unpack(d+i, d+i+1, x+i)
        for s, d in zip(S, D):
            for i in range(8): a(f"v_mul_f32 v{d+i}, v{d+i}, v{s}")
        return D

    a(f"""
    s_cmp_ge_u32 s2, 256
    s_cbranch_scc1 L_end
    s_load_dwordx16 s[16:31], s[0:1], 0
    s_load_dwordx8 s[32:39], s[0:1], 64
    s_load_dwordx2 s[40:41], s[0:1], 96
    v_lshrrev_b32 v1, 6, v0
    v_and_b32 v0, 63, v0
    v_readfirstlane_b32 s3, v1
    v_mov_b32 v2, {MISC}
    v_lshl_add_u32 v3, v0, 2, v2
    v_mov_b32 v4, 0
    ds_write_b32 v3, v4 offset:{FL}
    s_and_b32 s4, s2, 7
    s_lshr_b32 s5, s2, 3
    s_and_b32 s6, s5, 3
    s_lshr_b32 s7, s5, 2
    s_lshl_b32 s8, s6, 3
    s_add_u32 s8, s8, s4
    s_waitcnt lgkmcnt(0)
    s_barrier
    s_load_dwordx2 s[62:63], s[40:41], 0
    """)
    srd(44, 40, WS_BYTES)
    a("""
    s_cmp_eq_u32 s3, 0
    s_cbranch_scc1 L_roleL
    s_cmp_eq_u32 s3, 1
    s_cbranch_scc1 L_roleQ
    s_branch L_roleW
    """)
    def get_tag():
        a("""
        s_waitcnt lgkmcnt(0)
        s_add_u32 s60, s62, 0x7f4a7c15
        s_addc_u32 s61, s63, 0x9e3779b9
        """)

    a("L_roleL:")
    a("s_setprio 3")
    stamp()
    srd(48, 18, 0x4000000); srd(52, 20, 0x4000000); srd(56, 24, 0x400000); srd(64, 22, 0x400000)
    a("""
    v_lshrrev_b32 v4, 4, v0
    v_and_b32 v5, 15, v0
    """)
    for n in range(4):
        a(f"""
        v_add_u32 v6, {4*n}, v4
        v_xor_b32 v7, v6, v5
        v_lshlrev_b32 v7, 4, v7
        v_lshl_add_u32 v{20+n}, v4, 8, v7
        """)
    a(f"""
    v_lshrrev_b32 v4, 2, v0
    v_and_b32 v5, 3, v0
    v_lshlrev_b32 v5, 4, v5
    v_lshl_add_u32 v24, v4, 8, v5
    v_lshl_add_u32 v25, v4, 10, v5
    v_lshl_add_u32 v26, v4, 13, v5
    s_lshl_b32 s9, s8, 21
    s_add_u32 s9, s9, {6144*256}
    s_lshl_b32 s10, s7, 16
    s_add_u32 s96, s9, s10
    s_lshr_b32 s10, s7, 2
    s_lshl_b32 s10, s10, 18
    s_add_u32 s97, s9, s10
    s_and_b32 s10, s7, 3
    s_lshl_b32 s10, s10, 6
    s_add_u32 s97, s97, s10
    s_lshl_b32 s98, s4, 19
    s_sub_u32 s10, s5, 16
    s_lshl_b32 s10, s10, 6
    s_add_u32 s98, s98, s10
    s_lshl_b32 s99, s4, 10
    s_lshl_b32 s10, s5, 6
    s_add_u32 s99, s99, s10
    v_mov_b32 v27, 0
    s_lshl_b32 s11, s4, 19
    buffer_load_dword v28, v27, s[52:55], s97 offen
    buffer_load_dword v29, v27, s[56:59], s11 offen
    s_cmp_ge_u32 s5, 16
    s_cbranch_scc1 L_L_wo
    """)
    def stream(segs, D):
        items = []
        for s in segs:
            for n in range(s["n"]): items.append((s, n))
        ev = {}
        base = 0
        for s in segs:
            for k, f in s.get("events", {}).items(): ev.setdefault(base + k, []).append(f)
            base += s["n"]
        N = len(items)
        landed = -1
        def fire(upto):
            nonlocal landed
            for i in range(landed + 1, upto + 1):
                for f in ev.get(i, []): f()
            landed = max(landed, upto)
        for gi, (s, n) in enumerate(items):
            if n in s.get("pre", {}): s["pre"][n]()
            if n == 0:
                a(f"s_mov_b32 s64x, {s['soff']}".replace("s64x", "s94")); a(f"s_mov_b32 s95, {s['lds']}")
            Dc = s.get("D", D)
            if gi >= Dc and gi % 2 == 0:
                a(f"s_waitcnt vmcnt({Dc - 2})")
                fire(gi - 1 - (Dc - 2))
            if n % 4 == 0:
                a("s_mov_b32 m0, s95"); a("s_add_u32 s95, s95, 4096")
            vreg = s["v"] + (n & 3 if s["kind"] == "K" else 0)
            a(f"buffer_load_dwordx4 v{vreg}, s[{s['srd']}:{s['srd']+3}], s94 offen offset:{(n&3)*1024}{POL} lds")
            step = s["step"]
            inc = step - 1024 if (n & 3) != 3 else step - 1024 + 4096
            if inc: a(f"s_add_u32 s94, s94, {inc}")
        for i in sorted(ev):
            if i > landed:
                a(f"s_waitcnt vmcnt({N - 1 - i})")
                fire(i)
    def setf(off, val, st=False):
        def f():
            lds_set(off, val)
            if st: stamp()
        return f
    segK = lambda: dict(kind="K", n=64, v=20, srd=48, soff="s96", lds=K_L, step=1024, events={63: setf(FL_KLAND, 1, True)})
    segV = lambda pre: dict(kind="V", n=64, v=24, srd=52, soff="s97", lds=V_L, step=4096, pre=pre,
                            events={8*w + 7: setf(FL_VLAND, w + 1, w == 7) for w in range(8)})
    stream([dict(kind="WQ", n=32, v=26, srd=64, soff="s99", lds=WQ_L, step=16*8192, D=DWQ, events={8*c + 7: setf(FL_WQLAND, c + 1) for c in range(4)}),
            segK(), segV({32: lambda: (None if abl else lds_wait(FL_QPROJ, 1))})], DQ)
    if dbg: a("s_memrealtime s[76:77]")
    a("s_branch L_L_done")
    a("L_L_wo:")
    nstamp[0] = 1
    stream([segK(), segV({}),
            dict(kind="WO", n=32, v=25, srd=56, soff="s98", lds=WO_L, step=16384, pre={0: lambda: (None if abl else lds_wait(CNT_QK, 8))}, events={31: setf(FL_WOLAND, 1, True)})], DW)
    a("L_L_done:")
    dump_stamps()
    a("s_endpgm")

    a("L_roleQ:")
    a("s_setprio 2")
    stamp()
    if "Q0" in abl:
        a("s_branch L_Q_done")
    srd(48, 16, 4096); srd(56, 36, 4096)
    a(f"""
    v_lshlrev_b32 v4, 4, v0
    s_lshl_b32 s10, s6, 10
    """)
    for b in range(4):
        a(f"buffer_load_dwordx4 v[{8+4*b}:{11+4*b}], v4, s[48:51], 0 offen offset:{1024*b}")
    a(f"""
    buffer_load_dwordx4 v[112:115], v4, s[48:51], s10 offen
    buffer_load_dwordx4 v[104:107], v4, s[56:59], s10 offen
    """)
    if not prefetch: a("buffer_load_dwordx4 v[108:111], v4, s[56:59], s10 offen")
    if prefetch:
        a(f"""
        s_getpc_b64 s[10:11]
        L_pc_here:
        s_sub_u32 s10, s10, L_pc_here - {NAME}_kernel
        s_subb_u32 s11, s11, 0
        s_lshl_b32 s12, s5, 10
        v_add_u32 v7, s12, v4
        v_min_u32 v7, L_code_end - {NAME}_kernel - 16, v7
        global_load_dwordx4 v[108:111], v7, s[10:11]
        """)
    a(f"""
    s_cmp_ge_u32 s5, 16
    s_cbranch_scc1 L_Q_gather
    s_waitcnt vmcnt(2)
    """)
    X = [24 + 8*b for b in range(4)]
    for b in range(4):
        for i in range(4): unpack(X[b] + 2*i, X[b] + 2*i + 1, 8 + 4*b + i)
    D = layernorm(X, 56)
    for b in range(4):
        for i in range(4): a(f"v_cvt_pk_bf16_f32 v{8+4*b+i}, v{D[b]+2*i}, v{D[b]+2*i+1}")
    a("v_add_u32 v5, v4, v2")
    for b in range(4):
        a(f"ds_write_b128 v5, v[{8+4*b}:{11+4*b}] offset:{XN + 1024*b}")
    get_tag()
    stamp()
    a(f"""
    v_lshrrev_b32 v5, 2, v0
    v_and_b32 v6, 3, v0
    v_lshlrev_b32 v7, 3, v6
    v_lshl_add_u32 v5, v5, 6, v7
    v_add_u32 v5, {WQ_L}, v5
    v_lshrrev_b32 v7, 4, v0
    v_lshlrev_b32 v7, 3, v7
    v_lshl_add_u32 v6, v6, 10, v7
    v_add_u32 v6, v6, v2
    """)
    for i in range(16):
        a(f"ds_read2_b64 v[{8+4*i}:{11+4*i}], v6 offset0:{8*i} offset1:{8*i+4}")
        if i == 7: a("s_waitcnt lgkmcnt(0)")
    for c in range(4):
        lds_wait(FL_WQLAND, c + 1)
        if c == 3: stamp()
        for ii in range(4):
            i = 4*c + ii
            for ct in range(2):
                r = 120 + 8*ii + 4*ct
                a(f"ds_read_b64_tr_b16 v[{r}:{r+1}], v5 offset:{2048*i + 32*ct}")
                a(f"ds_read_b64_tr_b16 v[{r+2}:{r+3}], v5 offset:{2048*i + 32*ct + 1024}")
            if ii == 2: a("s_waitcnt lgkmcnt(8)")
        for ii in range(4):
            i = 4*c + ii
            if ii: a(f"s_waitcnt lgkmcnt({12 - 4*ii})")
            for ct in range(2):
                r = 120 + 8*ii + 4*ct
                cc = "0" if i == 0 else f"v[{72+4*ct}:{75+4*ct}]"
                a(f"v_mfma_f32_16x16x32_bf16 v[{72+4*ct}:{75+4*ct}], v[{r}:{r+3}], v[{8+4*i}:{11+4*i}], {cc}")
    lds_set(FL_QPROJ, 1)
    a(f"""
    v_and_b32 v6, 3, v0
    v_lshrrev_b32 v7, 4, v0
    v_lshlrev_b32 v7, 4, v7
    v_lshl_add_u32 v6, v6, 14, v7
    s_lshl_b32 s10, s4, 11
    s_lshl_b32 s11, s5, 7
    s_add_u32 s10, s10, s11
    s_add_u32 s10, s10, {QG}
    v_mov_b32 v82, s60
    v_mov_b32 v83, s61
    v_mov_b32 v86, s60
    v_mov_b32 v87, s61
    v_cvt_pk_bf16_f32 v80, v72, v73
    v_cvt_pk_bf16_f32 v81, v74, v75
    v_cvt_pk_bf16_f32 v84, v76, v77
    v_cvt_pk_bf16_f32 v85, v78, v79
    s_mov_b32 exec_lo, {MASK4}
    s_mov_b32 exec_hi, {MASK4}
    s_add_u32 s11, s10, {MIRROR}
    buffer_store_dwordx4 v[80:83], v6, s[44:47], s10 offen
    buffer_store_dwordx4 v[84:87], v6, s[44:47], s10 offen offset:64
    buffer_store_dwordx4 v[80:83], v6, s[44:47], s11 offen sc1
    buffer_store_dwordx4 v[84:87], v6, s[44:47], s11 offen offset:64 sc1
    s_mov_b64 exec, -1
    """)
    stamp()
    a("s_branch L_Q_gather2")
    a("L_Q_gather:")
    get_tag()
    if dbg:
        a("s_memrealtime s[72:73]"); a("s_memrealtime s[74:75]"); a("s_memrealtime s[76:77]"); a("s_waitcnt lgkmcnt(0)")
    a("L_Q_gather2:")
    if "Q1" in abl: a("s_branch L_Q_done")
    a(f"""
    s_lshl_b32 s10, s6, 14
    s_lshl_b32 s11, s4, 11
    s_add_u32 s10, s10, s11
    s_add_u32 s66, s10, {QG}
    """)
    poll([(8, 4, "s66", 0), (12, 4, "s66", 1024)], sleep=SQ, dual=7)
    a(f"""
    v_lshl_add_u32 v5, v0, 3, v2
    ds_write_b64 v5, v[8:9] offset:{QI}
    ds_write_b64 v5, v[12:13] offset:{QI + 512}
    """)
    lds_set(FL_QREADY, 1)
    stamp()
    a(f"""
    s_lshl_b32 s10, s8, 12
    s_add_u32 s66, s10, {STG}
    """)
    poll([(8 + 4*i, 4, "s66", 1024*i) for i in range(4)], sleep=SS, dual=7)
    a(f"""
    v_max_f32 v24, v8, v12
    v_max3_f32 v24, v24, v16, v20
    v_max_f32_dpp v24, v24, v24 row_ror:4 row_mask:0xf bank_mask:0xf
    v_max_f32_dpp v24, v24, v24 row_ror:8 row_mask:0xf bank_mask:0xf
    """)
    xrow([24], "max", [25])
    a(f"s_mov_b32 s10, {f32bits(LOG2E):#x}")
    for i in range(4):
        a(f"v_sub_f32 v{26+i}, v{8+4*i}, v24")
    for i in range(4):
        a(f"v_mul_f32 v{26+i}, s10, v{26+i}")
    for i in range(4):
        a(f"v_exp_f32 v{26+i}, v{26+i}")
    a(f"""
    v_mul_f32 v30, v26, v9
    v_fmac_f32 v30, v27, v13
    v_fmac_f32 v30, v28, v17
    v_fmac_f32 v30, v29, v21
    v_add_f32_dpp v30, v30, v30 row_ror:4 row_mask:0xf bank_mask:0xf
    v_add_f32_dpp v30, v30, v30 row_ror:8 row_mask:0xf bank_mask:0xf
    """)
    xrow([30], "add", [25])
    a(f"""
    v_rcp_f32 v25, v30
    v_fma_f32 v31, -v30, v25, 1.0
    v_fmac_f32 v25, v31, v25
    s_mov_b64 exec, 15
    ds_write_b64 v5, v[24:25] offset:{ST}
    s_mov_b64 exec, -1
    """)
    lds_set(FL_STATS, 1)
    stamp()
    a(f"""
    s_cmp_lt_u32 s5, 16
    s_cbranch_scc1 L_Q_notwo
    v_and_b32 v6, 3, v0
    v_lshlrev_b32 v6, 8, v6
    v_bfe_u32 v7, v0, 2, 3
    v_lshl_add_u32 v6, v7, 15, v6
    s_lshl_b32 s10, s4, 12
    s_add_u32 s66, s10, {OG + 3*1024 + 15*16}
    s_mov_b32 exec_hi, 0
    """)
    poll([(8, 6, "s66", 0)], sleep=SA, dual=7)
    a("s_mov_b64 exec, -1")
    lds_set(FL_OREADY, 1)
    a("s_branch L_Q_done")
    a("L_Q_notwo:")
    a(f"""
    s_cmp_lg_u32 s4, 0
    s_cbranch_scc1 L_Q_done
    s_cmp_ge_u32 s5, 4
    s_cbranch_scc1 L_Q_done
    v_lshl_add_u32 v5, v0, 2, v2
    """)
    for bt in range(4):
        a(f"s_mov_b32 s66, {TG + bt * 8192}")
        a(f"s_mov_b32 s67, {TG + bt * 8192 + 4096}")
        poll([(8 + 4*i, 4, "s66" if i < 4 else "s67", 1024*(i & 3)) for i in range(8)])
        for i in range(8):
            a(f"ds_write_b32 v5, v{8+4*i} offset:{TAB + (bt * 8 + i) * 256}")
    stamp()
    FW1 = 116; FB1 = 68; FW2 = 144
    srd(64, 28, 3584); srd(48, 30, 3584); srd(52, 32, 3584)
    a("v_lshlrev_b32 v6, 3, v0")
    for i in range(7):
        a(f"buffer_load_dwordx2 v[{8+2*i}:{9+2*i}], v6, s[64:67], 0 offen offset:{512*i}")
        a(f"buffer_load_dwordx2 v[{22+2*i}:{23+2*i}], v6, s[48:51], 0 offen offset:{512*i}")
        a(f"buffer_load_dwordx2 v[{FW2+2*i}:{FW2+2*i+1}], v6, s[52:55], 0 offen offset:{512*i}")
    srd(64, 34, 2)
    a("v_mov_b32 v7, 0")
    a("buffer_load_ushort v158, v7, s[64:67], 0 offen")
    a("s_waitcnt vmcnt(0)")
    for i in range(14):
        unpack(FW1 + 2*i, FW1 + 2*i + 1, 8 + i)
        unpack(FB1 + 2*i, FB1 + 2*i + 1, 22 + i)
    a("v_lshlrev_b32 v158, 16, v158")
    for i in range(4): unpack(24 + 2*i, 25 + 2*i, 112 + i)
    lds_wait(CNT_ROW, 8)
    stamp()
    a(f"""
    v_lshl_add_u32 v5, v0, 5, v2
    ds_read_b128 v[8:11], v5 offset:{ROW}
    ds_read_b128 v[12:15], v5 offset:{ROW + 16}
    s_waitcnt lgkmcnt(0)
    """)
    for i in range(4): a(f"v_cvt_pk_bf16_f32 v{16+i}, v{8+2*i}, v{9+2*i}")
    for i in range(4): unpack(8 + 2*i, 9 + 2*i, 16 + i)
    for i in range(8): a(f"v_add_f32 v{8+i}, v{24+i}, v{8+i}")
    for i in range(4): a(f"v_cvt_pk_bf16_f32 v{16+i}, v{8+2*i}, v{9+2*i}")
    for i in range(4): unpack(32 + 2*i, 33 + 2*i, 16 + i)
    for i in range(8): a(f"v_mov_b32 v{24+i}, v{32+i}")
    D = layernorm([24], 56)[0]
    for i in range(4): a(f"v_cvt_pk_bf16_f32 v{16+i}, v{D+2*i}, v{D+2*i+1}")
    for i in range(4): unpack(24 + 2*i, 25 + 2*i, 16 + i)
    D = layernorm([24], 56)[0]
    for i in range(4): a(f"v_cvt_pk_bf16_f32 v{16+i}, v{D+2*i}, v{D+2*i+1}")
    for i in range(4):
        a(f"v_and_b32 v{24+2*i}, 0xffff, v{16+i}")
        a(f"v_lshrrev_b32 v{25+2*i}, 16, v{16+i}")
    a("s_movk_i32 s10, 0x800")
    a("s_mov_b64 s[14:15], 0")
    for i in range(8):
        a(f"""
        v_and_b32 v{40+i}, 0x7fff, v{24+i}
        v_subrev_u32 v{40+i}, {TAB_E0 << 7}, v{40+i}
        v_cmp_le_u32 vcc, s10, v{40+i}
        v_and_b32 v{40+i}, 0x7ff, v{40+i}
        v_lshrrev_b32 v{48+i}, 15, v{24+i}
        v_lshl_or_b32 v{40+i}, v{48+i}, 11, v{40+i}
        s_or_b64 s[14:15], s[14:15], vcc
        v_lshl_add_u32 v{40+i}, v{40+i}, 1, v2
        ds_read_u16 v{48+i}, v{40+i} offset:{TAB}
        """)
    a(f"""
    s_waitcnt lgkmcnt(0)
    s_cmp_eq_u64 s[14:15], 0
    s_cbranch_scc1 L_Q_nofb
    """)
    a(f"""
    v_mov_b32 v42, {f32bits(GC0):#x}
    v_mov_b32 v43, {f32bits(GC0):#x}
    v_mov_b32 v44, 1.0
    v_mov_b32 v45, 1.0
    s_mov_b32 s92, {f32bits(GC1):#x}
    s_mov_b32 s93, {f32bits(GC1):#x}
    """)
    for i in range(8):
        Lf = a.label("Lfb"); Ld = a.label("Lfbd")
        a(f"""
        v_and_b32 v46, 0x7fff, v{24+i}
        v_subrev_u32 v46, {TAB_E0 << 7}, v46
        v_cmp_le_u32 s[94:95], s10, v46
        {Lf}:
        s_cmp_eq_u64 s[94:95], 0
        s_cbranch_scc1 {Ld}
        s_ff1_i32_b64 s96, s[94:95]
        s_bitset0_b64 s[94:95], s96
        s_mov_b32 m0, s96
        s_nop 1
        v_readlane_b32 s68, v{24+i}, m0
        s_call_b64 s[98:99], L_eval
        s_nop 3
        v_writelane_b32 v{48+i}, s68, m0
        s_branch {Lf}
        {Ld}:
        """)
    a("s_branch L_Q_nofb")
    a(f"""
    L_eval:
    s_nop 3
    s_lshl_b32 s68, s68, 16
    s_mov_b32 s69, s68
    v_mov_b32 v40, 0
    """)
    for p in range(0, 14, 2):
        gelu_pairs(a, [(FW1 + 2*p, FB1 + 2*p, FW2 + p, 8), (FW1 + 2*p + 2, FB1 + 2*p + 2, FW2 + p + 1, 16)], 40, "s[68:69]", "s[92:93]", 42, 44)
    allreduce([40], "add", [41])
    rbf(40, 40)
    a(f"""
    v_add_f32 v40, v40, v158
    v_cvt_pk_bf16_f32 v40, v40, v40
    v_and_b32 v40, 0xffff, v40
    v_readfirstlane_b32 s68, v40
    s_setpc_b64 s[98:99]
    """)
    a("L_Q_nofb:")
    for i in range(8):
        a(f"v_lshlrev_b32 v{48+i}, 16, v{48+i}")
        a(f"v_add_f32 v{48+i}, v{32+i}, v{48+i}")
    for i in range(4): a(f"v_cvt_pk_bf16_f32 v{16+i}, v{48+2*i}, v{49+2*i}")
    a(f"""
    s_lshl_b32 s10, s5, 10
    buffer_store_dwordx4 v[16:19], v4, s[56:59], s10 offen
    s_cmp_lg_u32 s5, 0
    s_cbranch_scc1 L_Q_done
    v_mov_b32 v8, s60
    v_mov_b32 v9, s61
    v_mov_b32 v10, 0
    s_mov_b64 exec, 1
    buffer_store_dwordx2 v[8:9], v10, s[44:47], 0 offen
    s_mov_b64 exec, -1
    """)
    a("L_Q_done:")
    stamp()
    if dbg2:
        srd(48, 38, 256)
        a("s_cmp_lg_u32 s2, 0")
        a("s_cbranch_scc1 L_Q_nodbg")
        for i in range(9):
            a(f"s_sub_u32 s10, s{70+2*i}, s70")
            a(f"v_mov_b32 v{100+i}, s10")
        a("""
        v_mov_b32 v99, 0
        s_mov_b64 exec, 1
        buffer_store_dwordx4 v[100:103], v99, s[48:51], 0 offen
        buffer_store_dwordx4 v[104:107], v99, s[48:51], 0 offen offset:16
        buffer_store_dword v108, v99, s[48:51], 0 offen offset:32
        s_mov_b64 exec, -1
        L_Q_nodbg:
        """)
    dump_stamps()
    a("s_endpgm")

    a("L_roleW:")
    stamp()
    if "W0" in abl:
        a("s_branch L_W_done")
    a("s_sub_u32 s9, s3, 2")
    srd(48, 28, 3584); srd(52, 30, 3584); srd(56, 32, 3584); srd(64, 34, 2)
    W1 = 8; B1 = 36; W2 = 64; TP = 80
    a(f"""
    v_lshlrev_b32 v4, 4, v0
    v_mov_b32 v5, 0
    buffer_load_ushort v6, v5, s[64:67], 0 offen
    s_cmp_lg_u32 s9, 0
    s_cbranch_scc1 L_W_wwait
    """)
    for k, sr in enumerate((48, 52, 56)):
        a(f"s_mov_b32 m0, {MISC + WT + 4096*k}")
        for i in range(4):
            a(f"buffer_load_dwordx4 v4, s[{sr}:{sr+3}], 0 offen offset:{1024*i} lds")
    a("s_waitcnt vmcnt(0)")
    lds_set(FL_WT, 1)
    a("L_W_wwait:")
    lds_wait(FL_WT, 1)
    a("v_lshl_add_u32 v4, v0, 3, v2")
    for i in range(7):
        a(f"ds_read_b64 v[{TP+2*i}:{TP+2*i+1}], v4 offset:{WT + 512*i}")
        a(f"ds_read_b64 v[{TP+14+2*i}:{TP+15+2*i}], v4 offset:{WT + 4096 + 512*i}")
    a("s_waitcnt lgkmcnt(0)")
    for i in range(7):
        a(f"ds_read_b64 v[{W2+2*i}:{W2+2*i+1}], v4 offset:{WT + 8192 + 512*i}")
    a("s_waitcnt vmcnt(0)")
    for i in range(14):
        unpack(W1 + 2*i, W1 + 2*i + 1, TP + i)
        unpack(B1 + 2*i, B1 + 2*i + 1, TP + 14 + i)
    a(f"""
    v_lshlrev_b32 v6, 16, v6
    v_mov_b32 v80, {f32bits(GC0):#x}
    v_mov_b32 v81, {f32bits(GC0):#x}
    v_mov_b32 v82, 1.0
    v_mov_b32 v83, 1.0
    s_mov_b32 s92, {f32bits(GC1):#x}
    s_mov_b32 s93, {f32bits(GC1):#x}
    """)
    get_tag()
    for e in range(2):
        a(f"""
        s_lshl_b32 s10, s2, 4
        s_lshl_b32 s11, s9, 1
        s_add_u32 s10, s10, s11
        s_add_u32 s10, s10, {e}
        s_lshr_b32 s11, s10, 11
        s_and_b32 s10, s10, 0x7ff
        s_add_u32 s10, s10, {TAB_E0 << 7}
        s_lshl_b32 s10, s10, 16
        s_lshl_b32 s11, s11, 31
        s_or_b32 s68, s10, s11
        s_mov_b32 s69, s68
        v_mov_b32 v{84+e}, 0
        """)
        for p in range(0, 14, 2):
            gelu_pairs(a, [(W1 + 2*p, B1 + 2*p, W2 + p, 88), (W1 + 2*p + 2, B1 + 2*p + 2, W2 + p + 1, 96)], 84 + e, "s[68:69]", "s[92:93]", 80, 82)
    allreduce([84, 85], "add", [86, 87])
    rbf(84, 84); rbf(85, 85)
    a(f"""
    v_add_f32 v84, v84, v6
    v_add_f32 v85, v85, v6
    v_cvt_pk_bf16_f32 v88, v84, v85
    v_mov_b32 v89, 0
    v_mov_b32 v90, s60
    v_mov_b32 v91, s61
    s_lshl_b32 s10, s2, 3
    s_add_u32 s10, s10, s9
    s_lshl_b32 s10, s10, 4
    s_add_u32 s10, s10, {TG}
    s_mov_b64 exec, 1
    buffer_store_dwordx4 v[88:91], v5, s[44:47], s10 offen sc1
    s_mov_b64 exec, -1
    """)
    stamp()
    if "W1" in abl: a("s_branch L_W_done")
    a(f"""
    v_and_b32 v4, 15, v0
    v_lshrrev_b32 v5, 4, v0
    v_xor_b32 v6, v4, v5
    v_lshlrev_b32 v6, 4, v6
    v_lshl_add_u32 v6, v4, 8, v6
    s_lshl_b32 s10, s9, 13
    v_add_u32 v8, s10, v6
    v_xor_b32 v9, 64, v8
    v_xor_b32 v10, 128, v8
    v_xor_b32 v11, 192, v8
    v_and_b32 v7, 3, v0
    v_lshlrev_b32 v12, 8, v7
    v_lshl_add_u32 v12, v5, 4, v12
    v_add_u32 v12, v12, v2
    """)
    lds_wait(FL_QREADY, 1)
    for s in range(4):
        a(f"ds_read_b128 v[{16+4*s}:{19+4*s}], v12 offset:{QI + 64*s}")
    lds_wait(FL_KLAND, 1)
    stamp()
    for T in range(2):
        for s in range(4):
            a(f"ds_read_b128 v[{32+16*T+4*s}:{35+16*T+4*s}], v{8+s} offset:{4096*T}")
    for T in range(2):
        a(f"s_waitcnt lgkmcnt({4 - 4*T})")
        for s in range(4):
            c = "0" if s == 0 else f"v[{64+4*T}:{67+4*T}]"
            a(f"v_mfma_f32_16x16x32_bf16 v[{64+4*T}:{67+4*T}], v[{32+16*T+4*s}:{35+16*T+4*s}], v[{16+4*s}:{19+4*s}], {c}")
    a(f"""
    v_mov_b32 v3, 1
    s_mov_b64 exec, 1
    ds_add_u32 v2, v3 offset:{CNT_QK}
    s_mov_b64 exec, -1
    s_mov_b32 s10, {f32bits(SCALE):#x}
    v_mov_b32 v74, s60
    v_mov_b32 v75, s61
    v_mov_b32 v78, s60
    v_mov_b32 v79, s61
    s_lshl_b32 s11, s8, 15
    s_lshl_b32 s12, s7, 12
    s_add_u32 s11, s11, s12
    s_lshl_b32 s12, s9, 9
    s_add_u32 s11, s11, s12
    s_add_u32 s11, s11, {SG}
    v_lshlrev_b32 v13, 4, v7
    v_lshl_add_u32 v13, v5, 6, v13
    """)
    for T in range(2):
        a(f"v_cvt_pk_bf16_f32 v{80+2*T}, v{64+4*T}, v{65+4*T}")
        a(f"v_cvt_pk_bf16_f32 v{81+2*T}, v{66+4*T}, v{67+4*T}")
    for i in range(4): unpack(64 + 2*i, 65 + 2*i, 80 + i)
    for i in range(8): a(f"v_mul_f32 v{64+i}, s10, v{64+i}")
    for T in range(2):
        a(f"v_cvt_pk_bf16_f32 v{72+4*T}, v{64+4*T}, v{65+4*T}")
        a(f"v_cvt_pk_bf16_f32 v{73+4*T}, v{66+4*T}, v{67+4*T}")
    a(f"""
    s_mov_b32 exec_lo, {MASK4}
    s_mov_b32 exec_hi, {MASK4}
    buffer_store_dwordx4 v[72:75], v13, s[44:47], s11 offen
    buffer_store_dwordx4 v[76:79], v13, s[44:47], s11 offen offset:256
    s_add_u32 s69, s11, {MIRROR}
    s_mov_b64 exec, -1
    """)
    unpack(64, 65, 72); unpack(66, 67, 73); unpack(68, 69, 76); unpack(70, 71, 77)
    a(f"""
    v_max3_f32 v84, v64, v65, v66
    v_max3_f32 v85, v67, v68, v69
    v_max3_f32 v84, v84, v70, v71
    v_max_f32 v84, v84, v85
    """)
    xrow([84], "max", [86])
    a(f"s_mov_b32 s10, {f32bits(LOG2E):#x}")
    for i in range(8): a(f"v_sub_f32 v{64+i}, v{64+i}, v84")
    for i in range(8): a(f"v_mul_f32 v{64+i}, s10, v{64+i}")
    for i in range(8): a(f"v_exp_f32 v{64+i}, v{64+i}")
    a(f"""
    v_add_f32 v85, v64, v65
    v_add_f32 v86, v66, v67
    v_add_f32 v87, v68, v69
    v_add_f32 v88, v70, v71
    v_add_f32 v85, v85, v86
    v_add_f32 v87, v87, v88
    v_add_f32 v85, v85, v87
    """)
    xrow([85], "add", [86])
    a(f"""
    v_mov_b32 v86, s60
    v_mov_b32 v87, s61
    s_lshl_b32 s11, s8, 12
    s_lshl_b32 s12, s7, 9
    s_add_u32 s11, s11, s12
    s_lshl_b32 s12, s9, 6
    s_add_u32 s11, s11, s12
    s_add_u32 s11, s11, {STG}
    v_lshlrev_b32 v14, 4, v0
    s_mov_b64 exec, 15
    s_add_u32 s12, s11, {MIRROR}
    buffer_store_dwordx4 v[84:87], v14, s[44:47], s11 offen
    buffer_store_dwordx4 v[84:87], v14, s[44:47], s12 offen sc1
    s_mov_b32 exec_lo, {MASK4}
    s_mov_b32 exec_hi, {MASK4}
    buffer_store_dwordx4 v[72:75], v13, s[44:47], s69 offen sc1
    buffer_store_dwordx4 v[76:79], v13, s[44:47], s69 offen offset:256 sc1
    s_mov_b64 exec, -1
    """)
    stamp()
    a(f"""
    v_bfe_u32 v15, v0, 2, 2
    v_lshl_add_u32 v15, v15, 9, v13
    s_lshl_b32 s11, s8, 15
    s_lshr_b32 s12, s7, 2
    s_lshl_b32 s12, s12, 14
    s_add_u32 s11, s11, s12
    s_lshl_b32 s12, s9, 11
    s_add_u32 s11, s11, s12
    s_add_u32 s66, s11, {SG}
    v_lshrrev_b32 v16, 2, v0
    v_lshlrev_b32 v17, 3, v7
    v_lshl_add_u32 v16, v16, 6, v17
    s_lshl_b32 s10, s9, 13
    s_add_u32 s10, s10, {V_L}
    v_add_u32 v17, s10, v16
    v_lshl_add_u32 v18, v7, 3, v2
    """)
    if nowpoll: lds_wait(FL_STATS, 1)
    poll_trig([(20, 15, "s66", 0), (24, 15, "s66", 256)], FL_STATS)
    stamp()
    unpack(28, 29, 20); unpack(30, 31, 21); unpack(32, 33, 24); unpack(34, 35, 25)
    lds_wait(FL_STATS, 1)
    a(f"""
    ds_read_b64 v[36:37], v18 offset:{ST}
    s_mov_b32 s10, {f32bits(LOG2E):#x}
    s_waitcnt lgkmcnt(0)
    """)
    for i in range(8): a(f"v_sub_f32 v{28+i}, v{28+i}, v36")
    for i in range(8): a(f"v_mul_f32 v{28+i}, s10, v{28+i}")
    for i in range(8): a(f"v_exp_f32 v{28+i}, v{28+i}")
    for i in range(8): a(f"v_mul_f32 v{28+i}, v{28+i}, v37")
    for i in range(4): a(f"v_cvt_pk_bf16_f32 v{40+i}, v{28+2*i}, v{29+2*i}")
    for c in range(1, 4):
        for i in range(4):
            a(f"v_mov_b32_dpp v{40+4*c+i}, v{40+i} row_shl:{4*c} row_mask:0xf bank_mask:0xf")
    a("s_add_u32 s11, s9, 1")
    lds_wait(FL_VLAND, "s11")
    stamp()
    for c in range(4):
        for dt in range(2):
            r = 56 + 8*c + 4*dt
            a(f"ds_read_b64_tr_b16 v[{r}:{r+1}], v17 offset:{2048*c + 32*dt}")
            a(f"ds_read_b64_tr_b16 v[{r+2}:{r+3}], v17 offset:{2048*c + 32*dt + 1024}")
        if c == 2: a("s_waitcnt lgkmcnt(8)")
    for c in range(4):
        if c == 1: a("s_waitcnt lgkmcnt(8)") if False else None
        a(f"s_waitcnt lgkmcnt({12 - 4*c})") if c > 0 else None
        for dt in range(2):
            r = 56 + 8*c + 4*dt
            cc = "0" if c == 0 else f"v[{88+4*dt}:{91+4*dt}]"
            a(f"v_mfma_f32_16x16x32_bf16 v[{88+4*dt}:{91+4*dt}], v[{r}:{r+3}], v[{40+4*c}:{43+4*c}], {cc}")
    a(f"""
    v_lshlrev_b32 v19, 7, v7
    v_lshl_add_u32 v19, v5, 4, v19
    s_lshl_b32 s10, s9, 9
    v_add3_u32 v19, v19, v2, s10
    s_mov_b32 exec_lo, {MASK4}
    s_mov_b32 exec_hi, {MASK4}
    ds_write_b128 v19, v[88:91] offset:{OS}
    ds_write_b128 v19, v[92:95] offset:{OS + 64}
    s_mov_b64 exec, -1
    """)
    lds_count(CNT_O)
    a(f"""
    v_lshl_add_u32 v20, v0, 3, v2
    s_cmp_lg_u32 s12, 7
    s_cbranch_scc1 L_W_onot
    """)
    def slot_sum(base):
        for w in range(8):
            a(f"ds_read_b64 v[{24+2*w}:{25+2*w}], v20 offset:{base + 512*w}")
        a("s_waitcnt lgkmcnt(0)")
        for w in range(1, 8):
            a(f"v_add_f32 v24, v24, v{24+2*w}")
            a(f"v_add_f32 v25, v25, v{25+2*w}")
        a("v_mov_b32 v26, s60"); a("v_mov_b32 v27, s61")
    slot_sum(OS)
    a(f"""
    v_lshlrev_b32 v21, 4, v4
    v_lshl_add_u32 v21, v5, 10, v21
    s_lshl_b32 s10, s6, 16
    s_lshr_b32 s11, s7, 2
    s_lshl_b32 s11, s11, 15
    s_add_u32 s10, s10, s11
    s_lshl_b32 s11, s4, 12
    s_add_u32 s10, s10, s11
    s_and_b32 s11, s7, 3
    s_lshl_b32 s11, s11, 8
    s_add_u32 s10, s10, s11
    s_add_u32 s10, s10, {OG}
    s_add_u32 s11, s10, {MIRROR}
    buffer_store_dwordx4 v[24:27], v21, s[44:47], s10 offen
    buffer_store_dwordx4 v[24:27], v21, s[44:47], s11 offen sc1
    L_W_onot:
    """)
    stamp()
    a("s_cmp_lt_u32 s5, 16")
    a("s_cbranch_scc1 L_W_qwg")
    a(f"""
    v_bfe_u32 v21, v0, 3, 1
    v_lshlrev_b32 v21, 15, v21
    v_lshl_add_u32 v21, v7, 16, v21
    v_bfe_u32 v22, v0, 2, 1
    v_lshl_add_u32 v21, v22, 7, v21
    v_lshl_add_u32 v21, v5, 5, v21
    s_lshl_b32 s10, s4, 12
    s_lshl_b32 s11, s9, 9
    s_add_u32 s10, s10, s11
    s_add_u32 s66, s10, {OG}
    s_lshl_b32 s10, s9, 12
    v_add_u32 v17, s10, v16
    """)
    lds_wait(FL_WOLAND, 1)
    for e in range(2):
        for ct in range(2):
            r = 56 + 8*e + 4*ct
            a(f"ds_read_b64_tr_b16 v[{r}:{r+1}], v17 offset:{WO_L + 2048*e + 32*ct}")
            a(f"ds_read_b64_tr_b16 v[{r+2}:{r+3}], v17 offset:{WO_L + 2048*e + 32*ct + 1024}")
    lds_wait(FL_OREADY, 1)
    poll([(24, 21, "s66", 0), (28, 21, "s66", 16), (32, 21, "s66", 256), (36, 21, "s66", 272)], sleep=4, dual=1)
    stamp()
    for r in (24, 25, 28, 29, 32, 33, 36, 37):
        a(f"v_add_f32_dpp v{r}, v{r}, v{r} row_ror:8 row_mask:0xf bank_mask:0xf")
    a(f"""
    v_cvt_pk_bf16_f32 v40, v24, v25
    v_cvt_pk_bf16_f32 v41, v28, v29
    v_cvt_pk_bf16_f32 v44, v32, v33
    v_cvt_pk_bf16_f32 v45, v36, v37
    v_mov_b32_dpp v42, v40 row_shl:4 row_mask:0xf bank_mask:0xf
    v_mov_b32_dpp v43, v41 row_shl:4 row_mask:0xf bank_mask:0xf
    v_mov_b32_dpp v46, v44 row_shl:4 row_mask:0xf bank_mask:0xf
    v_mov_b32_dpp v47, v45 row_shl:4 row_mask:0xf bank_mask:0xf
    s_waitcnt lgkmcnt(0)
    """)
    for e in range(2):
        for ct in range(2):
            r = 56 + 8*e + 4*ct
            cc = "0" if e == 0 else f"v[{88+4*ct}:{91+4*ct}]"
            a(f"v_mfma_f32_16x16x32_bf16 v[{88+4*ct}:{91+4*ct}], v[{r}:{r+3}], v[{40+4*e}:{43+4*e}], {cc}")
    a(f"""
    s_mov_b32 exec_lo, {MASK4}
    s_mov_b32 exec_hi, {MASK4}
    ds_write_b128 v19, v[88:91] offset:{AS}
    ds_write_b128 v19, v[92:95] offset:{AS + 64}
    s_mov_b64 exec, -1
    """)
    lds_count(CNT_A)
    a(f"""
    s_cmp_lg_u32 s12, 7
    s_cbranch_scc1 L_W_done
    """)
    slot_sum(AS)
    a(f"""
    v_lshlrev_b32 v21, 4, v4
    v_lshl_add_u32 v21, v5, 15, v21
    s_lshl_b32 s10, s4, 12
    s_sub_u32 s11, s5, 16
    s_lshl_b32 s11, s11, 8
    s_add_u32 s10, s10, s11
    s_add_u32 s10, s10, {AG}
    buffer_store_dwordx4 v[24:27], v21, s[44:47], s10 offen sc1
    s_branch L_W_done
    L_W_qwg:
    s_cmp_lg_u32 s4, 0
    s_cbranch_scc1 L_W_done
    s_cmp_ge_u32 s5, 4
    s_cbranch_scc1 L_W_done
    v_and_b32 v21, 31, v0
    v_lshlrev_b32 v22, 4, v21
    v_lshrrev_b32 v23, 5, v0
    v_lshl_add_u32 v22, v23, 14, v22
    s_lshl_b32 s10, s5, 15
    s_lshl_b32 s11, s9, 9
    s_add_u32 s10, s10, s11
    s_add_u32 s66, s10, {AG}
    s_add_u32 s67, s66, 4096
    s_add_u32 s68, s66, 8192
    s_add_u32 s69, s66, 12288
    """)
    poll([(24 + 4*i, 22, f"s{66+i}", 0) for i in range(4)], sleep=SB)
    stamp()
    a(f"""
    v_add_f32 v24, v24, v28
    v_add_f32 v25, v25, v29
    v_add_f32 v32, v32, v36
    v_add_f32 v33, v33, v37
    v_add_f32 v24, v24, v32
    v_add_f32 v25, v25, v33
    v_mov_b32 v26, v24
    v_mov_b32 v27, v25
    v_permlane32_swap_b32 v24, v26
    v_permlane32_swap_b32 v25, v27
    v_add_f32 v24, v24, v26
    v_add_f32 v25, v25, v27
    s_lshl_b32 s10, s9, 8
    v_lshl_add_u32 v21, v21, 3, v2
    v_add_u32 v21, s10, v21
    ds_write_b64 v21, v[24:25] offset:{ROW}
    v_mov_b32 v3, 1
    s_mov_b64 exec, 1
    ds_add_u32 v2, v3 offset:{CNT_ROW}
    s_mov_b64 exec, -1
    L_W_done:
    """)
    stamp()
    dump_stamps()
    a("L_end:")
    a("s_endpgm")
    a("L_code_end:")
    txt = a.text()
    out = []
    for l in txt.split("\n"):
        if l.rstrip().endswith(" sc1") and "buffer_store" in l: l = l.rstrip()[:-4] + (" " + stp if stp else "")
        elif l.rstrip().endswith(" sc1") and "buffer_load" in l: l = l.rstrip()[:-4] + (" " + ldp if ldp else "")
        out.append(l)
    return wrap("\n".join(out), 256, 640, LDS_TOTAL, 160, denorm=True)

def gelu_pairs(a, items, acc, st, sc1, vc0, vone):
    for (w, b, w2, t) in items: a(f"v_pk_mul_f32 v[{t}:{t+1}], v[{w}:{w+1}], {st}")
    for (w, b, w2, t) in items: a(f"v_cvt_pk_bf16_f32 v{t+2}, v{t}, v{t+1}")
    for (w, b, w2, t) in items:
        a(f"v_lshlrev_b32 v{t}, 16, v{t+2}"); a(f"v_and_b32 v{t+1}, 0xffff0000, v{t+2}")
    for (w, b, w2, t) in items: a(f"v_pk_add_f32 v[{t}:{t+1}], v[{t}:{t+1}], v[{b}:{b+1}]")
    for (w, b, w2, t) in items: a(f"v_cvt_pk_bf16_f32 v{t+2}, v{t}, v{t+1}")
    for (w, b, w2, t) in items:
        a(f"v_lshlrev_b32 v{t}, 16, v{t+2}"); a(f"v_and_b32 v{t+1}, 0xffff0000, v{t+2}")
    for (w, b, w2, t) in items: a(f"v_pk_mul_f32 v[{t+2}:{t+3}], v[{t}:{t+1}], v[{t}:{t+1}]")
    for (w, b, w2, t) in items: a(f"v_pk_fma_f32 v[{t+2}:{t+3}], v[{t+2}:{t+3}], {sc1}, v[{vc0}:{vc0+1}]")
    for (w, b, w2, t) in items: a(f"v_pk_mul_f32 v[{t+2}:{t+3}], v[{t+2}:{t+3}], v[{t}:{t+1}]")
    for (w, b, w2, t) in items:
        a(f"v_exp_f32 v{t+2}, v{t+2}"); a(f"v_exp_f32 v{t+3}, v{t+3}")
    for (w, b, w2, t) in items: a(f"v_pk_add_f32 v[{t+2}:{t+3}], v[{t+2}:{t+3}], v[{vone}:{vone+1}]")
    for (w, b, w2, t) in items:
        a(f"v_rcp_f32 v{t+2}, v{t+2}"); a(f"v_rcp_f32 v{t+3}, v{t+3}")
    for (w, b, w2, t) in items: a(f"v_pk_mul_f32 v[{t+2}:{t+3}], v[{t+2}:{t+3}], v[{t}:{t+1}]")
    for (w, b, w2, t) in items: a(f"v_cvt_pk_bf16_f32 v{t+4}, v{t+2}, v{t+3}")
    for (w, b, w2, t) in items: a(f"v_dot2_f32_bf16 v{acc}, v{t+4}, v{w2}, v{acc}")

if __name__ == "__main__":
    import argparse
    ap = argparse.ArgumentParser()
    ap.add_argument("-o", default="t/k1.s"); ap.add_argument("--dbg", action="store_true"); ap.add_argument("--pol", default="nt"); ap.add_argument("--nopf", action="store_true"); ap.add_argument("--dq", type=int, default=20); ap.add_argument("--dw", type=int, default=16); ap.add_argument("--slp", type=int, default=2); ap.add_argument("--e0", type=int, default=114); ap.add_argument("--pd", type=int, default=2); ap.add_argument("--sq", type=int, default=4); ap.add_argument("--ss", type=int, default=5); ap.add_argument("--sa", type=int, default=3); ap.add_argument("--sb", type=int, default=3); ap.add_argument("--abl", default=""); ap.add_argument("--stp", default="sc1"); ap.add_argument("--ldp", default="sc1"); ap.add_argument("--nowpoll", action="store_true"); ap.add_argument("--dbg2", action="store_true"); ap.add_argument("--dwq", type=int, default=32)
    g = ap.parse_args()
    TAB_E0 = g.e0
    open(g.o, "w").write(gen(dbg=g.dbg, pol=g.pol, prefetch=not g.nopf, DQ=g.dq, DW=g.dw, slp=g.slp, PD=g.pd, DWQ=g.dwq, SQ=g.sq, SS=g.ss, SA=g.sa, SB=g.sb, abl=g.abl, stp=g.stp, ldp=g.ldp, nowpoll=g.nowpoll, dbg2=g.dbg2))
```

```python
import sys, struct
from asmgen import *

def f32bits(x): return struct.unpack("<I", struct.pack("<f", x))[0]

K_L = 0; V_L = 65536; WQ_L = 98304; WO_L = 0
MISC = 131072
XN = 0; QI = 4096; FL = 5120; ST = 5376; OS = 6144; AS = 10240; ROW = 14336; TAB = 16384; WT = 6144
LDS_TOTAL = MISC + 24576
FL_QPROJ = FL + 0; FL_QREADY = FL + 4; PROG = FL + 8; FL_STATS = FL + 20; CNT_QK = FL + 24; CNT_O = FL + 28
CNT_A = FL + 32; CNT_ROW = FL + 36; FL_OPUB = FL + 48; FL_WT = FL + 52; CNT_WT = FL + 56
QG = 0x10000; STG = 0x20000; OG = 0x40000; AG = 0x80000; TG = 0xA0000; SG = 0x100000; DBGA = 0x600000
WS_BYTES = 0x800000; MIRROR = 0x200000
TAB_E0 = 114
LOG2E = 1.4426950408889634
SCALE = 128 ** -0.5
GC0 = -2.0 * 0.7978845608028654 * LOG2E
GC1 = GC0 * 0.044715
MASK4 = "0x000f000f"

def gelu_pairs(a, items, acc, st, sc1, vc0, vone):
    for (w, b, w2, t) in items: a(f"v_pk_mul_f32 v[{t}:{t+1}], v[{w}:{w+1}], {st}")
    for (w, b, w2, t) in items: a(f"v_cvt_pk_bf16_f32 v{t+2}, v{t}, v{t+1}")
    for (w, b, w2, t) in items:
        a(f"v_lshlrev_b32 v{t}, 16, v{t+2}"); a(f"v_and_b32 v{t+1}, 0xffff0000, v{t+2}")
    for (w, b, w2, t) in items: a(f"v_pk_add_f32 v[{t}:{t+1}], v[{t}:{t+1}], v[{b}:{b+1}]")
    for (w, b, w2, t) in items: a(f"v_cvt_pk_bf16_f32 v{t+2}, v{t}, v{t+1}")
    for (w, b, w2, t) in items:
        a(f"v_lshlrev_b32 v{t}, 16, v{t+2}"); a(f"v_and_b32 v{t+1}, 0xffff0000, v{t+2}")
    for (w, b, w2, t) in items: a(f"v_pk_mul_f32 v[{t+2}:{t+3}], v[{t}:{t+1}], v[{t}:{t+1}]")
    for (w, b, w2, t) in items: a(f"v_pk_fma_f32 v[{t+2}:{t+3}], v[{t+2}:{t+3}], {sc1}, v[{vc0}:{vc0+1}]")
    for (w, b, w2, t) in items: a(f"v_pk_mul_f32 v[{t+2}:{t+3}], v[{t+2}:{t+3}], v[{t}:{t+1}]")
    for (w, b, w2, t) in items:
        a(f"v_exp_f32 v{t+2}, v{t+2}"); a(f"v_exp_f32 v{t+3}, v{t+3}")
    for (w, b, w2, t) in items: a(f"v_pk_add_f32 v[{t+2}:{t+3}], v[{t+2}:{t+3}], v[{vone}:{vone+1}]")
    for (w, b, w2, t) in items:
        a(f"v_rcp_f32 v{t+2}, v{t+2}"); a(f"v_rcp_f32 v{t+3}, v{t+3}")
    for (w, b, w2, t) in items: a(f"v_pk_mul_f32 v[{t+2}:{t+3}], v[{t+2}:{t+3}], v[{t}:{t+1}]")
    for (w, b, w2, t) in items: a(f"v_cvt_pk_bf16_f32 v{t+4}, v{t+2}, v{t+3}")
    for (w, b, w2, t) in items: a(f"v_dot2_f32_bf16 v{acc}, v{t+4}, v{w2}, v{acc}")

def gen(dbg=False, pol="nt", prefetch=True, DQ=20, DW=16, DWQ=32, DK0=8, NK0=16, SQ=2, SS=2, SA=1, SB=1, dbg2=False, e0=114, prioL=0, R0=24):
    a = A()
    POL = " " + pol if pol else ""
    nstamp = [0]
    def stamp(i=None):
        if dbg:
            if i is None:
                i = nstamp[0]; nstamp[0] += 1
            a(f"s_memrealtime s[{70+2*i}:{71+2*i}]")
            a("s_waitcnt lgkmcnt(0)")
    def dump_stamps():
        if dbg:
            a("s_mov_b64 exec, -1")
            a("s_waitcnt vmcnt(0) lgkmcnt(0)")
            for i in range(12):
                a(f"v_mov_b32 v{100+i}, s{70+2*i}")
            a(f"""
            s_mul_i32 s10, s2, 14
            s_add_u32 s10, s10, s3
            s_mul_i32 s10, s10, 64
            s_add_u32 s10, s10, {DBGA}
            v_mov_b32 v99, s10
            s_mov_b64 exec, 1
            buffer_store_dwordx4 v[100:103], v99, s[44:47], 0 offen
            buffer_store_dwordx4 v[104:107], v99, s[44:47], 0 offen offset:16
            buffer_store_dwordx4 v[108:111], v99, s[44:47], 0 offen offset:32
            """)
        nstamp[0] = 0
    def srd(d, ptr, nbytes):
        a(f"""
        s_mov_b32 s{d}, s{ptr}
        s_and_b32 s{d+1}, s{ptr+1}, 0xffff
        s_mov_b32 s{d+2}, {nbytes}
        s_mov_b32 s{d+3}, 0x20000
        """)
    def lds_wait(off, val, vt=3, slp=1):
        L = a.label("Lw"); D = a.label("Lwd")
        a(f"""
        s_mov_b32 s13, 0x40000
        {L}:
        ds_read_b32 v{vt}, v2 offset:{off}
        s_waitcnt lgkmcnt(0)
        v_readfirstlane_b32 s12, v{vt}
        s_cmp_ge_u32 s12, {val}
        s_cbranch_scc1 {D}
        s_sub_u32 s13, s13, 1
        s_cbranch_scc1 {D}
        """)
        if slp: a(f"s_sleep {slp}")
        a(f"""
        s_branch {L}
        {D}:
        """)
    def lds_set(off, val, vt=3):
        a(f"""
        v_mov_b32 v{vt}, {val}
        s_mov_b64 exec, 1
        ds_write_b32 v2, v{vt} offset:{off}
        s_mov_b64 exec, -1
        """)
    def lds_count(off, vt=3):
        a(f"""
        v_mov_b32 v{vt}, 1
        s_mov_b64 exec, 1
        ds_add_rtn_u32 v{vt}, v2, v{vt} offset:{off}
        s_mov_b64 exec, -1
        s_waitcnt lgkmcnt(0)
        v_readfirstlane_b32 s12, v{vt}
        """)
    def dual_sel(R0):
        a(f"""
        s_and_b32 s12, s13, 1
        s_cmp_lt_u32 s13, {0x3fff - R0}
        s_cselect_b32 s12, s12, 0
        s_mul_i32 s12, s12, {MIRROR}
        s_add_u32 s67, s12, s66
        """)
    def poll(loads, sleep=2, dual=None, trig=None, nspin=6):
        a("s_mov_b32 s13, 0x3fff")
        L = a.label("Lp"); D = a.label("Lpd"); S = a.label("Lps")
        a(f"{L}:")
        if dual: dual_sel(dual)
        for (d, va, so, imm) in loads:
            a(f"buffer_load_dwordx4 v[{d}:{d+3}], v{va}, s[44:47], {'s67' if dual else so} offen offset:{imm} sc1")
        a("s_waitcnt vmcnt(0)")
        for i, (d, va, so, imm) in enumerate(loads):
            if i == 0:
                a(f"v_cmp_ne_u64 s[14:15], s[60:61], v[{d+2}:{d+3}]")
            else:
                a(f"v_cmp_ne_u64 vcc, s[60:61], v[{d+2}:{d+3}]")
                a("s_or_b64 s[14:15], s[14:15], vcc")
        a(f"""
        s_cmp_eq_u64 s[14:15], 0
        s_cbranch_scc1 {D}
        s_sub_u32 s13, s13, 1
        s_cbranch_scc1 {D}
        """)
        if trig is None:
            a(f"s_sleep {sleep}")
            a(f"s_branch {L}")
        else:
            a(f"""
            s_mov_b32 s14, {nspin}
            {S}:
            s_sleep 1
            ds_read_b32 v3, v2 offset:{trig}
            s_waitcnt lgkmcnt(0)
            v_readfirstlane_b32 s12, v3
            s_cmp_lg_u32 s12, 0
            s_cbranch_scc1 {L}
            s_sub_u32 s14, s14, 1
            s_cbranch_scc0 {S}
            s_branch {L}
            """)
        a(f"{D}:")
    def xrow(regs, op, tmps):
        for sw in ("v_permlane16_swap_b32", "v_permlane32_swap_b32"):
            for r, t in zip(regs, tmps): a(f"v_mov_b32 v{t}, v{r}")
            for r, t in zip(regs, tmps): a(f"{sw} v{r}, v{t}")
            for r, t in zip(regs, tmps): a(f"v_{op}_f32 v{r}, v{r}, v{t}")
    def allreduce(regs, op, tmps):
        for m in ("quad_perm:[1,0,3,2]", "quad_perm:[2,3,0,1]", "row_half_mirror", "row_mirror"):
            for r in regs:
                a(f"v_{op}_f32_dpp v{r}, v{r}, v{r} {m} row_mask:0xf bank_mask:0xf")
        xrow(regs, op, tmps)
    def rbf(dst, src):
        a(f"v_cvt_pk_bf16_f32 v{dst}, v{src}, v{src}")
        a(f"v_lshlrev_b32 v{dst}, 16, v{dst}")
    def unpack(dlo, dhi, src):
        a(f"v_lshlrev_b32 v{dlo}, 16, v{src}")
        a(f"v_and_b32 v{dhi}, 0xffff0000, v{src}")
    def layernorm4(rows, tmpb):
        n = len(rows)
        S = [tmpb + i for i in range(n)]; T = [tmpb + n + i for i in range(n)]; Mb = [tmpb + 2*n + i for i in range(n)]
        D = [tmpb + 3*n + 8*i for i in range(n)]
        for x, s, t in zip(rows, S, T):
            a(f"v_add_f32 v{s}, v{x}, v{x+1}"); a(f"v_add_f32 v{t}, v{x+2}, v{x+3}")
        for x, s, t in zip(rows, S, T):
            a(f"v_add_f32 v{s}, v{s}, v{x+4}"); a(f"v_add_f32 v{t}, v{t}, v{x+5}")
        for x, s, t in zip(rows, S, T):
            a(f"v_add_f32 v{s}, v{s}, v{x+6}"); a(f"v_add_f32 v{t}, v{t}, v{x+7}")
        for s, t in zip(S, T): a(f"v_add_f32 v{s}, v{s}, v{t}")
        allreduce(S, "add", T)
        for s in S: a(f"v_mul_f32 v{s}, {f32bits(1/512):#x}, v{s}")
        for x, s, d in zip(rows, S, D):
            for i in range(8): a(f"v_sub_f32 v{d+i}, v{x+i}, v{s}")
        for s, m in zip(S, Mb): rbf(m, s)
        for s, t, d in zip(S, T, D):
            a(f"v_mul_f32 v{s}, v{d}, v{d}"); a(f"v_mul_f32 v{t}, v{d+1}, v{d+1}")
        for i in range(2, 8, 2):
            for s, t, d in zip(S, T, D):
                a(f"v_fmac_f32 v{s}, v{d+i}, v{d+i}"); a(f"v_fmac_f32 v{t}, v{d+i+1}, v{d+i+1}")
        for s, t in zip(S, T): a(f"v_add_f32 v{s}, v{s}, v{t}")
        allreduce(S, "add", T)
        for s in S: a(f"v_mul_f32 v{s}, {f32bits(1/512):#x}, v{s}")
        for s in S: rbf(s, s)
        for s in S: a(f"v_add_f32 v{s}, {f32bits(1e-5):#x}, v{s}")
        for s in S: rbf(s, s)
        for s in S: a(f"v_sqrt_f32 v{s}, v{s}")
        for s in S: rbf(s, s)
        for s in S: a(f"v_rcp_f32 v{s}, v{s}")
        for x, m, d in zip(rows, Mb, D):
            for i in range(8): a(f"v_sub_f32 v{d+i}, v{x+i}, v{m}")
        for x, d in zip(rows, D):
            for i in range(0, 8, 2): a(f"v_cvt_pk_bf16_f32 v{x+i}, v{d+i}, v{d+i+1}")
        for x, d in zip(rows, D):
            for i in range(0, 8, 2): unpack(d+i, d+i+1, x+i)
        for s, d in zip(S, D):
            for i in range(8): a(f"v_mul_f32 v{d+i}, v{d+i}, v{s}")
        return D
    def layernorm1(x, t, outp, shift):
        d = t; s1 = t + 8; s2 = t + 10; u = t + 12
        if shift:
            for i in range(0, 8, 2):
                a(f"v_pk_add_f32 v[{d+i}:{d+i+1}], v[{x+i}:{x+i+1}], {shift} neg_lo:[0,1] neg_hi:[0,1]")
            src = d
        else: src = x
        a(f"""
        v_pk_add_f32 v[{s1}:{s1+1}], v[{src}:{src+1}], v[{src+2}:{src+3}]
        v_pk_mul_f32 v[{s2}:{s2+1}], v[{src}:{src+1}], v[{src}:{src+1}]
        v_pk_add_f32 v[{u}:{u+1}], v[{src+4}:{src+5}], v[{src+6}:{src+7}]
        v_pk_fma_f32 v[{s2}:{s2+1}], v[{src+2}:{src+3}], v[{src+2}:{src+3}], v[{s2}:{s2+1}]
        v_pk_add_f32 v[{s1}:{s1+1}], v[{s1}:{s1+1}], v[{u}:{u+1}]
        v_pk_fma_f32 v[{s2}:{s2+1}], v[{src+4}:{src+5}], v[{src+4}:{src+5}], v[{s2}:{s2+1}]
        v_add_f32 v{s1}, v{s1}, v{s1+1}
        v_pk_fma_f32 v[{s2}:{s2+1}], v[{src+6}:{src+7}], v[{src+6}:{src+7}], v[{s2}:{s2+1}]
        v_add_f32 v{s2}, v{s2}, v{s2+1}
        """)
        allreduce([s1, s2], "add", [u, u + 1])
        a(f"""
        v_mul_f32 v{s1}, {f32bits(1/512):#x}, v{s1}
        v_mul_f32 v{s2}, {f32bits(1/512):#x}, v{s2}
        v_fma_f32 v{s2}, -v{s1}, v{s1}, v{s2}
        v_max_f32 v{s2}, 0, v{s2}
        """)
        if shift: a(f"v_add_f32 v{s1}, {shift.replace('[','').split(':')[0]}, v{s1}")
        a(f"""
        v_cvt_pk_bf16_f32 v{u}, v{s1}, v{s2}
        v_and_b32 v{s2}, 0xffff0000, v{u}
        v_lshlrev_b32 v{s1}, 16, v{u}
        v_add_f32 v{s2}, {f32bits(1e-5):#x}, v{s2}
        v_mov_b32 v{s1+1}, v{s1}
        v_cvt_pk_bf16_f32 v{s2}, v{s2}, v{s2}
        """)
        for i in range(0, 4, 2):
            a(f"v_pk_add_f32 v[{d+i}:{d+i+1}], v[{x+i}:{x+i+1}], v[{s1}:{s1+1}] neg_lo:[0,1] neg_hi:[0,1]")
        a(f"v_lshlrev_b32 v{s2}, 16, v{s2}")
        for i in range(4, 8, 2):
            a(f"v_pk_add_f32 v[{d+i}:{d+i+1}], v[{x+i}:{x+i+1}], v[{s1}:{s1+1}] neg_lo:[0,1] neg_hi:[0,1]")
        a(f"v_sqrt_f32 v{s2}, v{s2}")
        for i in range(2): a(f"v_cvt_pk_bf16_f32 v{outp+i}, v{d+2*i}, v{d+2*i+1}")
        a(f"v_cvt_pk_bf16_f32 v{s2}, v{s2}, v{s2}")
        for i in range(2, 4): a(f"v_cvt_pk_bf16_f32 v{outp+i}, v{d+2*i}, v{d+2*i+1}")
        a(f"v_lshlrev_b32 v{s2}, 16, v{s2}")
        for i in range(2): unpack(d + 2*i, d + 2*i + 1, outp + i)
        a(f"v_rcp_f32 v{s2}, v{s2}")
        for i in range(2, 4): unpack(d + 2*i, d + 2*i + 1, outp + i)
        a(f"v_mov_b32 v{s2+1}, v{s2}")
        for i in range(0, 8, 2):
            a(f"v_pk_mul_f32 v[{d+i}:{d+i+1}], v[{d+i}:{d+i+1}], v[{s2}:{s2+1}]")
        for i in range(4): a(f"v_cvt_pk_bf16_f32 v{outp+i}, v{d+2*i}, v{d+2*i+1}")
    def get_tag():
        a("""
        s_waitcnt lgkmcnt(0)
        s_add_u32 s60, s62, 0x7f4a7c15
        s_addc_u32 s61, s63, 0x9e3779b9
        """)

    a(f"""
    s_cmp_ge_u32 s2, 256
    s_cbranch_scc1 L_end
    s_load_dwordx16 s[16:31], s[0:1], 0
    s_load_dwordx8 s[32:39], s[0:1], 64
    s_load_dwordx2 s[40:41], s[0:1], 96
    v_lshrrev_b32 v1, 6, v0
    v_and_b32 v0, 63, v0
    v_readfirstlane_b32 s3, v1
    v_mov_b32 v2, {MISC}
    v_lshl_add_u32 v3, v0, 2, v2
    v_mov_b32 v4, 0
    ds_write_b32 v3, v4 offset:{FL}
    s_and_b32 s4, s2, 7
    s_lshr_b32 s5, s2, 3
    s_and_b32 s6, s5, 3
    s_lshr_b32 s7, s5, 2
    s_lshl_b32 s8, s6, 3
    s_add_u32 s8, s8, s4
    s_cmp_lt_u32 s5, 16
    s_cselect_b32 s42, 32, 0
    s_waitcnt lgkmcnt(0)
    s_load_dwordx2 s[62:63], s[40:41], 0
    """)
    srd(44, 40, WS_BYTES)
    a("""
    s_cmp_eq_u32 s3, 0
    s_cbranch_scc1 L_roleL
    s_cmp_ge_u32 s3, 10
    s_cbranch_scc1 L_roleT
    s_cmp_eq_u32 s3, 1
    s_cbranch_scc0 L_roleW
    """)

    a("s_setprio 3")
    stamp()
    srd(48, 16, 4096); srd(56, 36, 4096)
    a(f"""
    v_lshlrev_b32 v4, 4, v0
    s_lshl_b32 s10, s6, 10
    """)
    for b in range(4):
        a(f"buffer_load_dwordx4 v[{8+4*b}:{11+4*b}], v4, s[48:51], 0 offen offset:{1024*b}")
    a("s_barrier")
    a("buffer_load_dwordx4 v[120:123], v4, s[56:59], s10 offen")
    if prefetch:
        a(f"""
        s_getpc_b64 s[10:11]
        L_pc_here:
        s_sub_u32 s10, s10, L_pc_here - {NAME}_kernel
        s_subb_u32 s11, s11, 0
        s_lshl_b32 s12, s5, 10
        v_add_u32 v7, s12, v4
        v_min_u32 v7, L_code_end - {NAME}_kernel - 16, v7
        global_load_dwordx4 v[124:127], v7, s[10:11]
        """)
    else:
        a("buffer_load_dwordx4 v[124:127], v4, s[56:59], s10 offen")
    a(f"""
    s_cmp_ge_u32 s5, 16
    s_cbranch_scc1 L_Q_gather
    s_waitcnt vmcnt(2)
    """)
    X = [24 + 8*b for b in range(4)]
    for b in range(4):
        for i in range(4): unpack(X[b] + 2*i, X[b] + 2*i + 1, 8 + 4*b + i)
    D = layernorm4(X, 56)
    for b in range(4):
        for i in range(4): a(f"v_cvt_pk_bf16_f32 v{8+4*b+i}, v{D[b]+2*i}, v{D[b]+2*i+1}")
    a("v_add_u32 v5, v4, v2")
    for b in range(4):
        a(f"ds_write_b128 v5, v[{8+4*b}:{11+4*b}] offset:{XN + 1024*b}")
    get_tag()
    stamp(1)
    a(f"""
    v_lshrrev_b32 v5, 2, v0
    v_and_b32 v6, 3, v0
    v_lshlrev_b32 v7, 3, v6
    v_lshl_add_u32 v5, v5, 6, v7
    v_add_u32 v5, {WQ_L}, v5
    v_lshrrev_b32 v7, 4, v0
    v_lshlrev_b32 v7, 3, v7
    v_lshl_add_u32 v6, v6, 10, v7
    v_add_u32 v6, v6, v2
    """)
    for i in range(16):
        a(f"ds_read2_b64 v[{8+4*i}:{11+4*i}], v6 offset0:{8*i} offset1:{8*i+4}")
        if i == 7: a("s_waitcnt lgkmcnt(0)")
    a(f"""
    v_and_b32 v6, 3, v0
    v_lshrrev_b32 v7, 4, v0
    v_lshlrev_b32 v7, 4, v7
    v_lshl_add_u32 v6, v6, 14, v7
    s_lshl_b32 s10, s4, 11
    s_lshl_b32 s11, s5, 7
    s_add_u32 s10, s10, s11
    s_add_u32 s10, s10, {QG}
    s_add_u32 s11, s10, {MIRROR}
    v_mov_b32 v82, s60
    v_mov_b32 v83, s61
    v_mov_b32 v86, s60
    v_mov_b32 v87, s61
    """)
    for c in range(4):
        lds_wait(PROG, 8 * (c + 1), slp=(0 if c == 3 else 1))
        if c == 3: stamp(2)
        for ii in range(4):
            i = 4*c + ii
            for ct in range(2):
                r = 88 + 8*ii + 4*ct
                a(f"ds_read_b64_tr_b16 v[{r}:{r+1}], v5 offset:{2048*i + 32*ct}")
                a(f"ds_read_b64_tr_b16 v[{r+2}:{r+3}], v5 offset:{2048*i + 32*ct + 1024}")
            if ii == 2: a("s_waitcnt lgkmcnt(8)")
        for ii in range(4):
            i = 4*c + ii
            if ii: a(f"s_waitcnt lgkmcnt({12 - 4*ii})")
            for ct in range(2):
                r = 88 + 8*ii + 4*ct
                cc = "0" if i == 0 else f"v[{72+4*ct}:{75+4*ct}]"
                a(f"v_mfma_f32_16x16x32_bf16 v[{72+4*ct}:{75+4*ct}], v[{r}:{r+3}], v[{8+4*i}:{11+4*i}], {cc}")
    lds_set(FL_QPROJ, 1)
    a(f"""
    v_cvt_pk_bf16_f32 v80, v72, v73
    v_cvt_pk_bf16_f32 v81, v74, v75
    v_cvt_pk_bf16_f32 v84, v76, v77
    v_cvt_pk_bf16_f32 v85, v78, v79
    s_mov_b32 exec_lo, {MASK4}
    s_mov_b32 exec_hi, {MASK4}
    buffer_store_dwordx4 v[80:83], v6, s[44:47], s10 offen
    buffer_store_dwordx4 v[84:87], v6, s[44:47], s10 offen offset:64
    """)
    stamp(3)
    a(f"""
    buffer_store_dwordx4 v[80:83], v6, s[44:47], s11 offen sc1
    buffer_store_dwordx4 v[84:87], v6, s[44:47], s11 offen offset:64 sc1
    s_mov_b64 exec, -1
    s_branch L_Q_gather2
    L_Q_gather:
    """)
    get_tag()
    a(f"""
    L_Q_gather2:
    s_lshl_b32 s10, s6, 14
    s_lshl_b32 s11, s4, 11
    s_add_u32 s10, s10, s11
    s_add_u32 s66, s10, {QG}
    v_lshl_add_u32 v5, v0, 3, v2
    """)
    poll([(8, 4, "s66", 0), (12, 4, "s66", 1024)], sleep=SQ, dual=R0)
    a(f"""
    ds_write_b64 v5, v[8:9] offset:{QI}
    ds_write_b64 v5, v[12:13] offset:{QI + 512}
    """)
    lds_set(FL_QREADY, 1)
    stamp(4)
    a(f"""
    s_lshl_b32 s10, s8, 12
    s_add_u32 s66, s10, {STG}
    s_mov_b32 s10, {f32bits(LOG2E):#x}
    """)
    poll([(8 + 4*i, 4, "s66", 1024*i) for i in range(4)], sleep=SS, dual=R0)
    a(f"""
    v_max_f32 v24, v8, v12
    v_max3_f32 v24, v24, v16, v20
    v_max_f32_dpp v24, v24, v24 row_ror:4 row_mask:0xf bank_mask:0xf
    v_max_f32_dpp v24, v24, v24 row_ror:8 row_mask:0xf bank_mask:0xf
    """)
    xrow([24], "max", [25])
    for i in range(4): a(f"v_sub_f32 v{26+i}, v{8+4*i}, v24")
    for i in range(4): a(f"v_mul_f32 v{26+i}, s10, v{26+i}")
    for i in range(4): a(f"v_exp_f32 v{26+i}, v{26+i}")
    a(f"""
    v_mul_f32 v30, v26, v9
    v_fmac_f32 v30, v27, v13
    v_fmac_f32 v30, v28, v17
    v_fmac_f32 v30, v29, v21
    v_add_f32_dpp v30, v30, v30 row_ror:4 row_mask:0xf bank_mask:0xf
    v_add_f32_dpp v30, v30, v30 row_ror:8 row_mask:0xf bank_mask:0xf
    """)
    xrow([30], "add", [25])
    a(f"""
    v_rcp_f32 v25, v30
    v_fma_f32 v31, -v30, v25, 1.0
    v_fmac_f32 v25, v31, v25
    s_mov_b64 exec, 15
    ds_write_b64 v5, v[24:25] offset:{ST}
    s_mov_b64 exec, -1
    """)
    lds_set(FL_STATS, 1)
    stamp(5)
    a(f"""
    s_cmp_lg_u32 s4, 0
    s_cbranch_scc1 L_Q_done
    s_cmp_ge_u32 s5, 4
    s_cbranch_scc1 L_Q_done
    s_setprio 0
    """)
    lds_wait(CNT_WT, 4)
    for bt in range(2):
        a(f"s_mov_b32 s66, {TG + bt * 8192}")
        a(f"s_mov_b32 s67, {TG + bt * 8192 + 4096}")
        poll([(8 + 4*i, 4, "s66" if i < 4 else "s67", 1024*(i & 3)) for i in range(8)], sleep=4)
        for i in range(8):
            a(f"ds_write_b64 v5, v[{8+4*i}:{9+4*i}] offset:{TAB + (bt * 8 + i) * 512}")
    stamp(6)
    FW1 = 64; FB1 = 92; FW2 = 106
    srd(64, 28, 3584); srd(48, 30, 3584); srd(52, 32, 3584)
    a("v_lshlrev_b32 v6, 3, v0")
    for i in range(7):
        a(f"buffer_load_dwordx2 v[{8+2*i}:{9+2*i}], v6, s[64:67], 0 offen offset:{512*i}")
        a(f"buffer_load_dwordx2 v[{FB1+2*i}:{FB1+2*i+1}], v6, s[48:51], 0 offen offset:{512*i}")
        a(f"buffer_load_dwordx2 v[{FW2+2*i}:{FW2+2*i+1}], v6, s[52:55], 0 offen offset:{512*i}")
    srd(64, 34, 2)
    a("v_mov_b32 v7, 0")
    a("buffer_load_ushort v120, v7, s[64:67], 0 offen")
    a("s_waitcnt vmcnt(0)")
    for i in range(14):
        unpack(FW1 + 2*i, FW1 + 2*i + 1, 8 + i)
    a(f"""
    v_lshlrev_b32 v120, 16, v120
    v_lshl_add_u32 v5, v0, 5, v2
    s_mov_b32 s10, 0x08000800
    s_mov_b32 s11, {(e0 << 7) | (e0 << 23):#x}
    s_lshl_b32 s65, s5, 10
    s_setprio 3
    """)
    lds_wait(CNT_ROW, 8, slp=0)
    stamp(7)
    a(f"""
    ds_read_b128 v[32:35], v5 offset:{ROW}
    ds_read_b128 v[36:39], v5 offset:{ROW + 16}
    s_waitcnt lgkmcnt(0)
    v_readfirstlane_b32 s68, v32
    s_mov_b32 s69, s68
    """)
    layernorm1(32, 46, 16, "s[68:69]")
    for i in range(4): unpack(24 + 2*i, 25 + 2*i, 16 + i)
    layernorm1(24, 46, 16, None)
    for i in range(4):
        a(f"v_and_b32 v{40+i}, 0x7fff7fff, v{16+i}")
    for i in range(4):
        a(f"v_pk_sub_u16 v{40+i}, v{40+i}, s11")
    for i in range(4):
        a(f"v_lshrrev_b32 v{44+i}, 4, v{16+i}")
    a("v_or3_b32 v3, v40, v41, v42")
    for i in range(4):
        a(f"v_and_b32 v{44+i}, s10, v{44+i}")
    a("v_or_b32 v3, v3, v43")
    a("v_and_b32 v3, 0xf800f800, v3")
    a("s_mov_b32 s12, 0x07ff07ff")
    for i in range(4):
        a(f"v_and_or_b32 v{40+i}, v{40+i}, s12, v{44+i}")
    a("v_cmp_ne_u32 s[14:15], 0, v3")
    for i in range(4):
        a(f"v_and_b32 v{44+i}, 0xffff, v{40+i}")
        a(f"v_lshrrev_b32 v{40+i}, 16, v{40+i}")
        a(f"v_lshl_add_u32 v{44+i}, v{44+i}, 1, v2")
        a(f"v_lshl_add_u32 v{40+i}, v{40+i}, 1, v2")
        a(f"ds_read_u16 v{48+2*i}, v{44+i} offset:{TAB}")
        a(f"ds_read_u16 v{49+2*i}, v{40+i} offset:{TAB}")
    a(f"""
    s_cmp_eq_u64 s[14:15], 0
    s_waitcnt lgkmcnt(0)
    s_cbranch_scc0 L_Q_fb
    L_Q_nofb:
    """)
    for i in range(8): a(f"v_lshlrev_b32 v{48+i}, 16, v{48+i}")
    for i in range(0, 8, 2): a(f"v_pk_add_f32 v[{48+i}:{49+i}], v[{48+i}:{49+i}], v[{32+i}:{33+i}]")
    for i in range(4): a(f"v_cvt_pk_bf16_f32 v{16+i}, v{48+2*i}, v{49+2*i}")
    a(f"""
    buffer_store_dwordx4 v[16:19], v4, s[56:59], s65 offen
    s_cmp_lg_u32 s5, 0
    s_cbranch_scc1 L_Q_done
    v_mov_b32 v8, s60
    v_mov_b32 v9, s61
    v_mov_b32 v10, 0
    s_mov_b64 exec, 1
    buffer_store_dwordx2 v[8:9], v10, s[44:47], 0 offen
    s_mov_b64 exec, -1
    L_Q_done:
    """)
    stamp(8)
    if dbg2:
        srd(48, 38, 256)
        a("s_cmp_lg_u32 s2, 0")
        a("s_cbranch_scc1 L_Q_nodbg")
        for i in range(9):
            a(f"s_sub_u32 s10, s{70+2*i}, s70")
            a(f"v_mov_b32 v{100+i}, s10")
        a("""
        v_mov_b32 v99, 0
        s_mov_b64 exec, 1
        buffer_store_dwordx4 v[100:103], v99, s[48:51], 0 offen
        buffer_store_dwordx4 v[104:107], v99, s[48:51], 0 offen offset:16
        buffer_store_dword v108, v99, s[48:51], 0 offen offset:32
        s_mov_b64 exec, -1
        L_Q_nodbg:
        """)
    dump_stamps()
    a("s_endpgm")
    a("L_Q_fb:")
    for i in range(4):
        a(f"v_and_b32 v{24+2*i}, 0xffff, v{16+i}")
        a(f"v_lshrrev_b32 v{25+2*i}, 16, v{16+i}")
    a(f"""
    s_movk_i32 s10, 0x800
    v_mov_b32 v42, {f32bits(GC0):#x}
    v_mov_b32 v43, {f32bits(GC0):#x}
    v_mov_b32 v44, 1.0
    v_mov_b32 v45, 1.0
    s_mov_b32 s92, {f32bits(GC1):#x}
    s_mov_b32 s93, {f32bits(GC1):#x}
    """)
    for i in range(8):
        Lf = a.label("Lfb"); Ld = a.label("Lfbd")
        a(f"""
        v_and_b32 v46, 0x7fff, v{24+i}
        v_subrev_u32 v46, {e0 << 7}, v46
        v_cmp_le_u32 s[94:95], s10, v46
        {Lf}:
        s_cmp_eq_u64 s[94:95], 0
        s_cbranch_scc1 {Ld}
        s_ff1_i32_b64 s96, s[94:95]
        s_bitset0_b64 s[94:95], s96
        s_mov_b32 m0, s96
        s_nop 1
        v_readlane_b32 s68, v{24+i}, m0
        s_call_b64 s[98:99], L_eval
        s_nop 3
        v_writelane_b32 v{48+i}, s68, m0
        s_branch {Lf}
        {Ld}:
        """)
    a("s_nop 1")
    a("s_branch L_Q_nofb")
    a(f"""
    L_eval:
    s_nop 3
    s_lshl_b32 s68, s68, 16
    s_mov_b32 s69, s68
    v_mov_b32 v40, 0
    """)
    for p in range(0, 14, 2):
        unpack(14, 15, FB1 + p); unpack(62, 63, FB1 + p + 1)
        gelu_pairs(a, [(FW1 + 2*p, 14, FW2 + p, 8), (FW1 + 2*p + 2, 62, FW2 + p + 1, 56)], 40, "s[68:69]", "s[92:93]", 42, 44)
    allreduce([40], "add", [41])
    rbf(40, 40)
    a(f"""
    v_add_f32 v40, v40, v120
    v_cvt_pk_bf16_f32 v40, v40, v40
    v_and_b32 v40, 0xffff, v40
    v_readfirstlane_b32 s68, v40
    s_setpc_b64 s[98:99]
    """)

    a("L_roleL:")
    if prioL: a(f"s_setprio {prioL}")
    stamp(0)
    srd(48, 18, 0x4000000); srd(52, 20, 0x4000000); srd(56, 24, 0x400000); srd(64, 22, 0x400000)
    a("""
    v_lshrrev_b32 v4, 4, v0
    v_and_b32 v5, 15, v0
    """)
    for n in range(4):
        a(f"""
        v_add_u32 v6, {4*n}, v4
        v_xor_b32 v7, v6, v5
        v_lshlrev_b32 v7, 4, v7
        v_lshl_add_u32 v{20+n}, v4, 8, v7
        """)
    a(f"""
    v_lshrrev_b32 v4, 2, v0
    v_and_b32 v5, 3, v0
    v_lshlrev_b32 v5, 4, v5
    v_lshl_add_u32 v24, v4, 8, v5
    v_lshl_add_u32 v28, v4, 10, v5
    v_lshl_add_u32 v32, v4, 13, v5
    """)
    for n in range(1, 4):
        a(f"v_add_u32 v{24+n}, {n*(4096-1024)}, v24")
        a(f"v_add_u32 v{28+n}, {n*(16384-1024)}, v28")
        a(f"v_add_u32 v{32+n}, {n*(131072-1024)}, v32")
    a(f"""
    s_lshl_b32 s9, s8, 21
    s_add_u32 s9, s9, {6144*256}
    s_lshl_b32 s10, s7, 16
    s_add_u32 s96, s9, s10
    s_lshr_b32 s10, s7, 2
    s_lshl_b32 s10, s10, 18
    s_add_u32 s97, s9, s10
    s_and_b32 s10, s7, 3
    s_lshl_b32 s10, s10, 6
    s_add_u32 s97, s97, s10
    s_lshl_b32 s98, s4, 19
    s_sub_u32 s10, s5, 16
    s_lshl_b32 s10, s10, 6
    s_add_u32 s98, s98, s10
    s_lshl_b32 s99, s4, 10
    s_lshl_b32 s10, s5, 6
    s_add_u32 s99, s99, s10
    s_mov_b32 s43, 0
    s_mov_b32 s14, 0
    s_barrier
    s_cmp_ge_u32 s5, 16
    s_cbranch_scc1 L_L_wo
    """)
    def seg(ngroups, vbase, srdr, soff, ldsbase, gstep, D, first_free=0):
        L = a.label("Ls")
        if soff is not None: a(f"s_mov_b32 s94, {soff}")
        if ldsbase is not None: a(f"s_mov_b32 s95, {ldsbase}")
        a(f"s_mov_b32 s11, {ngroups}")
        a(f"""
        {L}:
        s_mov_b32 m0, s95
        s_sub_i32 s10, s43, {D-4}
        s_max_i32 s14, s10, s14
        v_mov_b32 v3, s14
        s_mov_b64 exec, 1
        s_waitcnt vmcnt({D-4})
        ds_write_b32 v2, v3 offset:{PROG}
        s_mov_b64 exec, -1
        """)
        for n in range(4):
            a(f"buffer_load_dwordx4 v{vbase+n}, s[{srdr}:{srdr+3}], s94 offen offset:{n*1024}{POL} lds")
        a(f"""
        s_add_u32 s94, s94, {gstep}
        s_add_u32 s95, s95, 4096
        s_add_u32 s43, s43, 4
        s_sub_u32 s11, s11, 1
        s_cmp_lg_u32 s11, 0
        s_cbranch_scc1 {L}
        """)
    def drain(D, total, stampat={}):
        for k in range(D - 4, -1, -4):
            a(f"s_waitcnt vmcnt({k})")
            lds_set(PROG, total - k)
            if total - k in stampat: stamp(stampat[total - k])
    seg(8, 32, 64, "s99", WQ_L, 4 * 131072, DWQ)
    seg(16, 20, 48, "s96", K_L, 4096, DQ)
    seg(8, 24, 52, "s97", V_L, 16384, DQ)
    stamp(1)
    lds_wait(FL_QPROJ, 1)
    seg(8, 24, 52, None, None, 16384, DQ)
    drain(DQ, 160, {160: 2})
    a("s_branch L_L_done")
    a("L_L_wo:")
    seg(NK0 // 4, 20, 48, "s96", K_L, 4096, DK0)
    seg(16 - NK0 // 4, 20, 48, None, None, 4096, DW)
    seg(8, 24, 52, "s97", V_L, 16384, DW)
    stamp(1)
    seg(8, 24, 52, None, None, 16384, DW)
    lds_wait(CNT_QK, 8)
    seg(8, 28, 56, "s98", WO_L, 4 * 16384, DW)
    stamp(2)
    drain(DW, 160, {160: 3})
    a("L_L_done:")
    dump_stamps()
    a("s_endpgm")

    a("L_roleT:")
    stamp(0)
    a("s_sub_u32 s9, s3, 10")
    srd(48, 28, 3584); srd(52, 30, 3584); srd(56, 32, 3584); srd(64, 34, 2)
    W1 = 8; B1 = 36; W2 = 64; TP = 80
    a(f"""
    v_lshlrev_b32 v4, 4, v0
    v_mov_b32 v5, 0
    s_cmp_lg_u32 s9, 0
    s_cbranch_scc1 L_T_wwait
    """)
    for k, sr in enumerate((48, 52, 56)):
        a(f"s_mov_b32 m0, {MISC + WT + 4096*k}")
        for i in range(4):
            a(f"buffer_load_dwordx4 v4, s[{sr}:{sr+3}], 0 offen offset:{1024*i} lds")
    a("s_barrier")
    a("s_waitcnt vmcnt(0)")
    lds_set(FL_WT, 1)
    a("s_branch L_T_wgo")
    a("L_T_wwait:")
    a("s_barrier")
    a("L_T_wgo:")
    a("buffer_load_ushort v6, v5, s[64:67], 0 offen")
    lds_wait(FL_WT, 1)
    stamp(10)
    a("v_lshl_add_u32 v4, v0, 3, v2")
    for i in range(7):
        a(f"ds_read_b64 v[{TP+2*i}:{TP+2*i+1}], v4 offset:{WT + 512*i}")
        a(f"ds_read_b64 v[{TP+14+2*i}:{TP+15+2*i}], v4 offset:{WT + 4096 + 512*i}")
    a("s_waitcnt lgkmcnt(0)")
    for i in range(7):
        a(f"ds_read_b64 v[{W2+2*i}:{W2+2*i+1}], v4 offset:{WT + 8192 + 512*i}")
    for i in range(14):
        unpack(W1 + 2*i, W1 + 2*i + 1, TP + i)
        unpack(B1 + 2*i, B1 + 2*i + 1, TP + 14 + i)
    a(f"""
    v_mov_b32 v80, {f32bits(GC0):#x}
    v_mov_b32 v81, {f32bits(GC0):#x}
    v_mov_b32 v82, 1.0
    v_mov_b32 v83, 1.0
    s_mov_b32 s92, {f32bits(GC1):#x}
    s_mov_b32 s93, {f32bits(GC1):#x}
    s_lshl_b32 s10, s2, 4
    s_lshl_b32 s11, s9, 2
    s_add_u32 s10, s10, s11
    s_lshr_b32 s11, s10, 11
    s_and_b32 s10, s10, 0x7ff
    s_add_u32 s10, s10, {e0 << 7}
    s_lshl_b32 s10, s10, 16
    s_lshl_b32 s11, s11, 31
    s_or_b32 s68, s10, s11
    s_mov_b32 s69, s68
    s_mov_b32 s11, 0
    """)
    get_tag()
    a(f"""
    v_mov_b32 v3, 1
    s_mov_b64 exec, 1
    ds_add_u32 v2, v3 offset:{CNT_WT}
    s_mov_b64 exec, -1
    L_T_tab:
    v_mov_b32 v107, v106
    v_mov_b32 v106, v105
    v_mov_b32 v105, v104
    v_mov_b32 v104, 0
    """)
    for p in range(0, 14, 2):
        gelu_pairs(a, [(W1 + 2*p, B1 + 2*p, W2 + p, 88), (W1 + 2*p + 2, B1 + 2*p + 2, W2 + p + 1, 96)], 104, "s[68:69]", "s[92:93]", 80, 82)
    a(f"""
    s_add_u32 s68, s68, 0x10000
    s_mov_b32 s69, s68
    s_add_u32 s11, s11, 1
    s_cmp_lt_u32 s11, 4
    s_cbranch_scc1 L_T_tab
    s_nop 2
    """)
    allreduce([104, 105, 106, 107], "add", [84, 85, 86, 87])
    for r in (104, 105, 106, 107): rbf(r, r)
    a(f"""
    s_waitcnt vmcnt(0)
    v_lshlrev_b32 v6, 16, v6
    v_add_f32 v104, v104, v6
    v_add_f32 v105, v105, v6
    v_add_f32 v106, v106, v6
    v_add_f32 v107, v107, v6
    v_cvt_pk_bf16_f32 v88, v107, v106
    v_cvt_pk_bf16_f32 v89, v105, v104
    v_mov_b32 v90, s60
    v_mov_b32 v91, s61
    s_lshl_b32 s10, s2, 2
    s_add_u32 s10, s10, s9
    s_lshl_b32 s10, s10, 4
    s_add_u32 s10, s10, {TG}
    s_mov_b64 exec, 1
    buffer_store_dwordx4 v[88:91], v5, s[44:47], s10 offen sc1
    s_mov_b64 exec, -1
    """)
    stamp(1)
    dump_stamps()
    a("s_endpgm")

    a("L_roleW:")
    a("s_setprio 2")
    stamp(0)
    a("s_sub_u32 s9, s3, 2")
    a("s_barrier")
    srd(64, 16, 4096)
    a(f"""
    v_and_b32 v7, 31, v0
    v_lshlrev_b32 v7, 2, v7
    s_lshl_b32 s10, s6, 10
    s_lshl_b32 s11, s9, 7
    s_add_u32 s10, s10, s11
    buffer_load_dword v96, v7, s[64:67], s10 offen
    """)
    get_tag()
    stamp(1)
    a(f"""
    v_and_b32 v4, 15, v0
    v_lshrrev_b32 v5, 4, v0
    v_xor_b32 v6, v4, v5
    v_lshlrev_b32 v6, 4, v6
    v_lshl_add_u32 v6, v4, 8, v6
    s_lshl_b32 s10, s9, 13
    v_add_u32 v8, s10, v6
    v_xor_b32 v9, 64, v8
    v_xor_b32 v10, 128, v8
    v_xor_b32 v11, 192, v8
    v_and_b32 v7, 3, v0
    v_lshlrev_b32 v12, 8, v7
    v_lshl_add_u32 v12, v5, 4, v12
    v_add_u32 v12, v12, v2
    v_mov_b32 v74, s60
    v_mov_b32 v75, s61
    v_mov_b32 v78, s60
    v_mov_b32 v79, s61
    v_mov_b32 v86, s60
    v_mov_b32 v87, s61
    s_lshl_b32 s64, s8, 15
    s_lshl_b32 s12, s7, 12
    s_add_u32 s64, s64, s12
    s_lshr_b32 s12, s9, 2
    s_lshl_b32 s12, s12, 11
    s_add_u32 s64, s64, s12
    s_and_b32 s12, s9, 3
    s_lshl_b32 s12, s12, 6
    s_add_u32 s64, s64, s12
    s_add_u32 s64, s64, {SG}
    s_add_u32 s69, s64, {MIRROR}
    s_lshl_b32 s65, s8, 12
    s_lshl_b32 s12, s7, 9
    s_add_u32 s65, s65, s12
    s_lshl_b32 s12, s9, 6
    s_add_u32 s65, s65, s12
    s_add_u32 s65, s65, {STG}
    s_add_u32 s68, s65, {MIRROR}
    v_lshlrev_b32 v13, 4, v7
    v_lshl_add_u32 v13, v5, 8, v13
    v_lshlrev_b32 v14, 4, v0
    s_lshl_b32 s11, s9, 3
    s_add_u32 s11, s11, s42
    s_add_u32 s11, s11, 8
    """)
    lds_wait(PROG, "s11")
    for T in range(2):
        for s in range(4):
            a(f"ds_read_b128 v[{32+16*T+4*s}:{35+16*T+4*s}], v{8+s} offset:{4096*T}")
    lds_wait(FL_QREADY, 1)
    stamp(2)
    for s in range(4):
        a(f"ds_read_b128 v[{16+4*s}:{19+4*s}], v12 offset:{QI + 64*s}")
    a(f"""
    v_mov_b32 v3, 1
    s_mov_b64 exec, 1
    ds_add_u32 v2, v3 offset:{CNT_QK}
    s_mov_b64 exec, -1
    s_mov_b32 s10, {f32bits(SCALE):#x}
    s_mov_b32 s11, {f32bits(LOG2E):#x}
    """)
    for s in range(4):
        a(f"s_waitcnt lgkmcnt({4 - s})")
        for T in range(2):
            c = "0" if s == 0 else f"v[{64+4*T}:{67+4*T}]"
            a(f"v_mfma_f32_16x16x32_bf16 v[{64+4*T}:{67+4*T}], v[{32+16*T+4*s}:{35+16*T+4*s}], v[{16+4*s}:{19+4*s}], {c}")
    for T in range(2):
        a(f"v_cvt_pk_bf16_f32 v{80+2*T}, v{64+4*T}, v{65+4*T}")
        a(f"v_cvt_pk_bf16_f32 v{81+2*T}, v{66+4*T}, v{67+4*T}")
    for i in range(4): unpack(64 + 2*i, 65 + 2*i, 80 + i)
    for i in range(8): a(f"v_mul_f32 v{64+i}, s10, v{64+i}")
    for T in range(2):
        a(f"v_cvt_pk_bf16_f32 v{72+4*T}, v{64+4*T}, v{65+4*T}")
        a(f"v_cvt_pk_bf16_f32 v{73+4*T}, v{66+4*T}, v{67+4*T}")
    a(f"""
    s_mov_b32 exec_lo, {MASK4}
    s_mov_b32 exec_hi, {MASK4}
    buffer_store_dwordx4 v[72:75], v13, s[44:47], s64 offen
    buffer_store_dwordx4 v[76:79], v13, s[44:47], s64 offen offset:1024
    s_mov_b64 exec, -1
    """)
    unpack(64, 65, 72); unpack(66, 67, 73); unpack(68, 69, 76); unpack(70, 71, 77)
    a(f"""
    v_max3_f32 v84, v64, v65, v66
    v_max3_f32 v85, v67, v68, v69
    v_max3_f32 v84, v84, v70, v71
    v_max_f32 v84, v84, v85
    """)
    xrow([84], "max", [88])
    for i in range(8): a(f"v_sub_f32 v{64+i}, v{64+i}, v84")
    for i in range(8): a(f"v_mul_f32 v{64+i}, s11, v{64+i}")
    for i in range(8): a(f"v_exp_f32 v{64+i}, v{64+i}")
    a(f"""
    v_add_f32 v85, v64, v65
    v_add_f32 v88, v66, v67
    v_add_f32 v89, v68, v69
    v_add_f32 v90, v70, v71
    v_add_f32 v85, v85, v88
    v_add_f32 v89, v89, v90
    v_add_f32 v85, v85, v89
    """)
    xrow([85], "add", [88])
    a(f"""
    s_mov_b64 exec, 15
    buffer_store_dwordx4 v[84:87], v14, s[44:47], s65 offen
    """)
    stamp(3)
    a(f"""
    buffer_store_dwordx4 v[84:87], v14, s[44:47], s68 offen sc1
    s_mov_b32 exec_lo, {MASK4}
    s_mov_b32 exec_hi, {MASK4}
    buffer_store_dwordx4 v[72:75], v13, s[44:47], s69 offen sc1
    buffer_store_dwordx4 v[76:79], v13, s[44:47], s69 offen offset:1024 sc1
    s_mov_b64 exec, -1
    s_lshl_b32 s10, s8, 15
    s_lshr_b32 s12, s7, 2
    s_lshl_b32 s12, s12, 14
    s_add_u32 s10, s10, s12
    s_lshl_b32 s12, s9, 11
    s_add_u32 s10, s10, s12
    s_add_u32 s66, s10, {SG}
    v_lshrrev_b32 v16, 2, v0
    v_lshlrev_b32 v17, 3, v7
    v_lshl_add_u32 v16, v16, 6, v17
    s_lshl_b32 s10, s9, 13
    s_add_u32 s10, s10, {V_L}
    v_add_u32 v17, s10, v16
    v_lshl_add_u32 v18, v7, 3, v2
    v_lshlrev_b32 v19, 7, v7
    v_lshl_add_u32 v19, v5, 4, v19
    s_lshl_b32 s10, s9, 9
    v_add3_u32 v19, v19, v2, s10
    s_lshl_b32 s64, s9, 3
    s_add_u32 s64, s64, s42
    s_add_u32 s64, s64, 72
    """)
    poll([(20, 14, "s66", 0), (24, 14, "s66", 1024)], dual=R0, trig=FL_STATS)
    stamp(4)
    unpack(28, 29, 20); unpack(30, 31, 21); unpack(32, 33, 24); unpack(34, 35, 25)
    a(f"""
    v_max3_f32 v38, v28, v29, v30
    v_max3_f32 v39, v31, v32, v33
    v_max3_f32 v38, v38, v34, v35
    v_max_f32 v38, v38, v39
    """)
    for i in range(8): a(f"v_sub_f32 v{28+i}, v{28+i}, v38")
    for i in range(8): a(f"v_mul_f32 v{28+i}, s11, v{28+i}")
    for i in range(8): a(f"v_exp_f32 v{28+i}, v{28+i}")
    lds_wait(CNT_WT, 4)
    lds_wait(PROG, "s64")
    for c in range(4):
        for dt in range(2):
            r = 56 + 8*c + 4*dt
            a(f"ds_read_b64_tr_b16 v[{r}:{r+1}], v17 offset:{2048*c + 32*dt}")
            a(f"ds_read_b64_tr_b16 v[{r+2}:{r+3}], v17 offset:{2048*c + 32*dt + 1024}")
        if c == 2: a("s_waitcnt lgkmcnt(8)")
    lds_wait(FL_STATS, 1, slp=0)
    stamp(5)
    a(f"""
    ds_read_b64 v[36:37], v18 offset:{ST}
    s_waitcnt lgkmcnt(0)
    v_sub_f32 v38, v38, v36
    v_mul_f32 v38, s11, v38
    v_exp_f32 v38, v38
    v_mul_f32 v38, v38, v37
    v_mov_b32 v39, v38
    """)
    for i in range(0, 8, 2): a(f"v_pk_mul_f32 v[{28+i}:{29+i}], v[{28+i}:{29+i}], v[38:39]")
    for i in range(4): a(f"v_cvt_pk_bf16_f32 v{40+i}, v{28+2*i}, v{29+2*i}")
    for c in range(4):
        if c:
            for i in range(4):
                a(f"v_mov_b32_dpp v{40+4*c+i}, v{40+i} row_shl:{4*c} row_mask:0xf bank_mask:0xf")
        for dt in range(2):
            r = 56 + 8*c + 4*dt
            cc = "0" if c == 0 else f"v[{88+4*dt}:{91+4*dt}]"
            a(f"v_mfma_f32_16x16x32_bf16 v[{88+4*dt}:{91+4*dt}], v[{r}:{r+3}], v[{40+4*c}:{43+4*c}], {cc}")
    a(f"""
    v_lshl_add_u32 v20, v0, 3, v2
    v_and_b32 v21, 1, v4
    v_lshlrev_b32 v21, 10, v21
    v_lshl_add_u32 v21, v5, 13, v21
    v_bfe_u32 v22, v4, 1, 2
    v_lshl_add_u32 v21, v22, 8, v21
    v_lshrrev_b32 v22, 3, v4
    v_lshl_add_u32 v21, v22, 6, v21
    s_lshl_b32 s10, s4, 15
    s_and_b32 s11, s7, 3
    s_lshl_b32 s11, s11, 11
    s_add_u32 s10, s10, s11
    s_lshr_b32 s11, s7, 2
    s_lshl_b32 s11, s11, 7
    s_add_u32 s10, s10, s11
    s_lshl_b32 s11, s6, 4
    s_add_u32 s10, s10, s11
    s_add_u32 s10, s10, {OG}
    s_add_u32 s11, s10, {MIRROR}
    s_mov_b32 exec_lo, {MASK4}
    s_mov_b32 exec_hi, {MASK4}
    ds_write_b128 v19, v[88:91] offset:{OS}
    ds_write_b128 v19, v[92:95] offset:{OS + 64}
    s_mov_b64 exec, -1
    """)
    lds_count(CNT_O)
    a(f"""
    s_cmp_lg_u32 s12, 7
    s_cbranch_scc1 L_W_onot
    """)
    def slot_sum(base):
        for w in range(8):
            a(f"ds_read_b64 v[{24+2*w}:{25+2*w}], v20 offset:{base + 512*w}")
        a("s_waitcnt lgkmcnt(0)")
        a("""
        v_pk_add_f32 v[24:25], v[24:25], v[26:27]
        v_pk_add_f32 v[28:29], v[28:29], v[30:31]
        v_pk_add_f32 v[32:33], v[32:33], v[34:35]
        v_pk_add_f32 v[36:37], v[36:37], v[38:39]
        v_mov_b32 v26, s60
        v_pk_add_f32 v[24:25], v[24:25], v[28:29]
        v_pk_add_f32 v[32:33], v[32:33], v[36:37]
        v_mov_b32 v27, s61
        v_pk_add_f32 v[24:25], v[24:25], v[32:33]
        """)
    slot_sum(OS)
    a(f"""
    buffer_store_dwordx4 v[24:27], v21, s[44:47], s10 offen
    buffer_store_dwordx4 v[24:27], v21, s[44:47], s11 offen sc1
    """)
    lds_set(FL_OPUB, 1)
    a("L_W_onot:")
    stamp(6)
    a("s_cmp_lt_u32 s5, 16")
    a("s_cbranch_scc1 L_W_qwg")
    a(f"""
    s_lshl_b32 s10, s4, 15
    s_lshl_b32 s11, s9, 12
    s_add_u32 s10, s10, s11
    s_add_u32 s66, s10, {OG}
    s_lshl_b32 s10, s9, 12
    v_add_u32 v17, s10, v16
    v_lshlrev_b32 v22, 4, v4
    v_lshl_add_u32 v22, v5, 15, v22
    s_lshl_b32 s10, s4, 12
    s_sub_u32 s11, s5, 16
    s_lshl_b32 s11, s11, 8
    s_add_u32 s10, s10, s11
    s_add_u32 s65, s10, {AG}
    """)
    lds_wait(PROG, 160)
    for e in range(2):
        for ct in range(2):
            r = 56 + 8*e + 4*ct
            a(f"ds_read_b64_tr_b16 v[{r}:{r+1}], v17 offset:{WO_L + 2048*e + 32*ct}")
            a(f"ds_read_b64_tr_b16 v[{r+2}:{r+3}], v17 offset:{WO_L + 2048*e + 32*ct + 1024}")
    lds_wait(FL_OPUB, 1)
    poll([(24, 14, "s66", 0), (28, 14, "s66", 1024), (32, 14, "s66", 2048), (36, 14, "s66", 3072)], sleep=SA, dual=R0)
    stamp(7)
    for r in (24, 25, 28, 29, 32, 33, 36, 37):
        a(f"v_add_f32_dpp v{r}, v{r}, v{r} row_ror:8 row_mask:0xf bank_mask:0xf")
    a(f"""
    v_cvt_pk_bf16_f32 v40, v24, v25
    v_cvt_pk_bf16_f32 v41, v28, v29
    v_cvt_pk_bf16_f32 v44, v32, v33
    v_cvt_pk_bf16_f32 v45, v36, v37
    v_mov_b32_dpp v42, v40 row_shl:4 row_mask:0xf bank_mask:0xf
    v_mov_b32_dpp v43, v41 row_shl:4 row_mask:0xf bank_mask:0xf
    v_mov_b32_dpp v46, v44 row_shl:4 row_mask:0xf bank_mask:0xf
    v_mov_b32_dpp v47, v45 row_shl:4 row_mask:0xf bank_mask:0xf
    """)
    for e in range(2):
        for ct in range(2):
            r = 56 + 8*e + 4*ct
            cc = "0" if e == 0 else f"v[{88+4*ct}:{91+4*ct}]"
            a(f"v_mfma_f32_16x16x32_bf16 v[{88+4*ct}:{91+4*ct}], v[{r}:{r+3}], v[{40+4*e}:{43+4*e}], {cc}")
    a(f"""
    s_mov_b32 exec_lo, {MASK4}
    s_mov_b32 exec_hi, {MASK4}
    ds_write_b128 v19, v[88:91] offset:{AS}
    ds_write_b128 v19, v[92:95] offset:{AS + 64}
    s_mov_b64 exec, -1
    """)
    lds_count(CNT_A)
    a(f"""
    s_cmp_lg_u32 s12, 7
    s_cbranch_scc1 L_W_done
    """)
    slot_sum(AS)
    a(f"""
    buffer_store_dwordx4 v[24:27], v22, s[44:47], s65 offen sc1
    s_branch L_W_done
    L_W_qwg:
    s_cmp_lg_u32 s4, 0
    s_cbranch_scc1 L_W_done
    s_cmp_ge_u32 s5, 4
    s_cbranch_scc1 L_W_done
    v_and_b32 v21, 31, v0
    v_lshlrev_b32 v22, 4, v21
    v_lshrrev_b32 v23, 5, v0
    v_lshl_add_u32 v22, v23, 14, v22
    s_lshl_b32 s10, s5, 15
    s_lshl_b32 s11, s9, 9
    s_add_u32 s10, s10, s11
    s_add_u32 s66, s10, {AG}
    s_add_u32 s67, s66, 4096
    s_add_u32 s68, s66, 8192
    s_add_u32 s69, s66, 12288
    s_lshl_b32 s10, s9, 8
    v_lshl_add_u32 v21, v21, 3, v2
    v_add_u32 v21, s10, v21
    v_lshlrev_b32 v44, 16, v96
    v_and_b32 v45, 0xffff0000, v96
    """)
    lds_wait(FL_OPUB, 1)
    poll([(24 + 4*i, 22, f"s{66+i}", 0) for i in range(4)], sleep=SB)
    stamp(8)
    a(f"""
    v_pk_add_f32 v[24:25], v[24:25], v[28:29]
    v_pk_add_f32 v[32:33], v[32:33], v[36:37]
    v_pk_add_f32 v[24:25], v[24:25], v[32:33]
    v_mov_b32 v26, v24
    v_mov_b32 v27, v25
    v_permlane32_swap_b32 v24, v26
    v_permlane32_swap_b32 v25, v27
    v_pk_add_f32 v[24:25], v[24:25], v[26:27]
    v_cvt_pk_bf16_f32 v26, v24, v25
    v_lshlrev_b32 v24, 16, v26
    v_and_b32 v25, 0xffff0000, v26
    v_pk_add_f32 v[24:25], v[24:25], v[44:45]
    v_cvt_pk_bf16_f32 v26, v24, v25
    v_lshlrev_b32 v24, 16, v26
    v_and_b32 v25, 0xffff0000, v26
    ds_write_b64 v21, v[24:25] offset:{ROW}
    v_mov_b32 v3, 1
    s_mov_b64 exec, 1
    ds_add_u32 v2, v3 offset:{CNT_ROW}
    s_mov_b64 exec, -1
    L_W_done:
    """)
    stamp(9)
    dump_stamps()
    a("L_end:")
    a("s_endpgm")
    a("L_code_end:")
    return wrap(a.text(), 256, 896, LDS_TOTAL, 128, denorm=True)

if __name__ == "__main__":
    import argparse
    ap = argparse.ArgumentParser()
    ap.add_argument("-o", default="t/k7.s"); ap.add_argument("--dbg", action="store_true"); ap.add_argument("--dbg2", action="store_true")
    ap.add_argument("--pol", default="nt"); ap.add_argument("--nopf", action="store_true")
    for n, d in (("dq", 20), ("dw", 16), ("dwq", 32), ("dk0", 8), ("nk0", 16), ("sq", 2), ("ss", 2), ("sa", 1), ("sb", 1), ("e0", 114), ("priol", 0), ("r0", 24)):
        ap.add_argument("--" + n, type=int, default=d)
    g = ap.parse_args()
    open(g.o, "w").write(gen(dbg=g.dbg, dbg2=g.dbg2, pol=g.pol, prefetch=not g.nopf, DQ=g.dq, DW=g.dw, DWQ=g.dwq, DK0=g.dk0, NK0=g.nk0,
                             SQ=g.sq, SS=g.ss, SA=g.sa, SB=g.sb, e0=g.e0, prioL=g.priol, R0=g.r0))
```

```python
import sys, struct
from asmgen import *

def f32bits(x): return struct.unpack("<I", struct.pack("<f", x))[0]

K_L = 0; V_L = 65536; WQ_L = 98304; WO_L = 0
MISC = 131072
XN = 0; QI = 4096; FL = 5120; ST = 5376; OS = 6144; AS = 10240; ROW = 14336; TAB = 16384; WT = 6144
LDS_TOTAL = MISC + 24576
FL_QPROJ = FL + 0; FL_QREADY = FL + 4; PROG = FL + 8; FL_STATS = FL + 20; CNT_QK = FL + 24; CNT_O = FL + 28
CNT_A = FL + 32; CNT_ROW = FL + 36; FL_OPUB = FL + 48; FL_WT = FL + 52; CNT_WT = FL + 56
QG = 0x10000; STG = 0x20000; OG = 0x40000; AG = 0x80000; TG = 0xA0000; SG = 0x100000; DBGA = 0x600000
WS_BYTES = 0x800000; MIRROR = 0x200000
TAB_E0 = 114
LOG2E = 1.4426950408889634
SCALE = 128 ** -0.5
GC0 = -2.0 * 0.7978845608028654 * LOG2E
GC1 = GC0 * 0.044715
MASK4 = "0x000f000f"

def gelu_pairs(a, items, acc, st, sc1, vc0, vone):
    for (w, b, w2, t) in items: a(f"v_pk_mul_f32 v[{t}:{t+1}], v[{w}:{w+1}], {st}")
    for (w, b, w2, t) in items: a(f"v_cvt_pk_bf16_f32 v{t+2}, v{t}, v{t+1}")
    for (w, b, w2, t) in items:
        a(f"v_lshlrev_b32 v{t}, 16, v{t+2}"); a(f"v_and_b32 v{t+1}, 0xffff0000, v{t+2}")
    for (w, b, w2, t) in items: a(f"v_pk_add_f32 v[{t}:{t+1}], v[{t}:{t+1}], v[{b}:{b+1}]")
    for (w, b, w2, t) in items: a(f"v_cvt_pk_bf16_f32 v{t+2}, v{t}, v{t+1}")
    for (w, b, w2, t) in items:
        a(f"v_lshlrev_b32 v{t}, 16, v{t+2}"); a(f"v_and_b32 v{t+1}, 0xffff0000, v{t+2}")
    for (w, b, w2, t) in items: a(f"v_pk_mul_f32 v[{t+2}:{t+3}], v[{t}:{t+1}], v[{t}:{t+1}]")
    for (w, b, w2, t) in items: a(f"v_pk_fma_f32 v[{t+2}:{t+3}], v[{t+2}:{t+3}], {sc1}, v[{vc0}:{vc0+1}]")
    for (w, b, w2, t) in items: a(f"v_pk_mul_f32 v[{t+2}:{t+3}], v[{t+2}:{t+3}], v[{t}:{t+1}]")
    for (w, b, w2, t) in items:
        a(f"v_exp_f32 v{t+2}, v{t+2}"); a(f"v_exp_f32 v{t+3}, v{t+3}")
    for (w, b, w2, t) in items: a(f"v_pk_add_f32 v[{t+2}:{t+3}], v[{t+2}:{t+3}], v[{vone}:{vone+1}]")
    for (w, b, w2, t) in items:
        a(f"v_rcp_f32 v{t+2}, v{t+2}"); a(f"v_rcp_f32 v{t+3}, v{t+3}")
    for (w, b, w2, t) in items: a(f"v_pk_mul_f32 v[{t+2}:{t+3}], v[{t+2}:{t+3}], v[{t}:{t+1}]")
    for (w, b, w2, t) in items: a(f"v_cvt_pk_bf16_f32 v{t+4}, v{t+2}, v{t+3}")
    for (w, b, w2, t) in items: a(f"v_dot2_f32_bf16 v{acc}, v{t+4}, v{w2}, v{acc}")

def gen(dbg=False, pol="nt", prefetch=True, DQ=20, DW=16, DWQ=32, DK0=8, NK0=16, SQ=2, SS=2, SA=1, SB=1, dbg2=False, e0=114, prioL=0, R0=24, WQD=-1, NSP=6):
    a = A()
    POL = " " + pol if pol else ""
    nstamp = [0]
    def stamp(i=None):
        if dbg:
            if i is None:
                i = nstamp[0]; nstamp[0] += 1
            a(f"s_memrealtime s[{70+2*i}:{71+2*i}]")
            a("s_waitcnt lgkmcnt(0)")
    def dump_stamps():
        if dbg:
            a("s_mov_b64 exec, -1")
            a("s_waitcnt vmcnt(0) lgkmcnt(0)")
            for i in range(12):
                a(f"v_mov_b32 v{100+i}, s{70+2*i}")
            a(f"""
            s_mul_i32 s10, s2, 14
            s_add_u32 s10, s10, s3
            s_mul_i32 s10, s10, 64
            s_add_u32 s10, s10, {DBGA}
            v_mov_b32 v99, s10
            s_mov_b64 exec, 1
            buffer_store_dwordx4 v[100:103], v99, s[44:47], 0 offen
            buffer_store_dwordx4 v[104:107], v99, s[44:47], 0 offen offset:16
            buffer_store_dwordx4 v[108:111], v99, s[44:47], 0 offen offset:32
            """)
        nstamp[0] = 0
    def srd(d, ptr, nbytes):
        a(f"""
        s_mov_b32 s{d}, s{ptr}
        s_and_b32 s{d+1}, s{ptr+1}, 0xffff
        s_mov_b32 s{d+2}, {nbytes}
        s_mov_b32 s{d+3}, 0x20000
        """)
    def lds_wait(off, val, vt=3, slp=1):
        L = a.label("Lw"); D = a.label("Lwd")
        a(f"""
        s_mov_b32 s13, 0x40000
        {L}:
        ds_read_b32 v{vt}, v2 offset:{off}
        s_waitcnt lgkmcnt(0)
        v_readfirstlane_b32 s12, v{vt}
        s_cmp_ge_u32 s12, {val}
        s_cbranch_scc1 {D}
        s_sub_u32 s13, s13, 1
        s_cbranch_scc1 {D}
        """)
        if slp: a(f"s_sleep {slp}")
        a(f"""
        s_branch {L}
        {D}:
        """)
    def lds_set(off, val, vt=3):
        a(f"""
        v_mov_b32 v{vt}, {val}
        s_mov_b64 exec, 1
        ds_write_b32 v2, v{vt} offset:{off}
        s_mov_b64 exec, -1
        """)
    def lds_count(off, vt=3):
        a(f"""
        v_mov_b32 v{vt}, 1
        s_mov_b64 exec, 1
        ds_add_rtn_u32 v{vt}, v2, v{vt} offset:{off}
        s_mov_b64 exec, -1
        s_waitcnt lgkmcnt(0)
        v_readfirstlane_b32 s12, v{vt}
        """)
    def dual_sel(R0):
        a(f"""
        s_and_b32 s12, s13, 1
        s_cmp_lt_u32 s13, {0x3fff - R0}
        s_cselect_b32 s12, s12, 0
        s_mul_i32 s12, s12, {MIRROR}
        s_add_u32 s67, s12, s66
        """)
    def poll(loads, sleep=2, dual=None, trig=None, nspin=6):
        a("s_mov_b32 s13, 0x3fff")
        L = a.label("Lp"); D = a.label("Lpd"); S = a.label("Lps")
        a(f"{L}:")
        if dual: dual_sel(dual)
        for (d, va, so, imm) in loads:
            a(f"buffer_load_dwordx4 v[{d}:{d+3}], v{va}, s[44:47], {'s67' if dual else so} offen offset:{imm} sc1")
        a("s_waitcnt vmcnt(0)")
        for i, (d, va, so, imm) in enumerate(loads):
            if i == 0:
                a(f"v_cmp_ne_u64 s[14:15], s[60:61], v[{d+2}:{d+3}]")
            else:
                a(f"v_cmp_ne_u64 vcc, s[60:61], v[{d+2}:{d+3}]")
                a("s_or_b64 s[14:15], s[14:15], vcc")
        a(f"""
        s_cmp_eq_u64 s[14:15], 0
        s_cbranch_scc1 {D}
        s_sub_u32 s13, s13, 1
        s_cbranch_scc1 {D}
        """)
        if trig is None:
            a(f"s_sleep {sleep}")
            a(f"s_branch {L}")
        else:
            a(f"""
            s_mov_b32 s14, {nspin}
            {S}:
            s_sleep 1
            ds_read_b32 v3, v2 offset:{trig}
            s_waitcnt lgkmcnt(0)
            v_readfirstlane_b32 s12, v3
            s_cmp_lg_u32 s12, 0
            s_cbranch_scc1 {L}
            s_sub_u32 s14, s14, 1
            s_cbranch_scc0 {S}
            s_branch {L}
            """)
        a(f"{D}:")
    def xrow(regs, op, tmps):
        for sw in ("v_permlane16_swap_b32", "v_permlane32_swap_b32"):
            for r, t in zip(regs, tmps): a(f"v_mov_b32 v{t}, v{r}")
            for r, t in zip(regs, tmps): a(f"{sw} v{r}, v{t}")
            for r, t in zip(regs, tmps): a(f"v_{op}_f32 v{r}, v{r}, v{t}")
    def allreduce(regs, op, tmps):
        for m in ("quad_perm:[1,0,3,2]", "quad_perm:[2,3,0,1]", "row_half_mirror", "row_mirror"):
            for r in regs:
                a(f"v_{op}_f32_dpp v{r}, v{r}, v{r} {m} row_mask:0xf bank_mask:0xf")
        xrow(regs, op, tmps)
    def rbf(dst, src):
        a(f"v_cvt_pk_bf16_f32 v{dst}, v{src}, v{src}")
        a(f"v_lshlrev_b32 v{dst}, 16, v{dst}")
    def unpack(dlo, dhi, src):
        a(f"v_lshlrev_b32 v{dlo}, 16, v{src}")
        a(f"v_and_b32 v{dhi}, 0xffff0000, v{src}")
    def layernorm4(rows, tmpb):
        n = len(rows)
        S = [tmpb + i for i in range(n)]; T = [tmpb + n + i for i in range(n)]; Mb = [tmpb + 2*n + i for i in range(n)]
        D = [tmpb + 3*n + 8*i for i in range(n)]
        for x, s, t in zip(rows, S, T):
            a(f"v_add_f32 v{s}, v{x}, v{x+1}"); a(f"v_add_f32 v{t}, v{x+2}, v{x+3}")
        for x, s, t in zip(rows, S, T):
            a(f"v_add_f32 v{s}, v{s}, v{x+4}"); a(f"v_add_f32 v{t}, v{t}, v{x+5}")
        for x, s, t in zip(rows, S, T):
            a(f"v_add_f32 v{s}, v{s}, v{x+6}"); a(f"v_add_f32 v{t}, v{t}, v{x+7}")
        for s, t in zip(S, T): a(f"v_add_f32 v{s}, v{s}, v{t}")
        allreduce(S, "add", T)
        for s in S: a(f"v_mul_f32 v{s}, {f32bits(1/512):#x}, v{s}")
        for x, s, d in zip(rows, S, D):
            for i in range(8): a(f"v_sub_f32 v{d+i}, v{x+i}, v{s}")
        for s, m in zip(S, Mb): rbf(m, s)
        for s, t, d in zip(S, T, D):
            a(f"v_mul_f32 v{s}, v{d}, v{d}"); a(f"v_mul_f32 v{t}, v{d+1}, v{d+1}")
        for i in range(2, 8, 2):
            for s, t, d in zip(S, T, D):
                a(f"v_fmac_f32 v{s}, v{d+i}, v{d+i}"); a(f"v_fmac_f32 v{t}, v{d+i+1}, v{d+i+1}")
        for s, t in zip(S, T): a(f"v_add_f32 v{s}, v{s}, v{t}")
        allreduce(S, "add", T)
        for s in S: a(f"v_mul_f32 v{s}, {f32bits(1/512):#x}, v{s}")
        for s in S: rbf(s, s)
        for s in S: a(f"v_add_f32 v{s}, {f32bits(1e-5):#x}, v{s}")
        for s in S: rbf(s, s)
        for s in S: a(f"v_sqrt_f32 v{s}, v{s}")
        for s in S: rbf(s, s)
        for s in S: a(f"v_rcp_f32 v{s}, v{s}")
        for x, m, d in zip(rows, Mb, D):
            for i in range(8): a(f"v_sub_f32 v{d+i}, v{x+i}, v{m}")
        for x, d in zip(rows, D):
            for i in range(0, 8, 2): a(f"v_cvt_pk_bf16_f32 v{x+i}, v{d+i}, v{d+i+1}")
        for x, d in zip(rows, D):
            for i in range(0, 8, 2): unpack(d+i, d+i+1, x+i)
        for s, d in zip(S, D):
            for i in range(8): a(f"v_mul_f32 v{d+i}, v{d+i}, v{s}")
        return D
    def layernorm1(x, t, outp, shift):
        d = t; s1 = t + 8; s2 = t + 10; u = t + 12
        if shift:
            for i in range(0, 8, 2):
                a(f"v_pk_add_f32 v[{d+i}:{d+i+1}], v[{x+i}:{x+i+1}], {shift} neg_lo:[0,1] neg_hi:[0,1]")
            src = d
        else: src = x
        a(f"""
        v_pk_add_f32 v[{s1}:{s1+1}], v[{src}:{src+1}], v[{src+2}:{src+3}]
        v_pk_mul_f32 v[{s2}:{s2+1}], v[{src}:{src+1}], v[{src}:{src+1}]
        v_pk_add_f32 v[{u}:{u+1}], v[{src+4}:{src+5}], v[{src+6}:{src+7}]
        v_pk_fma_f32 v[{s2}:{s2+1}], v[{src+2}:{src+3}], v[{src+2}:{src+3}], v[{s2}:{s2+1}]
        v_pk_add_f32 v[{s1}:{s1+1}], v[{s1}:{s1+1}], v[{u}:{u+1}]
        v_pk_fma_f32 v[{s2}:{s2+1}], v[{src+4}:{src+5}], v[{src+4}:{src+5}], v[{s2}:{s2+1}]
        v_add_f32 v{s1}, v{s1}, v{s1+1}
        v_pk_fma_f32 v[{s2}:{s2+1}], v[{src+6}:{src+7}], v[{src+6}:{src+7}], v[{s2}:{s2+1}]
        v_add_f32 v{s2}, v{s2}, v{s2+1}
        """)
        allreduce([s1, s2], "add", [u, u + 1])
        a(f"""
        v_mul_f32 v{s1}, {f32bits(1/512):#x}, v{s1}
        v_mul_f32 v{s2}, {f32bits(1/512):#x}, v{s2}
        v_fma_f32 v{s2}, -v{s1}, v{s1}, v{s2}
        v_max_f32 v{s2}, 0, v{s2}
        """)
        if shift: a(f"v_add_f32 v{s1}, {shift.replace('[','').split(':')[0]}, v{s1}")
        a(f"""
        v_cvt_pk_bf16_f32 v{u}, v{s1}, v{s2}
        v_and_b32 v{s2}, 0xffff0000, v{u}
        v_lshlrev_b32 v{s1}, 16, v{u}
        v_add_f32 v{s2}, {f32bits(1e-5):#x}, v{s2}
        v_mov_b32 v{s1+1}, v{s1}
        v_cvt_pk_bf16_f32 v{s2}, v{s2}, v{s2}
        """)
        for i in range(0, 4, 2):
            a(f"v_pk_add_f32 v[{d+i}:{d+i+1}], v[{x+i}:{x+i+1}], v[{s1}:{s1+1}] neg_lo:[0,1] neg_hi:[0,1]")
        a(f"v_lshlrev_b32 v{s2}, 16, v{s2}")
        for i in range(4, 8, 2):
            a(f"v_pk_add_f32 v[{d+i}:{d+i+1}], v[{x+i}:{x+i+1}], v[{s1}:{s1+1}] neg_lo:[0,1] neg_hi:[0,1]")
        a(f"v_sqrt_f32 v{s2}, v{s2}")
        for i in range(2): a(f"v_cvt_pk_bf16_f32 v{outp+i}, v{d+2*i}, v{d+2*i+1}")
        a(f"v_cvt_pk_bf16_f32 v{s2}, v{s2}, v{s2}")
        for i in range(2, 4): a(f"v_cvt_pk_bf16_f32 v{outp+i}, v{d+2*i}, v{d+2*i+1}")
        a(f"v_lshlrev_b32 v{s2}, 16, v{s2}")
        for i in range(2): unpack(d + 2*i, d + 2*i + 1, outp + i)
        a(f"v_rcp_f32 v{s2}, v{s2}")
        for i in range(2, 4): unpack(d + 2*i, d + 2*i + 1, outp + i)
        a(f"v_mov_b32 v{s2+1}, v{s2}")
        for i in range(0, 8, 2):
            a(f"v_pk_mul_f32 v[{d+i}:{d+i+1}], v[{d+i}:{d+i+1}], v[{s2}:{s2+1}]")
        for i in range(4): a(f"v_cvt_pk_bf16_f32 v{outp+i}, v{d+2*i}, v{d+2*i+1}")
    def get_tag():
        a("""
        s_waitcnt lgkmcnt(0)
        s_add_u32 s60, s62, 0x7f4a7c15
        s_addc_u32 s61, s63, 0x9e3779b9
        """)

    a(f"""
    s_cmp_ge_u32 s2, 256
    s_cbranch_scc1 L_end
    s_load_dwordx16 s[16:31], s[0:1], 0
    s_load_dwordx8 s[32:39], s[0:1], 64
    s_load_dwordx2 s[40:41], s[0:1], 96
    v_lshrrev_b32 v1, 6, v0
    v_and_b32 v0, 63, v0
    v_readfirstlane_b32 s3, v1
    v_mov_b32 v2, {MISC}
    v_lshl_add_u32 v3, v0, 2, v2
    v_mov_b32 v4, 0
    ds_write_b32 v3, v4 offset:{FL}
    s_and_b32 s4, s2, 7
    s_lshr_b32 s5, s2, 3
    s_and_b32 s6, s5, 3
    s_lshr_b32 s7, s5, 2
    s_lshl_b32 s8, s6, 3
    s_add_u32 s8, s8, s4
    s_cmp_lt_u32 s5, 16
    s_cselect_b32 s42, 32, 0
    s_waitcnt lgkmcnt(0)
    s_load_dwordx2 s[62:63], s[40:41], 0
    """)
    srd(44, 40, WS_BYTES)
    a("""
    s_cmp_eq_u32 s3, 0
    s_cbranch_scc1 L_roleL
    s_cmp_ge_u32 s3, 10
    s_cbranch_scc1 L_roleT
    s_cmp_eq_u32 s3, 1
    s_cbranch_scc0 L_roleW
    """)

    a("s_setprio 3")
    stamp()
    srd(48, 16, 4096); srd(56, 36, 4096)
    a(f"""
    v_lshlrev_b32 v4, 4, v0
    s_lshl_b32 s10, s6, 10
    """)
    for b in range(4):
        a(f"buffer_load_dwordx4 v[{8+4*b}:{11+4*b}], v4, s[48:51], 0 offen offset:{1024*b}")
    a("s_barrier")
    a("buffer_load_dwordx4 v[120:123], v4, s[56:59], s10 offen")
    if prefetch:
        a(f"""
        s_getpc_b64 s[10:11]
        L_pc_here:
        s_sub_u32 s10, s10, L_pc_here - {NAME}_kernel
        s_subb_u32 s11, s11, 0
        s_lshl_b32 s12, s5, 10
        v_add_u32 v7, s12, v4
        v_min_u32 v7, L_code_end - {NAME}_kernel - 16, v7
        global_load_dwordx4 v[124:127], v7, s[10:11]
        """)
    else:
        a("buffer_load_dwordx4 v[124:127], v4, s[56:59], s10 offen")
    a(f"""
    s_cmp_ge_u32 s5, 16
    s_cbranch_scc1 L_Q_gather
    s_waitcnt vmcnt(2)
    """)
    X = [24 + 8*b for b in range(4)]
    for b in range(4):
        for i in range(4): unpack(X[b] + 2*i, X[b] + 2*i + 1, 8 + 4*b + i)
    D = layernorm4(X, 56)
    for b in range(4):
        for i in range(4): a(f"v_cvt_pk_bf16_f32 v{8+4*b+i}, v{D[b]+2*i}, v{D[b]+2*i+1}")
    a("v_add_u32 v5, v4, v2")
    for b in range(4):
        a(f"ds_write_b128 v5, v[{8+4*b}:{11+4*b}] offset:{XN + 1024*b}")
    get_tag()
    stamp(1)
    a(f"""
    v_lshrrev_b32 v5, 2, v0
    v_and_b32 v6, 3, v0
    v_lshlrev_b32 v7, 3, v6
    v_lshl_add_u32 v5, v5, 6, v7
    v_add_u32 v5, {WQ_L}, v5
    v_lshrrev_b32 v7, 4, v0
    v_lshlrev_b32 v7, 3, v7
    v_lshl_add_u32 v6, v6, 10, v7
    v_add_u32 v6, v6, v2
    """)
    for i in range(16):
        a(f"ds_read2_b64 v[{8+4*i}:{11+4*i}], v6 offset0:{8*i} offset1:{8*i+4}")
        if i == 7: a("s_waitcnt lgkmcnt(0)")
    a(f"""
    v_and_b32 v6, 3, v0
    v_lshrrev_b32 v7, 4, v0
    v_lshlrev_b32 v7, 4, v7
    v_lshl_add_u32 v6, v6, 14, v7
    v_bfe_u32 v7, v0, 2, 1
    v_lshl_add_u32 v6, v7, 6, v6
    v_cmp_ne_u32 s[64:65], 0, v7
    s_lshl_b32 s10, s4, 11
    s_lshl_b32 s11, s5, 7
    s_add_u32 s10, s10, s11
    s_add_u32 s10, s10, {QG}
    s_add_u32 s11, s10, {MIRROR}
    v_mov_b32 v82, s60
    v_mov_b32 v83, s61
    """)
    for c in range(4):
        lds_wait(PROG, 8 * (c + 1), slp=(0 if c == 3 else 1))
        if c == 3: stamp(2)
        for ii in range(4):
            i = 4*c + ii
            for ct in range(2):
                r = 88 + 8*ii + 4*ct
                a(f"ds_read_b64_tr_b16 v[{r}:{r+1}], v5 offset:{2048*i + 32*ct}")
                a(f"ds_read_b64_tr_b16 v[{r+2}:{r+3}], v5 offset:{2048*i + 32*ct + 1024}")
            if ii == 2: a("s_waitcnt lgkmcnt(8)")
        for ii in range(4):
            i = 4*c + ii
            if ii: a(f"s_waitcnt lgkmcnt({12 - 4*ii})")
            for ct in range(2):
                r = 88 + 8*ii + 4*ct
                cc = "0" if i == 0 else f"v[{72+4*ct}:{75+4*ct}]"
                a(f"v_mfma_f32_16x16x32_bf16 v[{72+4*ct}:{75+4*ct}], v[{r}:{r+3}], v[{8+4*i}:{11+4*i}], {cc}")
    a(f"""
    v_cvt_pk_bf16_f32 v80, v72, v73
    v_cvt_pk_bf16_f32 v81, v74, v75
    v_cvt_pk_bf16_f32 v84, v76, v77
    v_cvt_pk_bf16_f32 v85, v78, v79
    v_cndmask_b32 v80, v80, v84, s[64:65]
    v_cndmask_b32 v81, v81, v85, s[64:65]
    s_mov_b32 exec_lo, 0x00ff00ff
    s_mov_b32 exec_hi, 0x00ff00ff
    buffer_store_dwordx4 v[80:83], v6, s[44:47], s10 offen
    """)
    stamp(3)
    a(f"""
    buffer_store_dwordx4 v[80:83], v6, s[44:47], s11 offen sc1
    s_mov_b64 exec, -1
    """)
    lds_set(FL_QPROJ, 1)
    a(f"""
    s_branch L_Q_gather2
    L_Q_gather:
    """)
    get_tag()
    a(f"""
    L_Q_gather2:
    s_lshl_b32 s10, s6, 14
    s_lshl_b32 s11, s4, 11
    s_add_u32 s10, s10, s11
    s_add_u32 s66, s10, {QG}
    v_lshl_add_u32 v5, v0, 3, v2
    """)
    poll([(8, 4, "s66", 0), (12, 4, "s66", 1024)], sleep=SQ, dual=R0)
    a(f"""
    ds_write_b64 v5, v[8:9] offset:{QI}
    ds_write_b64 v5, v[12:13] offset:{QI + 512}
    """)
    lds_set(FL_QREADY, 1)
    stamp(4)
    a(f"""
    s_lshl_b32 s10, s8, 12
    s_add_u32 s66, s10, {STG}
    s_mov_b32 s10, {f32bits(LOG2E):#x}
    """)
    poll([(8 + 4*i, 4, "s66", 1024*i) for i in range(4)], sleep=SS, dual=R0)
    a(f"""
    v_max_f32 v24, v8, v12
    v_max3_f32 v24, v24, v16, v20
    v_max_f32_dpp v24, v24, v24 row_ror:4 row_mask:0xf bank_mask:0xf
    v_max_f32_dpp v24, v24, v24 row_ror:8 row_mask:0xf bank_mask:0xf
    """)
    xrow([24], "max", [25])
    for i in range(4): a(f"v_sub_f32 v{26+i}, v{8+4*i}, v24")
    for i in range(4): a(f"v_mul_f32 v{26+i}, s10, v{26+i}")
    for i in range(4): a(f"v_exp_f32 v{26+i}, v{26+i}")
    a(f"""
    v_mul_f32 v30, v26, v9
    v_fmac_f32 v30, v27, v13
    v_fmac_f32 v30, v28, v17
    v_fmac_f32 v30, v29, v21
    v_add_f32_dpp v30, v30, v30 row_ror:4 row_mask:0xf bank_mask:0xf
    v_add_f32_dpp v30, v30, v30 row_ror:8 row_mask:0xf bank_mask:0xf
    """)
    xrow([30], "add", [25])
    a(f"""
    v_rcp_f32 v25, v30
    v_fma_f32 v31, -v30, v25, 1.0
    v_fmac_f32 v25, v31, v25
    s_mov_b64 exec, 15
    ds_write_b64 v5, v[24:25] offset:{ST}
    s_mov_b64 exec, -1
    """)
    lds_set(FL_STATS, 1)
    stamp(5)
    a(f"""
    s_cmp_lg_u32 s4, 0
    s_cbranch_scc1 L_Q_done
    s_cmp_ge_u32 s5, 4
    s_cbranch_scc1 L_Q_done
    s_setprio 0
    """)
    lds_wait(CNT_WT, 4)
    for bt in range(2):
        a(f"s_mov_b32 s66, {TG + bt * 8192}")
        a(f"s_mov_b32 s67, {TG + bt * 8192 + 4096}")
        poll([(8 + 4*i, 4, "s66" if i < 4 else "s67", 1024*(i & 3)) for i in range(8)], sleep=4)
        for i in range(8):
            a(f"ds_write_b64 v5, v[{8+4*i}:{9+4*i}] offset:{TAB + (bt * 8 + i) * 512}")
    stamp(6)
    FW1 = 64; FB1 = 92; FW2 = 106
    srd(64, 28, 3584); srd(48, 30, 3584); srd(52, 32, 3584)
    a("v_lshlrev_b32 v6, 3, v0")
    for i in range(7):
        a(f"buffer_load_dwordx2 v[{8+2*i}:{9+2*i}], v6, s[64:67], 0 offen offset:{512*i}")
        a(f"buffer_load_dwordx2 v[{FB1+2*i}:{FB1+2*i+1}], v6, s[48:51], 0 offen offset:{512*i}")
        a(f"buffer_load_dwordx2 v[{FW2+2*i}:{FW2+2*i+1}], v6, s[52:55], 0 offen offset:{512*i}")
    srd(64, 34, 2)
    a("v_mov_b32 v7, 0")
    a("buffer_load_ushort v120, v7, s[64:67], 0 offen")
    a("s_waitcnt vmcnt(0)")
    for i in range(14):
        unpack(FW1 + 2*i, FW1 + 2*i + 1, 8 + i)
    a(f"""
    v_lshlrev_b32 v120, 16, v120
    v_lshl_add_u32 v5, v0, 5, v2
    s_mov_b32 s10, 0x08000800
    s_mov_b32 s11, {(e0 << 7) | (e0 << 23):#x}
    s_lshl_b32 s65, s5, 10
    s_setprio 3
    """)
    lds_wait(CNT_ROW, 8, slp=0)
    stamp(7)
    a(f"""
    ds_read_b128 v[32:35], v5 offset:{ROW}
    ds_read_b128 v[36:39], v5 offset:{ROW + 16}
    s_waitcnt lgkmcnt(0)
    v_readfirstlane_b32 s68, v32
    s_mov_b32 s69, s68
    """)
    layernorm1(32, 46, 16, "s[68:69]")
    for i in range(4): unpack(24 + 2*i, 25 + 2*i, 16 + i)
    layernorm1(24, 46, 16, None)
    for i in range(4):
        a(f"v_and_b32 v{40+i}, 0x7fff7fff, v{16+i}")
    for i in range(4):
        a(f"v_pk_sub_u16 v{40+i}, v{40+i}, s11")
    for i in range(4):
        a(f"v_lshrrev_b32 v{44+i}, 4, v{16+i}")
    a("v_or3_b32 v3, v40, v41, v42")
    for i in range(4):
        a(f"v_and_b32 v{44+i}, s10, v{44+i}")
    a("v_or_b32 v3, v3, v43")
    a("v_and_b32 v3, 0xf800f800, v3")
    a("s_mov_b32 s12, 0x07ff07ff")
    for i in range(4):
        a(f"v_and_or_b32 v{40+i}, v{40+i}, s12, v{44+i}")
    a("v_cmp_ne_u32 s[14:15], 0, v3")
    for i in range(4):
        a(f"v_and_b32 v{44+i}, 0xffff, v{40+i}")
        a(f"v_lshrrev_b32 v{40+i}, 16, v{40+i}")
        a(f"v_lshl_add_u32 v{44+i}, v{44+i}, 1, v2")
        a(f"v_lshl_add_u32 v{40+i}, v{40+i}, 1, v2")
        a(f"ds_read_u16 v{48+2*i}, v{44+i} offset:{TAB}")
        a(f"ds_read_u16 v{49+2*i}, v{40+i} offset:{TAB}")
    a(f"""
    s_cmp_eq_u64 s[14:15], 0
    s_waitcnt lgkmcnt(0)
    s_cbranch_scc0 L_Q_fb
    L_Q_nofb:
    """)
    for i in range(8): a(f"v_lshlrev_b32 v{48+i}, 16, v{48+i}")
    for i in range(0, 8, 2): a(f"v_pk_add_f32 v[{48+i}:{49+i}], v[{48+i}:{49+i}], v[{32+i}:{33+i}]")
    for i in range(4): a(f"v_cvt_pk_bf16_f32 v{16+i}, v{48+2*i}, v{49+2*i}")
    a(f"""
    buffer_store_dwordx4 v[16:19], v4, s[56:59], s65 offen
    s_cmp_lg_u32 s5, 0
    s_cbranch_scc1 L_Q_done
    v_mov_b32 v8, s60
    v_mov_b32 v9, s61
    v_mov_b32 v10, 0
    s_mov_b64 exec, 1
    buffer_store_dwordx2 v[8:9], v10, s[44:47], 0 offen
    s_mov_b64 exec, -1
    L_Q_done:
    """)
    stamp(8)
    if dbg2:
        srd(48, 38, 256)
        a("s_cmp_lg_u32 s2, 0")
        a("s_cbranch_scc1 L_Q_nodbg")
        for i in range(9):
            a(f"s_sub_u32 s10, s{70+2*i}, s70")
            a(f"v_mov_b32 v{100+i}, s10")
        a("""
        v_mov_b32 v99, 0
        s_mov_b64 exec, 1
        buffer_store_dwordx4 v[100:103], v99, s[48:51], 0 offen
        buffer_store_dwordx4 v[104:107], v99, s[48:51], 0 offen offset:16
        buffer_store_dword v108, v99, s[48:51], 0 offen offset:32
        s_mov_b64 exec, -1
        L_Q_nodbg:
        """)
    dump_stamps()
    a("s_endpgm")
    a("L_Q_fb:")
    for i in range(4):
        a(f"v_and_b32 v{24+2*i}, 0xffff, v{16+i}")
        a(f"v_lshrrev_b32 v{25+2*i}, 16, v{16+i}")
    a(f"""
    s_movk_i32 s10, 0x800
    v_mov_b32 v42, {f32bits(GC0):#x}
    v_mov_b32 v43, {f32bits(GC0):#x}
    v_mov_b32 v44, 1.0
    v_mov_b32 v45, 1.0
    s_mov_b32 s92, {f32bits(GC1):#x}
    s_mov_b32 s93, {f32bits(GC1):#x}
    """)
    for i in range(8):
        Lf = a.label("Lfb"); Ld = a.label("Lfbd")
        a(f"""
        v_and_b32 v46, 0x7fff, v{24+i}
        v_subrev_u32 v46, {e0 << 7}, v46
        v_cmp_le_u32 s[94:95], s10, v46
        {Lf}:
        s_cmp_eq_u64 s[94:95], 0
        s_cbranch_scc1 {Ld}
        s_ff1_i32_b64 s96, s[94:95]
        s_bitset0_b64 s[94:95], s96
        s_mov_b32 m0, s96
        s_nop 1
        v_readlane_b32 s68, v{24+i}, m0
        s_call_b64 s[98:99], L_eval
        s_nop 3
        v_writelane_b32 v{48+i}, s68, m0
        s_branch {Lf}
        {Ld}:
        """)
    a("s_nop 1")
    a("s_branch L_Q_nofb")
    a(f"""
    L_eval:
    s_nop 3
    s_lshl_b32 s68, s68, 16
    s_mov_b32 s69, s68
    v_mov_b32 v40, 0
    """)
    for p in range(0, 14, 2):
        unpack(14, 15, FB1 + p); unpack(62, 63, FB1 + p + 1)
        gelu_pairs(a, [(FW1 + 2*p, 14, FW2 + p, 8), (FW1 + 2*p + 2, 62, FW2 + p + 1, 56)], 40, "s[68:69]", "s[92:93]", 42, 44)
    allreduce([40], "add", [41])
    rbf(40, 40)
    a(f"""
    v_add_f32 v40, v40, v120
    v_cvt_pk_bf16_f32 v40, v40, v40
    v_and_b32 v40, 0xffff, v40
    v_readfirstlane_b32 s68, v40
    s_setpc_b64 s[98:99]
    """)

    a("L_roleL:")
    if prioL: a(f"s_setprio {prioL}")
    stamp(0)
    srd(48, 18, 0x4000000); srd(52, 20, 0x4000000); srd(56, 24, 0x400000); srd(64, 22, 0x400000)
    a("""
    v_lshrrev_b32 v4, 4, v0
    v_and_b32 v5, 15, v0
    """)
    for n in range(4):
        a(f"""
        v_add_u32 v6, {4*n}, v4
        v_xor_b32 v7, v6, v5
        v_lshlrev_b32 v7, 4, v7
        v_lshl_add_u32 v{20+n}, v4, 8, v7
        """)
    a(f"""
    v_lshrrev_b32 v4, 2, v0
    v_and_b32 v5, 3, v0
    v_lshlrev_b32 v5, 4, v5
    v_lshl_add_u32 v24, v4, 8, v5
    v_lshl_add_u32 v28, v4, 10, v5
    v_lshl_add_u32 v32, v4, 13, v5
    """)
    for n in range(1, 4):
        a(f"v_add_u32 v{24+n}, {n*(4096-1024)}, v24")
        a(f"v_add_u32 v{28+n}, {n*(16384-1024)}, v28")
        a(f"v_add_u32 v{32+n}, {n*(131072-1024)}, v32")
    a(f"""
    s_lshl_b32 s9, s8, 21
    s_add_u32 s9, s9, {6144*256}
    s_lshl_b32 s10, s7, 16
    s_add_u32 s96, s9, s10
    s_lshr_b32 s10, s7, 2
    s_lshl_b32 s10, s10, 18
    s_add_u32 s97, s9, s10
    s_and_b32 s10, s7, 3
    s_lshl_b32 s10, s10, 6
    s_add_u32 s97, s97, s10
    s_lshl_b32 s98, s4, 19
    s_sub_u32 s10, s5, 16
    s_lshl_b32 s10, s10, 6
    s_add_u32 s98, s98, s10
    s_lshl_b32 s99, s4, 10
    s_lshl_b32 s10, s5, 6
    s_add_u32 s99, s99, s10
    s_mov_b32 s43, 0
    s_mov_b32 s14, 0
    s_barrier
    s_cmp_ge_u32 s5, 16
    s_cbranch_scc1 L_L_wo
    """)
    def seg(ngroups, vbase, srdr, soff, ldsbase, gstep, D, first_free=0):
        L = a.label("Ls")
        if soff is not None: a(f"s_mov_b32 s94, {soff}")
        if ldsbase is not None: a(f"s_mov_b32 s95, {ldsbase}")
        a(f"s_mov_b32 s11, {ngroups}")
        a(f"""
        {L}:
        s_mov_b32 m0, s95
        s_sub_i32 s10, s43, {D-4}
        s_max_i32 s14, s10, s14
        v_mov_b32 v3, s14
        s_mov_b64 exec, 1
        s_waitcnt vmcnt({D-4})
        ds_write_b32 v2, v3 offset:{PROG}
        s_mov_b64 exec, -1
        """)
        for n in range(4):
            a(f"buffer_load_dwordx4 v{vbase+n}, s[{srdr}:{srdr+3}], s94 offen offset:{n*1024}{POL} lds")
        a(f"""
        s_add_u32 s94, s94, {gstep}
        s_add_u32 s95, s95, 4096
        s_add_u32 s43, s43, 4
        s_sub_u32 s11, s11, 1
        s_cmp_lg_u32 s11, 0
        s_cbranch_scc1 {L}
        """)
    def drain(D, total, stampat={}):
        for k in range(D - 4, -1, -4):
            a(f"s_waitcnt vmcnt({k})")
            lds_set(PROG, total - k)
            if total - k in stampat: stamp(stampat[total - k])
    seg(8, 32, 64, "s99", WQ_L, 4 * 131072, DWQ)
    if WQD >= 0:
        for k in range(24, WQD - 1, -8):
            a(f"s_waitcnt vmcnt({k})")
            lds_set(PROG, 32 - k)
        a(f"s_mov_b32 s14, {32 - WQD}")
    seg(16, 20, 48, "s96", K_L, 4096, DQ)
    seg(8, 24, 52, "s97", V_L, 16384, DQ)
    stamp(1)
    lds_wait(FL_QPROJ, 1)
    seg(8, 24, 52, None, None, 16384, DQ)
    drain(DQ, 160, {160: 2})
    a("s_branch L_L_done")
    a("L_L_wo:")
    seg(NK0 // 4, 20, 48, "s96", K_L, 4096, DK0)
    seg(16 - NK0 // 4, 20, 48, None, None, 4096, DW)
    seg(8, 24, 52, "s97", V_L, 16384, DW)
    stamp(1)
    seg(8, 24, 52, None, None, 16384, DW)
    lds_wait(CNT_QK, 8)
    seg(8, 28, 56, "s98", WO_L, 4 * 16384, DW)
    stamp(2)
    drain(DW, 160, {160: 3})
    a("L_L_done:")
    dump_stamps()
    a("s_endpgm")

    a("L_roleT:")
    stamp(0)
    a("s_sub_u32 s9, s3, 10")
    srd(48, 28, 3584); srd(52, 30, 3584); srd(56, 32, 3584); srd(64, 34, 2)
    W1 = 8; B1 = 36; W2 = 64; TP = 80
    a(f"""
    v_lshlrev_b32 v4, 4, v0
    v_mov_b32 v5, 0
    s_cmp_lg_u32 s9, 0
    s_cbranch_scc1 L_T_wwait
    """)
    for k, sr in enumerate((48, 52, 56)):
        a(f"s_mov_b32 m0, {MISC + WT + 4096*k}")
        for i in range(4):
            a(f"buffer_load_dwordx4 v4, s[{sr}:{sr+3}], 0 offen offset:{1024*i} lds")
    a("s_barrier")
    a("s_waitcnt vmcnt(0)")
    lds_set(FL_WT, 1)
    a("s_branch L_T_wgo")
    a("L_T_wwait:")
    a("s_barrier")
    a("L_T_wgo:")
    a("buffer_load_ushort v6, v5, s[64:67], 0 offen")
    lds_wait(FL_WT, 1)
    stamp(10)
    a("v_lshl_add_u32 v4, v0, 3, v2")
    for i in range(7):
        a(f"ds_read_b64 v[{TP+2*i}:{TP+2*i+1}], v4 offset:{WT + 512*i}")
        a(f"ds_read_b64 v[{TP+14+2*i}:{TP+15+2*i}], v4 offset:{WT + 4096 + 512*i}")
    a("s_waitcnt lgkmcnt(0)")
    for i in range(7):
        a(f"ds_read_b64 v[{W2+2*i}:{W2+2*i+1}], v4 offset:{WT + 8192 + 512*i}")
    for i in range(14):
        unpack(W1 + 2*i, W1 + 2*i + 1, TP + i)
        unpack(B1 + 2*i, B1 + 2*i + 1, TP + 14 + i)
    a(f"""
    v_mov_b32 v80, {f32bits(GC0):#x}
    v_mov_b32 v81, {f32bits(GC0):#x}
    v_mov_b32 v82, 1.0
    v_mov_b32 v83, 1.0
    s_mov_b32 s92, {f32bits(GC1):#x}
    s_mov_b32 s93, {f32bits(GC1):#x}
    s_lshl_b32 s10, s2, 4
    s_lshl_b32 s11, s9, 2
    s_add_u32 s10, s10, s11
    s_lshr_b32 s11, s10, 11
    s_and_b32 s10, s10, 0x7ff
    s_add_u32 s10, s10, {e0 << 7}
    s_lshl_b32 s10, s10, 16
    s_lshl_b32 s11, s11, 31
    s_or_b32 s68, s10, s11
    s_mov_b32 s69, s68
    s_mov_b32 s11, 0
    """)
    get_tag()
    a(f"""
    v_mov_b32 v3, 1
    s_mov_b64 exec, 1
    ds_add_u32 v2, v3 offset:{CNT_WT}
    s_mov_b64 exec, -1
    L_T_tab:
    v_mov_b32 v107, v106
    v_mov_b32 v106, v105
    v_mov_b32 v105, v104
    v_mov_b32 v104, 0
    """)
    for p in range(0, 14, 2):
        gelu_pairs(a, [(W1 + 2*p, B1 + 2*p, W2 + p, 88), (W1 + 2*p + 2, B1 + 2*p + 2, W2 + p + 1, 96)], 104, "s[68:69]", "s[92:93]", 80, 82)
    a(f"""
    s_add_u32 s68, s68, 0x10000
    s_mov_b32 s69, s68
    s_add_u32 s11, s11, 1
    s_cmp_lt_u32 s11, 4
    s_cbranch_scc1 L_T_tab
    s_nop 2
    """)
    allreduce([104, 105, 106, 107], "add", [84, 85, 86, 87])
    for r in (104, 105, 106, 107): rbf(r, r)
    a(f"""
    s_waitcnt vmcnt(0)
    v_lshlrev_b32 v6, 16, v6
    v_add_f32 v104, v104, v6
    v_add_f32 v105, v105, v6
    v_add_f32 v106, v106, v6
    v_add_f32 v107, v107, v6
    v_cvt_pk_bf16_f32 v88, v107, v106
    v_cvt_pk_bf16_f32 v89, v105, v104
    v_mov_b32 v90, s60
    v_mov_b32 v91, s61
    s_lshl_b32 s10, s2, 2
    s_add_u32 s10, s10, s9
    s_lshl_b32 s10, s10, 4
    s_add_u32 s10, s10, {TG}
    s_mov_b64 exec, 1
    buffer_store_dwordx4 v[88:91], v5, s[44:47], s10 offen sc1
    s_mov_b64 exec, -1
    """)
    stamp(1)
    dump_stamps()
    a("s_endpgm")

    a("L_roleW:")
    a("s_setprio 2")
    stamp(0)
    a("s_sub_u32 s9, s3, 2")
    a("s_barrier")
    srd(64, 16, 4096)
    a(f"""
    v_and_b32 v7, 31, v0
    v_lshlrev_b32 v7, 2, v7
    s_lshl_b32 s10, s6, 10
    s_lshl_b32 s11, s9, 7
    s_add_u32 s10, s10, s11
    buffer_load_dword v96, v7, s[64:67], s10 offen
    """)
    get_tag()
    stamp(1)
    a(f"""
    v_and_b32 v4, 15, v0
    v_lshrrev_b32 v5, 4, v0
    v_xor_b32 v6, v4, v5
    v_lshlrev_b32 v6, 4, v6
    v_lshl_add_u32 v6, v4, 8, v6
    s_lshl_b32 s10, s9, 13
    v_add_u32 v8, s10, v6
    v_xor_b32 v9, 64, v8
    v_xor_b32 v10, 128, v8
    v_xor_b32 v11, 192, v8
    v_and_b32 v7, 3, v0
    v_lshlrev_b32 v12, 8, v7
    v_lshl_add_u32 v12, v5, 4, v12
    v_add_u32 v12, v12, v2
    v_mov_b32 v74, s60
    v_mov_b32 v75, s61
    s_lshl_b32 s64, s8, 15
    s_lshl_b32 s12, s7, 12
    s_add_u32 s64, s64, s12
    s_lshr_b32 s12, s9, 2
    s_lshl_b32 s12, s12, 11
    s_add_u32 s64, s64, s12
    s_and_b32 s12, s9, 3
    s_lshl_b32 s12, s12, 6
    s_add_u32 s64, s64, s12
    s_add_u32 s64, s64, {SG}
    s_lshl_b32 s65, s8, 12
    s_lshl_b32 s12, s7, 9
    s_add_u32 s65, s65, s12
    s_lshl_b32 s12, s9, 6
    s_add_u32 s65, s65, s12
    s_add_u32 s65, s65, {STG}
    v_lshlrev_b32 v13, 4, v7
    v_add_u32 v15, s65, v13
    v_lshl_add_u32 v13, v5, 8, v13
    v_add_u32 v13, s64, v13
    v_bfe_u32 v14, v0, 2, 2
    v_cmp_eq_u32 s[64:65], 1, v14
    v_cmp_eq_u32 s[68:69], 2, v14
    v_add_u32 v14, 1024, v13
    v_cndmask_b32 v13, v13, v14, s[64:65]
    v_cndmask_b32 v13, v13, v15, s[68:69]
    v_lshlrev_b32 v14, 4, v0
    s_lshl_b32 s11, s9, 3
    s_add_u32 s11, s11, s42
    s_add_u32 s11, s11, 8
    """)
    lds_wait(PROG, "s11")
    for T in range(2):
        for s in range(4):
            a(f"ds_read_b128 v[{32+16*T+4*s}:{35+16*T+4*s}], v{8+s} offset:{4096*T}")
    lds_wait(FL_QREADY, 1)
    stamp(2)
    for s in range(4):
        a(f"ds_read_b128 v[{16+4*s}:{19+4*s}], v12 offset:{QI + 64*s}")
    a(f"""
    v_mov_b32 v3, 1
    s_mov_b64 exec, 1
    ds_add_u32 v2, v3 offset:{CNT_QK}
    s_mov_b64 exec, -1
    s_mov_b32 s10, {f32bits(SCALE):#x}
    s_mov_b32 s11, {f32bits(LOG2E):#x}
    """)
    for s in range(4):
        a(f"s_waitcnt lgkmcnt({4 - s})")
        for T in range(2):
            c = "0" if s == 0 else f"v[{64+4*T}:{67+4*T}]"
            a(f"v_mfma_f32_16x16x32_bf16 v[{64+4*T}:{67+4*T}], v[{32+16*T+4*s}:{35+16*T+4*s}], v[{16+4*s}:{19+4*s}], {c}")
    for T in range(2):
        a(f"v_cvt_pk_bf16_f32 v{80+2*T}, v{64+4*T}, v{65+4*T}")
        a(f"v_cvt_pk_bf16_f32 v{81+2*T}, v{66+4*T}, v{67+4*T}")
    for i in range(4): unpack(64 + 2*i, 65 + 2*i, 80 + i)
    for i in range(8): a(f"v_mul_f32 v{64+i}, s10, v{64+i}")
    for T in range(2):
        a(f"v_cvt_pk_bf16_f32 v{72+4*T}, v{64+4*T}, v{65+4*T}")
        a(f"v_cvt_pk_bf16_f32 v{73+4*T}, v{66+4*T}, v{67+4*T}")
    unpack(64, 65, 72); unpack(66, 67, 73); unpack(68, 69, 76); unpack(70, 71, 77)
    a("v_cndmask_b32 v72, v72, v76, s[64:65]")
    a("v_cndmask_b32 v73, v73, v77, s[64:65]")
    a(f"""
    v_max3_f32 v84, v64, v65, v66
    v_max3_f32 v85, v67, v68, v69
    v_max3_f32 v84, v84, v70, v71
    v_max_f32 v84, v84, v85
    """)
    xrow([84], "max", [88])
    for i in range(8): a(f"v_sub_f32 v{64+i}, v{64+i}, v84")
    for i in range(8): a(f"v_mul_f32 v{64+i}, s11, v{64+i}")
    for i in range(8): a(f"v_exp_f32 v{64+i}, v{64+i}")
    a(f"""
    v_add_f32 v85, v64, v65
    v_add_f32 v88, v66, v67
    v_add_f32 v89, v68, v69
    v_add_f32 v90, v70, v71
    v_add_f32 v85, v85, v88
    v_add_f32 v89, v89, v90
    v_add_f32 v85, v85, v89
    """)
    xrow([85], "add", [88])
    a(f"""
    v_cndmask_b32 v72, v72, v84, s[68:69]
    v_cndmask_b32 v73, v73, v85, s[68:69]
    s_mov_b32 exec_lo, 0x00ff0fff
    s_mov_b32 exec_hi, 0x00ff00ff
    s_mov_b32 s12, {MIRROR}
    buffer_store_dwordx4 v[72:75], v13, s[44:47], 0 offen
    """)
    stamp(3)
    a(f"""
    buffer_store_dwordx4 v[72:75], v13, s[44:47], s12 offen sc1
    s_mov_b64 exec, -1
    s_lshl_b32 s10, s8, 15
    s_lshr_b32 s12, s7, 2
    s_lshl_b32 s12, s12, 14
    s_add_u32 s10, s10, s12
    s_lshl_b32 s12, s9, 11
    s_add_u32 s10, s10, s12
    s_add_u32 s66, s10, {SG}
    v_lshrrev_b32 v16, 2, v0
    v_lshlrev_b32 v17, 3, v7
    v_lshl_add_u32 v16, v16, 6, v17
    s_lshl_b32 s10, s9, 13
    s_add_u32 s10, s10, {V_L}
    v_add_u32 v17, s10, v16
    v_lshl_add_u32 v18, v7, 3, v2
    v_lshlrev_b32 v19, 7, v7
    v_lshl_add_u32 v19, v5, 4, v19
    s_lshl_b32 s10, s9, 9
    v_add3_u32 v19, v19, v2, s10
    s_lshl_b32 s64, s9, 3
    s_add_u32 s64, s64, s42
    s_add_u32 s64, s64, 72
    """)
    poll([(20, 14, "s66", 0), (24, 14, "s66", 1024)], dual=R0, trig=FL_STATS, nspin=NSP)
    stamp(4)
    unpack(28, 29, 20); unpack(30, 31, 21); unpack(32, 33, 24); unpack(34, 35, 25)
    a(f"""
    v_max3_f32 v38, v28, v29, v30
    v_max3_f32 v39, v31, v32, v33
    v_max3_f32 v38, v38, v34, v35
    v_max_f32 v38, v38, v39
    """)
    for i in range(8): a(f"v_sub_f32 v{28+i}, v{28+i}, v38")
    for i in range(8): a(f"v_mul_f32 v{28+i}, s11, v{28+i}")
    for i in range(8): a(f"v_exp_f32 v{28+i}, v{28+i}")
    lds_wait(CNT_WT, 4)
    lds_wait(PROG, "s64")
    for c in range(4):
        for dt in range(2):
            r = 56 + 8*c + 4*dt
            a(f"ds_read_b64_tr_b16 v[{r}:{r+1}], v17 offset:{2048*c + 32*dt}")
            a(f"ds_read_b64_tr_b16 v[{r+2}:{r+3}], v17 offset:{2048*c + 32*dt + 1024}")
        if c == 2: a("s_waitcnt lgkmcnt(8)")
    lds_wait(FL_STATS, 1, slp=0)
    stamp(5)
    a(f"""
    ds_read_b64 v[36:37], v18 offset:{ST}
    s_waitcnt lgkmcnt(0)
    v_sub_f32 v38, v38, v36
    v_mul_f32 v38, s11, v38
    v_exp_f32 v38, v38
    v_mul_f32 v38, v38, v37
    v_mov_b32 v39, v38
    """)
    for i in range(0, 8, 2): a(f"v_pk_mul_f32 v[{28+i}:{29+i}], v[{28+i}:{29+i}], v[38:39]")
    for i in range(4): a(f"v_cvt_pk_bf16_f32 v{40+i}, v{28+2*i}, v{29+2*i}")
    for c in range(4):
        if c:
            for i in range(4):
                a(f"v_mov_b32_dpp v{40+4*c+i}, v{40+i} row_shl:{4*c} row_mask:0xf bank_mask:0xf")
        for dt in range(2):
            r = 56 + 8*c + 4*dt
            cc = "0" if c == 0 else f"v[{88+4*dt}:{91+4*dt}]"
            a(f"v_mfma_f32_16x16x32_bf16 v[{88+4*dt}:{91+4*dt}], v[{r}:{r+3}], v[{40+4*c}:{43+4*c}], {cc}")
    a(f"""
    v_lshl_add_u32 v20, v0, 3, v2
    v_and_b32 v21, 1, v4
    v_lshlrev_b32 v21, 10, v21
    v_lshl_add_u32 v21, v5, 13, v21
    v_bfe_u32 v22, v4, 1, 2
    v_lshl_add_u32 v21, v22, 8, v21
    v_lshrrev_b32 v22, 3, v4
    v_lshl_add_u32 v21, v22, 6, v21
    s_lshl_b32 s10, s4, 15
    s_and_b32 s11, s7, 3
    s_lshl_b32 s11, s11, 11
    s_add_u32 s10, s10, s11
    s_lshr_b32 s11, s7, 2
    s_lshl_b32 s11, s11, 7
    s_add_u32 s10, s10, s11
    s_lshl_b32 s11, s6, 4
    s_add_u32 s10, s10, s11
    s_add_u32 s10, s10, {OG}
    s_add_u32 s11, s10, {MIRROR}
    s_mov_b32 exec_lo, {MASK4}
    s_mov_b32 exec_hi, {MASK4}
    ds_write_b128 v19, v[88:91] offset:{OS}
    ds_write_b128 v19, v[92:95] offset:{OS + 64}
    s_mov_b64 exec, -1
    """)
    lds_count(CNT_O)
    a(f"""
    s_cmp_lg_u32 s12, 7
    s_cbranch_scc1 L_W_onot
    """)
    def slot_sum(base):
        for w in range(8):
            a(f"ds_read_b64 v[{24+2*w}:{25+2*w}], v20 offset:{base + 512*w}")
        a("s_waitcnt lgkmcnt(0)")
        a("""
        v_pk_add_f32 v[24:25], v[24:25], v[26:27]
        v_pk_add_f32 v[28:29], v[28:29], v[30:31]
        v_pk_add_f32 v[32:33], v[32:33], v[34:35]
        v_pk_add_f32 v[36:37], v[36:37], v[38:39]
        v_mov_b32 v26, s60
        v_pk_add_f32 v[24:25], v[24:25], v[28:29]
        v_pk_add_f32 v[32:33], v[32:33], v[36:37]
        v_mov_b32 v27, s61
        v_pk_add_f32 v[24:25], v[24:25], v[32:33]
        """)
    slot_sum(OS)
    a(f"""
    buffer_store_dwordx4 v[24:27], v21, s[44:47], s10 offen
    buffer_store_dwordx4 v[24:27], v21, s[44:47], s11 offen sc1
    """)
    lds_set(FL_OPUB, 1)
    a("L_W_onot:")
    stamp(6)
    a("s_cmp_lt_u32 s5, 16")
    a("s_cbranch_scc1 L_W_qwg")
    a(f"""
    s_lshl_b32 s10, s4, 15
    s_lshl_b32 s11, s9, 12
    s_add_u32 s10, s10, s11
    s_add_u32 s66, s10, {OG}
    s_lshl_b32 s10, s9, 12
    v_add_u32 v17, s10, v16
    v_lshlrev_b32 v22, 4, v4
    v_lshl_add_u32 v22, v5, 15, v22
    s_lshl_b32 s10, s4, 12
    s_sub_u32 s11, s5, 16
    s_lshl_b32 s11, s11, 8
    s_add_u32 s10, s10, s11
    s_add_u32 s65, s10, {AG}
    """)
    lds_wait(PROG, 160)
    for e in range(2):
        for ct in range(2):
            r = 56 + 8*e + 4*ct
            a(f"ds_read_b64_tr_b16 v[{r}:{r+1}], v17 offset:{WO_L + 2048*e + 32*ct}")
            a(f"ds_read_b64_tr_b16 v[{r+2}:{r+3}], v17 offset:{WO_L + 2048*e + 32*ct + 1024}")
    lds_wait(FL_OPUB, 1)
    poll([(24, 14, "s66", 0), (28, 14, "s66", 1024), (32, 14, "s66", 2048), (36, 14, "s66", 3072)], sleep=SA, dual=R0)
    stamp(7)
    for r in (24, 25, 28, 29, 32, 33, 36, 37):
        a(f"v_add_f32_dpp v{r}, v{r}, v{r} row_ror:8 row_mask:0xf bank_mask:0xf")
    a(f"""
    v_cvt_pk_bf16_f32 v40, v24, v25
    v_cvt_pk_bf16_f32 v41, v28, v29
    v_cvt_pk_bf16_f32 v44, v32, v33
    v_cvt_pk_bf16_f32 v45, v36, v37
    v_mov_b32_dpp v42, v40 row_shl:4 row_mask:0xf bank_mask:0xf
    v_mov_b32_dpp v43, v41 row_shl:4 row_mask:0xf bank_mask:0xf
    v_mov_b32_dpp v46, v44 row_shl:4 row_mask:0xf bank_mask:0xf
    v_mov_b32_dpp v47, v45 row_shl:4 row_mask:0xf bank_mask:0xf
    """)
    for e in range(2):
        for ct in range(2):
            r = 56 + 8*e + 4*ct
            cc = "0" if e == 0 else f"v[{88+4*ct}:{91+4*ct}]"
            a(f"v_mfma_f32_16x16x32_bf16 v[{88+4*ct}:{91+4*ct}], v[{r}:{r+3}], v[{40+4*e}:{43+4*e}], {cc}")
    a(f"""
    s_mov_b32 exec_lo, {MASK4}
    s_mov_b32 exec_hi, {MASK4}
    ds_write_b128 v19, v[88:91] offset:{AS}
    ds_write_b128 v19, v[92:95] offset:{AS + 64}
    s_mov_b64 exec, -1
    """)
    lds_count(CNT_A)
    a(f"""
    s_cmp_lg_u32 s12, 7
    s_cbranch_scc1 L_W_done
    """)
    slot_sum(AS)
    a(f"""
    buffer_store_dwordx4 v[24:27], v22, s[44:47], s65 offen sc1
    s_branch L_W_done
    L_W_qwg:
    s_cmp_lg_u32 s4, 0
    s_cbranch_scc1 L_W_done
    s_cmp_ge_u32 s5, 4
    s_cbranch_scc1 L_W_done
    v_and_b32 v21, 31, v0
    v_lshlrev_b32 v22, 4, v21
    v_lshrrev_b32 v23, 5, v0
    v_lshl_add_u32 v22, v23, 14, v22
    s_lshl_b32 s10, s5, 15
    s_lshl_b32 s11, s9, 9
    s_add_u32 s10, s10, s11
    s_add_u32 s66, s10, {AG}
    s_add_u32 s67, s66, 4096
    s_add_u32 s68, s66, 8192
    s_add_u32 s69, s66, 12288
    s_lshl_b32 s10, s9, 8
    v_lshl_add_u32 v21, v21, 3, v2
    v_add_u32 v21, s10, v21
    v_lshlrev_b32 v44, 16, v96
    v_and_b32 v45, 0xffff0000, v96
    """)
    lds_wait(FL_OPUB, 1)
    poll([(24 + 4*i, 22, f"s{66+i}", 0) for i in range(4)], sleep=SB)
    stamp(8)
    a(f"""
    v_pk_add_f32 v[24:25], v[24:25], v[28:29]
    v_pk_add_f32 v[32:33], v[32:33], v[36:37]
    v_pk_add_f32 v[24:25], v[24:25], v[32:33]
    v_mov_b32 v26, v24
    v_mov_b32 v27, v25
    v_permlane32_swap_b32 v24, v26
    v_permlane32_swap_b32 v25, v27
    v_pk_add_f32 v[24:25], v[24:25], v[26:27]
    v_cvt_pk_bf16_f32 v26, v24, v25
    v_lshlrev_b32 v24, 16, v26
    v_and_b32 v25, 0xffff0000, v26
    v_pk_add_f32 v[24:25], v[24:25], v[44:45]
    v_cvt_pk_bf16_f32 v26, v24, v25
    v_lshlrev_b32 v24, 16, v26
    v_and_b32 v25, 0xffff0000, v26
    ds_write_b64 v21, v[24:25] offset:{ROW}
    v_mov_b32 v3, 1
    s_mov_b64 exec, 1
    ds_add_u32 v2, v3 offset:{CNT_ROW}
    s_mov_b64 exec, -1
    L_W_done:
    """)
    stamp(9)
    dump_stamps()
    a("L_end:")
    a("s_endpgm")
    a("L_code_end:")
    return wrap(a.text(), 256, 896, LDS_TOTAL, 128, denorm=True)

if __name__ == "__main__":
    import argparse
    ap = argparse.ArgumentParser()
    ap.add_argument("-o", default="t/k7.s"); ap.add_argument("--dbg", action="store_true"); ap.add_argument("--dbg2", action="store_true")
    ap.add_argument("--pol", default="nt"); ap.add_argument("--nopf", action="store_true")
    for n, d in (("dq", 20), ("dw", 16), ("dwq", 32), ("dk0", 8), ("nk0", 16), ("sq", 2), ("ss", 2), ("sa", 1), ("sb", 1), ("e0", 114), ("priol", 0), ("r0", 24), ("wqd", -1), ("nsp", 6)):
        ap.add_argument("--" + n, type=int, default=d)
    g = ap.parse_args()
    open(g.o, "w").write(gen(dbg=g.dbg, dbg2=g.dbg2, pol=g.pol, prefetch=not g.nopf, DQ=g.dq, DW=g.dw, DWQ=g.dwq, DK0=g.dk0, NK0=g.nk0,
                             SQ=g.sq, SS=g.ss, SA=g.sa, SB=g.sb, e0=g.e0, prioL=g.priol, R0=g.r0, WQD=g.wqd, NSP=g.nsp))
```

```python
import sys, struct
from asmgen import *

def f32bits(x): return struct.unpack("<I", struct.pack("<f", x))[0]

K_L = 0; V_L = 65536; WQ_L = 98304; WO_L = 0
MISC = 131072
XN = 0; QI = 4096; FL = 5120; ST = 5376; OS = 6144; AS = 10240; ROW = 14336; TAB = 16384; WT = 6144
LDS_TOTAL = MISC + 24576
FL_QPROJ = FL + 0; FL_QREADY = FL + 4; PROG = FL + 8; FL_STATS = FL + 20; CNT_QK = FL + 24; CNT_O = FL + 28
CNT_A = FL + 32; CNT_ROW = FL + 36; FL_OPUB = FL + 48; FL_WT = FL + 52; CNT_WT = FL + 56
QG = 0x10000; STG = 0x20000; OG = 0x40000; AG = 0x80000; TG = 0xA0000; SG = 0x100000; DBGA = 0x600000
WS_BYTES = 0x800000; MIRROR = 0x200000
TAB_E0 = 114
LOG2E = 1.4426950408889634
SCALE = 128 ** -0.5
GC0 = -2.0 * 0.7978845608028654 * LOG2E
GC1 = GC0 * 0.044715
MASK4 = "0x000f000f"

def gelu_pairs(a, items, acc, st, sc1, vc0, vone):
    for (w, b, w2, t) in items: a(f"v_pk_mul_f32 v[{t}:{t+1}], v[{w}:{w+1}], {st}")
    for (w, b, w2, t) in items: a(f"v_cvt_pk_bf16_f32 v{t+2}, v{t}, v{t+1}")
    for (w, b, w2, t) in items:
        a(f"v_lshlrev_b32 v{t}, 16, v{t+2}"); a(f"v_and_b32 v{t+1}, 0xffff0000, v{t+2}")
    for (w, b, w2, t) in items: a(f"v_pk_add_f32 v[{t}:{t+1}], v[{t}:{t+1}], v[{b}:{b+1}]")
    for (w, b, w2, t) in items: a(f"v_cvt_pk_bf16_f32 v{t+2}, v{t}, v{t+1}")
    for (w, b, w2, t) in items:
        a(f"v_lshlrev_b32 v{t}, 16, v{t+2}"); a(f"v_and_b32 v{t+1}, 0xffff0000, v{t+2}")
    for (w, b, w2, t) in items: a(f"v_pk_mul_f32 v[{t+2}:{t+3}], v[{t}:{t+1}], v[{t}:{t+1}]")
    for (w, b, w2, t) in items: a(f"v_pk_fma_f32 v[{t+2}:{t+3}], v[{t+2}:{t+3}], {sc1}, v[{vc0}:{vc0+1}]")
    for (w, b, w2, t) in items: a(f"v_pk_mul_f32 v[{t+2}:{t+3}], v[{t+2}:{t+3}], v[{t}:{t+1}]")
    for (w, b, w2, t) in items:
        a(f"v_exp_f32 v{t+2}, v{t+2}"); a(f"v_exp_f32 v{t+3}, v{t+3}")
    for (w, b, w2, t) in items: a(f"v_pk_add_f32 v[{t+2}:{t+3}], v[{t+2}:{t+3}], v[{vone}:{vone+1}]")
    for (w, b, w2, t) in items:
        a(f"v_rcp_f32 v{t+2}, v{t+2}"); a(f"v_rcp_f32 v{t+3}, v{t+3}")
    for (w, b, w2, t) in items: a(f"v_pk_mul_f32 v[{t+2}:{t+3}], v[{t+2}:{t+3}], v[{t}:{t+1}]")
    for (w, b, w2, t) in items: a(f"v_cvt_pk_bf16_f32 v{t+4}, v{t+2}, v{t+3}")
    for (w, b, w2, t) in items: a(f"v_dot2_f32_bf16 v{acc}, v{t+4}, v{w2}, v{acc}")

def gen(dbg=False, pol="nt", prefetch=True, DQ=20, DW=16, DWQ=32, DK0=8, NK0=16, SQ=2, SS=2, SA=1, SB=1, dbg2=False, e0=114, prioL=0, R0=24, WQD=-1, NSP=6):
    a = A()
    POL = " " + pol if pol else ""
    nstamp = [0]
    def stamp(i=None):
        if dbg:
            if i is None:
                i = nstamp[0]; nstamp[0] += 1
            a(f"s_memrealtime s[{70+2*i}:{71+2*i}]")
            a("s_waitcnt lgkmcnt(0)")
    def dump_stamps():
        if dbg:
            a("s_mov_b64 exec, -1")
            a("s_waitcnt vmcnt(0) lgkmcnt(0)")
            for i in range(12):
                a(f"v_mov_b32 v{100+i}, s{70+2*i}")
            a(f"""
            s_mul_i32 s10, s2, 14
            s_add_u32 s10, s10, s3
            s_mul_i32 s10, s10, 64
            s_add_u32 s10, s10, {DBGA}
            v_mov_b32 v99, s10
            s_mov_b64 exec, 1
            buffer_store_dwordx4 v[100:103], v99, s[44:47], 0 offen
            buffer_store_dwordx4 v[104:107], v99, s[44:47], 0 offen offset:16
            buffer_store_dwordx4 v[108:111], v99, s[44:47], 0 offen offset:32
            """)
        nstamp[0] = 0
    def srd(d, ptr, nbytes):
        a(f"""
        s_mov_b32 s{d}, s{ptr}
        s_and_b32 s{d+1}, s{ptr+1}, 0xffff
        s_mov_b32 s{d+2}, {nbytes}
        s_mov_b32 s{d+3}, 0x20000
        """)
    def lds_wait(off, val, vt=3, slp=1):
        L = a.label("Lw"); D = a.label("Lwd")
        a(f"""
        s_mov_b32 s13, 0x40000
        {L}:
        ds_read_b32 v{vt}, v2 offset:{off}
        s_waitcnt lgkmcnt(0)
        v_readfirstlane_b32 s12, v{vt}
        s_cmp_ge_u32 s12, {val}
        s_cbranch_scc1 {D}
        s_sub_u32 s13, s13, 1
        s_cbranch_scc1 {D}
        """)
        if slp: a(f"s_sleep {slp}")
        a(f"""
        s_branch {L}
        {D}:
        """)
    def lds_set(off, val, vt=3):
        a(f"""
        v_mov_b32 v{vt}, {val}
        s_mov_b64 exec, 1
        ds_write_b32 v2, v{vt} offset:{off}
        s_mov_b64 exec, -1
        """)
    def lds_count(off, vt=3):
        a(f"""
        v_mov_b32 v{vt}, 1
        s_mov_b64 exec, 1
        ds_add_rtn_u32 v{vt}, v2, v{vt} offset:{off}
        s_mov_b64 exec, -1
        s_waitcnt lgkmcnt(0)
        v_readfirstlane_b32 s12, v{vt}
        """)
    def dual_sel(R0):
        a(f"""
        s_and_b32 s12, s13, 1
        s_cmp_lt_u32 s13, {0x3fff - R0}
        s_cselect_b32 s12, s12, 0
        s_mul_i32 s12, s12, {MIRROR}
        s_add_u32 s67, s12, s66
        """)
    def poll(loads, sleep=2, dual=None, trig=None, nspin=6):
        a("s_mov_b32 s13, 0x3fff")
        L = a.label("Lp"); D = a.label("Lpd"); S = a.label("Lps")
        a(f"{L}:")
        if dual: dual_sel(dual)
        for (d, va, so, imm) in loads:
            a(f"buffer_load_dwordx4 v[{d}:{d+3}], v{va}, s[44:47], {'s67' if dual else so} offen offset:{imm} sc1")
        a("s_waitcnt vmcnt(0)")
        for i, (d, va, so, imm) in enumerate(loads):
            if i == 0:
                a(f"v_cmp_ne_u64 s[14:15], s[60:61], v[{d+2}:{d+3}]")
            else:
                a(f"v_cmp_ne_u64 vcc, s[60:61], v[{d+2}:{d+3}]")
                a("s_or_b64 s[14:15], s[14:15], vcc")
        a(f"""
        s_cmp_eq_u64 s[14:15], 0
        s_cbranch_scc1 {D}
        s_sub_u32 s13, s13, 1
        s_cbranch_scc1 {D}
        """)
        if trig is None:
            a(f"s_sleep {sleep}")
            a(f"s_branch {L}")
        else:
            a(f"""
            s_mov_b32 s14, {nspin}
            {S}:
            s_sleep 1
            ds_read_b32 v3, v2 offset:{trig}
            s_waitcnt lgkmcnt(0)
            v_readfirstlane_b32 s12, v3
            s_cmp_lg_u32 s12, 0
            s_cbranch_scc1 {L}
            s_sub_u32 s14, s14, 1
            s_cbranch_scc0 {S}
            s_branch {L}
            """)
        a(f"{D}:")
    def xrow(regs, op, tmps):
        for sw in ("v_permlane16_swap_b32", "v_permlane32_swap_b32"):
            for r, t in zip(regs, tmps): a(f"v_mov_b32 v{t}, v{r}")
            for r, t in zip(regs, tmps): a(f"{sw} v{r}, v{t}")
            for r, t in zip(regs, tmps): a(f"v_{op}_f32 v{r}, v{r}, v{t}")
    def allreduce(regs, op, tmps):
        for m in ("quad_perm:[1,0,3,2]", "quad_perm:[2,3,0,1]", "row_half_mirror", "row_mirror"):
            for r in regs:
                a(f"v_{op}_f32_dpp v{r}, v{r}, v{r} {m} row_mask:0xf bank_mask:0xf")
        xrow(regs, op, tmps)
    def rbf(dst, src):
        a(f"v_cvt_pk_bf16_f32 v{dst}, v{src}, v{src}")
        a(f"v_lshlrev_b32 v{dst}, 16, v{dst}")
    def unpack(dlo, dhi, src):
        a(f"v_lshlrev_b32 v{dlo}, 16, v{src}")
        a(f"v_and_b32 v{dhi}, 0xffff0000, v{src}")
    def layernorm4(rows, tmpb):
        n = len(rows)
        S = [tmpb + i for i in range(n)]; T = [tmpb + n + i for i in range(n)]; Mb = [tmpb + 2*n + i for i in range(n)]
        D = [tmpb + 3*n + 8*i for i in range(n)]
        for x, s, t in zip(rows, S, T):
            a(f"v_add_f32 v{s}, v{x}, v{x+1}"); a(f"v_add_f32 v{t}, v{x+2}, v{x+3}")
        for x, s, t in zip(rows, S, T):
            a(f"v_add_f32 v{s}, v{s}, v{x+4}"); a(f"v_add_f32 v{t}, v{t}, v{x+5}")
        for x, s, t in zip(rows, S, T):
            a(f"v_add_f32 v{s}, v{s}, v{x+6}"); a(f"v_add_f32 v{t}, v{t}, v{x+7}")
        for s, t in zip(S, T): a(f"v_add_f32 v{s}, v{s}, v{t}")
        allreduce(S, "add", T)
        for s in S: a(f"v_mul_f32 v{s}, {f32bits(1/512):#x}, v{s}")
        for x, s, d in zip(rows, S, D):
            for i in range(8): a(f"v_sub_f32 v{d+i}, v{x+i}, v{s}")
        for s, m in zip(S, Mb): rbf(m, s)
        for s, t, d in zip(S, T, D):
            a(f"v_mul_f32 v{s}, v{d}, v{d}"); a(f"v_mul_f32 v{t}, v{d+1}, v{d+1}")
        for i in range(2, 8, 2):
            for s, t, d in zip(S, T, D):
                a(f"v_fmac_f32 v{s}, v{d+i}, v{d+i}"); a(f"v_fmac_f32 v{t}, v{d+i+1}, v{d+i+1}")
        for s, t in zip(S, T): a(f"v_add_f32 v{s}, v{s}, v{t}")
        allreduce(S, "add", T)
        for s in S: a(f"v_mul_f32 v{s}, {f32bits(1/512):#x}, v{s}")
        for s in S: rbf(s, s)
        for s in S: a(f"v_add_f32 v{s}, {f32bits(1e-5):#x}, v{s}")
        for s in S: rbf(s, s)
        for s in S: a(f"v_sqrt_f32 v{s}, v{s}")
        for s in S: rbf(s, s)
        for s in S: a(f"v_rcp_f32 v{s}, v{s}")
        for x, m, d in zip(rows, Mb, D):
            for i in range(8): a(f"v_sub_f32 v{d+i}, v{x+i}, v{m}")
        for x, d in zip(rows, D):
            for i in range(0, 8, 2): a(f"v_cvt_pk_bf16_f32 v{x+i}, v{d+i}, v{d+i+1}")
        for x, d in zip(rows, D):
            for i in range(0, 8, 2): unpack(d+i, d+i+1, x+i)
        for s, d in zip(S, D):
            for i in range(8): a(f"v_mul_f32 v{d+i}, v{d+i}, v{s}")
        return D
    def layernorm1(x, t, outp, shift):
        d = t; s1 = t + 8; s2 = t + 10; u = t + 12
        if shift:
            for i in range(0, 8, 2):
                a(f"v_pk_add_f32 v[{d+i}:{d+i+1}], v[{x+i}:{x+i+1}], {shift} neg_lo:[0,1] neg_hi:[0,1]")
            src = d
        else: src = x
        a(f"""
        v_pk_add_f32 v[{s1}:{s1+1}], v[{src}:{src+1}], v[{src+2}:{src+3}]
        v_pk_mul_f32 v[{s2}:{s2+1}], v[{src}:{src+1}], v[{src}:{src+1}]
        v_pk_add_f32 v[{u}:{u+1}], v[{src+4}:{src+5}], v[{src+6}:{src+7}]
        v_pk_fma_f32 v[{s2}:{s2+1}], v[{src+2}:{src+3}], v[{src+2}:{src+3}], v[{s2}:{s2+1}]
        v_pk_add_f32 v[{s1}:{s1+1}], v[{s1}:{s1+1}], v[{u}:{u+1}]
        v_pk_fma_f32 v[{s2}:{s2+1}], v[{src+4}:{src+5}], v[{src+4}:{src+5}], v[{s2}:{s2+1}]
        v_add_f32 v{s1}, v{s1}, v{s1+1}
        v_pk_fma_f32 v[{s2}:{s2+1}], v[{src+6}:{src+7}], v[{src+6}:{src+7}], v[{s2}:{s2+1}]
        v_add_f32 v{s2}, v{s2}, v{s2+1}
        """)
        allreduce([s1, s2], "add", [u, u + 1])
        a(f"""
        v_mul_f32 v{s1}, {f32bits(1/512):#x}, v{s1}
        v_mul_f32 v{s2}, {f32bits(1/512):#x}, v{s2}
        v_fma_f32 v{s2}, -v{s1}, v{s1}, v{s2}
        v_max_f32 v{s2}, 0, v{s2}
        """)
        if shift: a(f"v_add_f32 v{s1}, {shift.replace('[','').split(':')[0]}, v{s1}")
        a(f"""
        v_cvt_pk_bf16_f32 v{u}, v{s1}, v{s2}
        v_and_b32 v{s2}, 0xffff0000, v{u}
        v_lshlrev_b32 v{s1}, 16, v{u}
        v_add_f32 v{s2}, {f32bits(1e-5):#x}, v{s2}
        v_mov_b32 v{s1+1}, v{s1}
        v_cvt_pk_bf16_f32 v{s2}, v{s2}, v{s2}
        """)
        for i in range(0, 4, 2):
            a(f"v_pk_add_f32 v[{d+i}:{d+i+1}], v[{x+i}:{x+i+1}], v[{s1}:{s1+1}] neg_lo:[0,1] neg_hi:[0,1]")
        a(f"v_lshlrev_b32 v{s2}, 16, v{s2}")
        for i in range(4, 8, 2):
            a(f"v_pk_add_f32 v[{d+i}:{d+i+1}], v[{x+i}:{x+i+1}], v[{s1}:{s1+1}] neg_lo:[0,1] neg_hi:[0,1]")
        a(f"v_sqrt_f32 v{s2}, v{s2}")
        for i in range(2): a(f"v_cvt_pk_bf16_f32 v{outp+i}, v{d+2*i}, v{d+2*i+1}")
        a(f"v_cvt_pk_bf16_f32 v{s2}, v{s2}, v{s2}")
        for i in range(2, 4): a(f"v_cvt_pk_bf16_f32 v{outp+i}, v{d+2*i}, v{d+2*i+1}")
        a(f"v_lshlrev_b32 v{s2}, 16, v{s2}")
        for i in range(2): unpack(d + 2*i, d + 2*i + 1, outp + i)
        a(f"v_rcp_f32 v{s2}, v{s2}")
        for i in range(2, 4): unpack(d + 2*i, d + 2*i + 1, outp + i)
        a(f"v_mov_b32 v{s2+1}, v{s2}")
        for i in range(0, 8, 2):
            a(f"v_pk_mul_f32 v[{d+i}:{d+i+1}], v[{d+i}:{d+i+1}], v[{s2}:{s2+1}]")
        for i in range(4): a(f"v_cvt_pk_bf16_f32 v{outp+i}, v{d+2*i}, v{d+2*i+1}")
    def get_tag():
        a("""
        s_waitcnt lgkmcnt(0)
        s_add_u32 s60, s62, 0x7f4a7c15
        s_addc_u32 s61, s63, 0x9e3779b9
        """)

    a(f"""
    s_cmp_ge_u32 s2, 256
    s_cbranch_scc1 L_end
    s_load_dwordx16 s[16:31], s[0:1], 0
    s_load_dwordx8 s[32:39], s[0:1], 64
    s_load_dwordx2 s[40:41], s[0:1], 96
    v_lshrrev_b32 v1, 6, v0
    v_and_b32 v0, 63, v0
    v_readfirstlane_b32 s3, v1
    v_mov_b32 v2, {MISC}
    v_lshl_add_u32 v3, v0, 2, v2
    v_mov_b32 v4, 0
    ds_write_b32 v3, v4 offset:{FL}
    s_and_b32 s4, s2, 7
    s_lshr_b32 s5, s2, 3
    s_and_b32 s6, s5, 3
    s_lshr_b32 s7, s5, 2
    s_lshl_b32 s8, s6, 3
    s_add_u32 s8, s8, s4
    s_cmp_lt_u32 s5, 16
    s_cselect_b32 s42, 32, 0
    s_waitcnt lgkmcnt(0)
    s_barrier
    s_load_dwordx2 s[62:63], s[40:41], 0
    """)
    srd(44, 40, WS_BYTES)
    a("""
    s_cmp_eq_u32 s3, 0
    s_cbranch_scc1 L_roleL
    v_lshlrev_b32 v4, 4, v0
    s_cmp_eq_u32 s3, 1
    s_cbranch_scc1 L_earlyQ
    s_cmp_eq_u32 s3, 10
    s_cbranch_scc1 L_earlyT
    s_cmp_ge_u32 s3, 10
    s_cbranch_scc1 L_roleT
    s_branch L_roleW
    L_earlyQ:
    """)
    srd(48, 16, 4096)
    for b in range(4):
        a(f"buffer_load_dwordx4 v[{8+4*b}:{11+4*b}], v4, s[48:51], 0 offen offset:{1024*b}")
    a("s_branch L_roleQ")
    a("L_earlyT:")
    for k, (sr, ptr) in enumerate(((48, 28), (52, 30), (56, 32))):
        srd(sr, ptr, 3584)
        a(f"s_mov_b32 m0, {MISC + WT + 4096*k}")
        for i in range(4):
            a(f"buffer_load_dwordx4 v4, s[{sr}:{sr+3}], 0 offen offset:{1024*i} lds")
    a("s_waitcnt vmcnt(0)")
    lds_set(FL_WT, 1)
    a("s_branch L_roleT")

    a("L_roleL:")
    if prioL: a(f"s_setprio {prioL}")
    stamp(0)
    a(f"""
    v_lshrrev_b32 v4, 2, v0
    v_and_b32 v5, 3, v0
    v_lshlrev_b32 v5, 4, v5
    s_mov_b32 s43, 0
    s_mov_b32 s14, 0
    s_cmp_ge_u32 s5, 16
    s_cbranch_scc1 L_L_setup2
    """)
    srd(64, 22, 0x400000)
    a(f"""
    v_lshl_add_u32 v32, v4, 13, v5
    s_lshl_b32 s94, s4, 10
    s_lshl_b32 s10, s5, 6
    s_add_u32 s94, s94, s10
    s_mov_b32 s95, {WQ_L}
    v_add_u32 v33, {131072-1024}, v32
    v_add_u32 v34, {2*(131072-1024)}, v32
    v_add_u32 v35, {3*(131072-1024)}, v32
    L_L_wq:
    s_mov_b32 m0, s95
    s_add_u32 s43, s43, 4
    """)
    for n in range(4):
        a(f"buffer_load_dwordx4 v{32+n}, s[64:67], s94 offen offset:{n*1024}{POL} lds")
    a(f"""
    s_add_u32 s94, s94, {4*131072}
    s_add_u32 s95, s95, 4096
    s_cmp_lt_u32 s43, 32
    s_cbranch_scc1 L_L_wq
    L_L_setup2:
    """)
    srd(48, 18, 0x4000000)
    a(f"""
    v_lshrrev_b32 v8, 4, v0
    v_and_b32 v9, 15, v0
    """)
    for n in range(4):
        a(f"""
        v_add_u32 v6, {4*n}, v8
        v_xor_b32 v7, v6, v9
        v_lshlrev_b32 v7, 4, v7
        v_lshl_add_u32 v{20+n}, v8, 8, v7
        """)
    a(f"""
    s_lshl_b32 s9, s8, 21
    s_add_u32 s9, s9, {6144*256}
    s_lshl_b32 s10, s7, 16
    s_add_u32 s96, s9, s10
    s_cmp_lt_u32 s5, 16
    s_cbranch_scc1 L_L_setup3
    s_mov_b32 s94, s96
    s_mov_b32 s95, {K_L}
    L_L_k0:
    s_mov_b32 m0, s95
    s_add_u32 s43, s43, 4
    """)
    for n in range(4):
        a(f"buffer_load_dwordx4 v{20+n}, s[48:51], s94 offen offset:{n*1024}{POL} lds")
    a(f"""
    s_add_u32 s94, s94, 4096
    s_add_u32 s95, s95, 4096
    s_cmp_lt_u32 s43, {DK0}
    s_cbranch_scc1 L_L_k0
    L_L_setup3:
    """)
    srd(52, 20, 0x4000000); srd(56, 24, 0x400000)
    a(f"""
    v_lshl_add_u32 v24, v4, 8, v5
    v_lshl_add_u32 v28, v4, 10, v5
    """)
    for n in range(1, 4):
        a(f"v_add_u32 v{24+n}, {n*(4096-1024)}, v24")
        a(f"v_add_u32 v{28+n}, {n*(16384-1024)}, v28")
    a(f"""
    s_lshr_b32 s10, s7, 2
    s_lshl_b32 s10, s10, 18
    s_add_u32 s97, s9, s10
    s_and_b32 s10, s7, 3
    s_lshl_b32 s10, s10, 6
    s_add_u32 s97, s97, s10
    s_lshl_b32 s98, s4, 19
    s_sub_u32 s10, s5, 16
    s_lshl_b32 s10, s10, 6
    s_add_u32 s98, s98, s10
    s_cmp_ge_u32 s5, 16
    s_cbranch_scc1 L_L_wo
    """)
    def seg(ngroups, vbase, srdr, soff, ldsbase, gstep, D, first_free=0):
        L = a.label("Ls")
        if soff is not None: a(f"s_mov_b32 s94, {soff}")
        if ldsbase is not None: a(f"s_mov_b32 s95, {ldsbase}")
        a(f"s_mov_b32 s11, {ngroups}")
        a(f"""
        {L}:
        s_mov_b32 m0, s95
        s_sub_i32 s10, s43, {D-4}
        s_max_i32 s14, s10, s14
        v_mov_b32 v3, s14
        s_mov_b64 exec, 1
        s_waitcnt vmcnt({D-4})
        ds_write_b32 v2, v3 offset:{PROG}
        s_mov_b64 exec, -1
        """)
        for n in range(4):
            a(f"buffer_load_dwordx4 v{vbase+n}, s[{srdr}:{srdr+3}], s94 offen offset:{n*1024}{POL} lds")
        a(f"""
        s_add_u32 s94, s94, {gstep}
        s_add_u32 s95, s95, 4096
        s_add_u32 s43, s43, 4
        s_sub_u32 s11, s11, 1
        s_cmp_lg_u32 s11, 0
        s_cbranch_scc1 {L}
        """)
    def drain(D, total, stampat={}):
        for k in range(D - 4, -1, -4):
            a(f"s_waitcnt vmcnt({k})")
            lds_set(PROG, total - k)
            if total - k in stampat: stamp(stampat[total - k])
    if WQD >= 0:
        for k in range(24, WQD - 1, -8):
            a(f"s_waitcnt vmcnt({k})")
            lds_set(PROG, 32 - k)
        a(f"s_mov_b32 s14, {32 - WQD}")
    seg(16, 20, 48, "s96", K_L, 4096, DQ)
    seg(8, 24, 52, "s97", V_L, 16384, DQ)
    stamp(1)
    lds_wait(FL_QPROJ, 1)
    seg(8, 24, 52, None, None, 16384, DQ)
    drain(DQ, 160, {160: 2})
    a("s_branch L_L_done")
    a("L_L_wo:")
    if NK0 > DK0: seg((NK0 - DK0) // 4, 20, 48, None, None, 4096, DK0)
    seg(16 - NK0 // 4, 20, 48, None, None, 4096, DW)
    seg(8, 24, 52, "s97", V_L, 16384, DW)
    stamp(1)
    seg(8, 24, 52, None, None, 16384, DW)
    lds_wait(CNT_QK, 8)
    seg(8, 28, 56, "s98", WO_L, 4 * 16384, DW)
    stamp(2)
    drain(DW, 160, {160: 3})
    a("L_L_done:")
    dump_stamps()
    a("s_endpgm")

    a("L_roleQ:")
    a("s_setprio 3")
    stamp(0)
    srd(56, 36, 4096)
    a("s_lshl_b32 s10, s6, 10")
    a("buffer_load_dwordx4 v[120:123], v4, s[56:59], s10 offen")
    if prefetch:
        a(f"""
        s_getpc_b64 s[10:11]
        L_pc_here:
        s_sub_u32 s10, s10, L_pc_here - {NAME}_kernel
        s_subb_u32 s11, s11, 0
        s_lshl_b32 s12, s5, 10
        v_add_u32 v7, s12, v4
        v_min_u32 v7, L_code_end - {NAME}_kernel - 16, v7
        global_load_dwordx4 v[124:127], v7, s[10:11]
        """)
    else:
        a("buffer_load_dwordx4 v[124:127], v4, s[56:59], s10 offen")
    a(f"""
    s_cmp_ge_u32 s5, 16
    s_cbranch_scc1 L_Q_gather
    s_waitcnt vmcnt(2)
    """)
    X = [24 + 8*b for b in range(4)]
    for b in range(4):
        for i in range(4): unpack(X[b] + 2*i, X[b] + 2*i + 1, 8 + 4*b + i)
    D = layernorm4(X, 56)
    for b in range(4):
        for i in range(4): a(f"v_cvt_pk_bf16_f32 v{8+4*b+i}, v{D[b]+2*i}, v{D[b]+2*i+1}")
    a("v_add_u32 v5, v4, v2")
    for b in range(4):
        a(f"ds_write_b128 v5, v[{8+4*b}:{11+4*b}] offset:{XN + 1024*b}")
    get_tag()
    stamp(1)
    a(f"""
    v_lshrrev_b32 v5, 2, v0
    v_and_b32 v6, 3, v0
    v_lshlrev_b32 v7, 3, v6
    v_lshl_add_u32 v5, v5, 6, v7
    v_add_u32 v5, {WQ_L}, v5
    v_lshrrev_b32 v7, 4, v0
    v_lshlrev_b32 v7, 3, v7
    v_lshl_add_u32 v6, v6, 10, v7
    v_add_u32 v6, v6, v2
    """)
    for i in range(16):
        a(f"ds_read2_b64 v[{8+4*i}:{11+4*i}], v6 offset0:{8*i} offset1:{8*i+4}")
        if i == 7: a("s_waitcnt lgkmcnt(0)")
    a(f"""
    v_and_b32 v6, 3, v0
    v_lshrrev_b32 v7, 4, v0
    v_lshlrev_b32 v7, 4, v7
    v_lshl_add_u32 v6, v6, 14, v7
    v_bfe_u32 v7, v0, 2, 1
    v_lshl_add_u32 v6, v7, 6, v6
    v_cmp_ne_u32 s[64:65], 0, v7
    s_lshl_b32 s10, s4, 11
    s_lshl_b32 s11, s5, 7
    s_add_u32 s10, s10, s11
    s_add_u32 s10, s10, {QG}
    s_add_u32 s11, s10, {MIRROR}
    v_mov_b32 v82, s60
    v_mov_b32 v83, s61
    """)
    for c in range(4):
        lds_wait(PROG, 8 * (c + 1), slp=(0 if c == 3 else 1))
        if c == 3: stamp(2)
        for ii in range(4):
            i = 4*c + ii
            for ct in range(2):
                r = 88 + 8*ii + 4*ct
                a(f"ds_read_b64_tr_b16 v[{r}:{r+1}], v5 offset:{2048*i + 32*ct}")
                a(f"ds_read_b64_tr_b16 v[{r+2}:{r+3}], v5 offset:{2048*i + 32*ct + 1024}")
            if ii == 2: a("s_waitcnt lgkmcnt(8)")
        for ii in range(4):
            i = 4*c + ii
            if ii: a(f"s_waitcnt lgkmcnt({12 - 4*ii})")
            for ct in range(2):
                r = 88 + 8*ii + 4*ct
                cc = "0" if i == 0 else f"v[{72+4*ct}:{75+4*ct}]"
                a(f"v_mfma_f32_16x16x32_bf16 v[{72+4*ct}:{75+4*ct}], v[{r}:{r+3}], v[{8+4*i}:{11+4*i}], {cc}")
    a(f"""
    v_cvt_pk_bf16_f32 v80, v72, v73
    v_cvt_pk_bf16_f32 v81, v74, v75
    v_cvt_pk_bf16_f32 v84, v76, v77
    v_cvt_pk_bf16_f32 v85, v78, v79
    v_cndmask_b32 v80, v80, v84, s[64:65]
    v_cndmask_b32 v81, v81, v85, s[64:65]
    s_mov_b32 exec_lo, 0x00ff00ff
    s_mov_b32 exec_hi, 0x00ff00ff
    buffer_store_dwordx4 v[80:83], v6, s[44:47], s10 offen
    """)
    stamp(3)
    a(f"""
    buffer_store_dwordx4 v[80:83], v6, s[44:47], s11 offen sc1
    s_mov_b64 exec, -1
    """)
    lds_set(FL_QPROJ, 1)
    a(f"""
    s_branch L_Q_gather2
    L_Q_gather:
    """)
    get_tag()
    a(f"""
    L_Q_gather2:
    s_lshl_b32 s10, s6, 14
    s_lshl_b32 s11, s4, 11
    s_add_u32 s10, s10, s11
    s_add_u32 s66, s10, {QG}
    v_lshl_add_u32 v5, v0, 3, v2
    """)
    poll([(8, 4, "s66", 0), (12, 4, "s66", 1024)], sleep=SQ, dual=R0)
    a(f"""
    ds_write_b64 v5, v[8:9] offset:{QI}
    ds_write_b64 v5, v[12:13] offset:{QI + 512}
    """)
    lds_set(FL_QREADY, 1)
    stamp(4)
    a(f"""
    s_lshl_b32 s10, s8, 12
    s_add_u32 s66, s10, {STG}
    s_mov_b32 s10, {f32bits(LOG2E):#x}
    """)
    poll([(8 + 4*i, 4, "s66", 1024*i) for i in range(4)], sleep=SS, dual=R0)
    a(f"""
    v_max_f32 v24, v8, v12
    v_max3_f32 v24, v24, v16, v20
    v_max_f32_dpp v24, v24, v24 row_ror:4 row_mask:0xf bank_mask:0xf
    v_max_f32_dpp v24, v24, v24 row_ror:8 row_mask:0xf bank_mask:0xf
    """)
    xrow([24], "max", [25])
    for i in range(4): a(f"v_sub_f32 v{26+i}, v{8+4*i}, v24")
    for i in range(4): a(f"v_mul_f32 v{26+i}, s10, v{26+i}")
    for i in range(4): a(f"v_exp_f32 v{26+i}, v{26+i}")
    a(f"""
    v_mul_f32 v30, v26, v9
    v_fmac_f32 v30, v27, v13
    v_fmac_f32 v30, v28, v17
    v_fmac_f32 v30, v29, v21
    v_add_f32_dpp v30, v30, v30 row_ror:4 row_mask:0xf bank_mask:0xf
    v_add_f32_dpp v30, v30, v30 row_ror:8 row_mask:0xf bank_mask:0xf
    """)
    xrow([30], "add", [25])
    a(f"""
    v_rcp_f32 v25, v30
    v_fma_f32 v31, -v30, v25, 1.0
    v_fmac_f32 v25, v31, v25
    s_mov_b64 exec, 15
    ds_write_b64 v5, v[24:25] offset:{ST}
    s_mov_b64 exec, -1
    """)
    lds_set(FL_STATS, 1)
    stamp(5)
    a(f"""
    s_cmp_lg_u32 s4, 0
    s_cbranch_scc1 L_Q_done
    s_cmp_ge_u32 s5, 4
    s_cbranch_scc1 L_Q_done
    s_setprio 0
    """)
    lds_wait(CNT_WT, 4)
    for bt in range(2):
        a(f"s_mov_b32 s66, {TG + bt * 8192}")
        a(f"s_mov_b32 s67, {TG + bt * 8192 + 4096}")
        poll([(8 + 4*i, 4, "s66" if i < 4 else "s67", 1024*(i & 3)) for i in range(8)], sleep=4)
        for i in range(8):
            a(f"ds_write_b64 v5, v[{8+4*i}:{9+4*i}] offset:{TAB + (bt * 8 + i) * 512}")
    stamp(6)
    FW1 = 64; FB1 = 92; FW2 = 106
    srd(64, 28, 3584); srd(48, 30, 3584); srd(52, 32, 3584)
    a("v_lshlrev_b32 v6, 3, v0")
    for i in range(7):
        a(f"buffer_load_dwordx2 v[{8+2*i}:{9+2*i}], v6, s[64:67], 0 offen offset:{512*i}")
        a(f"buffer_load_dwordx2 v[{FB1+2*i}:{FB1+2*i+1}], v6, s[48:51], 0 offen offset:{512*i}")
        a(f"buffer_load_dwordx2 v[{FW2+2*i}:{FW2+2*i+1}], v6, s[52:55], 0 offen offset:{512*i}")
    srd(64, 34, 2)
    a("v_mov_b32 v7, 0")
    a("buffer_load_ushort v120, v7, s[64:67], 0 offen")
    a("s_waitcnt vmcnt(0)")
    for i in range(14):
        unpack(FW1 + 2*i, FW1 + 2*i + 1, 8 + i)
    a(f"""
    v_lshlrev_b32 v120, 16, v120
    v_lshl_add_u32 v5, v0, 5, v2
    s_mov_b32 s10, 0x08000800
    s_mov_b32 s11, {(e0 << 7) | (e0 << 23):#x}
    s_lshl_b32 s65, s5, 10
    s_setprio 3
    """)
    lds_wait(CNT_ROW, 8, slp=0)
    stamp(7)
    a(f"""
    ds_read_b128 v[32:35], v5 offset:{ROW}
    ds_read_b128 v[36:39], v5 offset:{ROW + 16}
    s_waitcnt lgkmcnt(0)
    v_readfirstlane_b32 s68, v32
    s_mov_b32 s69, s68
    """)
    layernorm1(32, 46, 16, "s[68:69]")
    for i in range(4): unpack(24 + 2*i, 25 + 2*i, 16 + i)
    layernorm1(24, 46, 16, None)
    for i in range(4):
        a(f"v_and_b32 v{40+i}, 0x7fff7fff, v{16+i}")
    for i in range(4):
        a(f"v_pk_sub_u16 v{40+i}, v{40+i}, s11")
    for i in range(4):
        a(f"v_lshrrev_b32 v{44+i}, 4, v{16+i}")
    a("v_or3_b32 v3, v40, v41, v42")
    for i in range(4):
        a(f"v_and_b32 v{44+i}, s10, v{44+i}")
    a("v_or_b32 v3, v3, v43")
    a("v_and_b32 v3, 0xf800f800, v3")
    a("s_mov_b32 s12, 0x07ff07ff")
    for i in range(4):
        a(f"v_and_or_b32 v{40+i}, v{40+i}, s12, v{44+i}")
    a("v_cmp_ne_u32 s[14:15], 0, v3")
    for i in range(4):
        a(f"v_and_b32 v{44+i}, 0xffff, v{40+i}")
        a(f"v_lshrrev_b32 v{40+i}, 16, v{40+i}")
        a(f"v_lshl_add_u32 v{44+i}, v{44+i}, 1, v2")
        a(f"v_lshl_add_u32 v{40+i}, v{40+i}, 1, v2")
        a(f"ds_read_u16 v{48+2*i}, v{44+i} offset:{TAB}")
        a(f"ds_read_u16 v{49+2*i}, v{40+i} offset:{TAB}")
    a(f"""
    s_cmp_eq_u64 s[14:15], 0
    s_waitcnt lgkmcnt(0)
    s_cbranch_scc0 L_Q_fb
    L_Q_nofb:
    """)
    for i in range(8): a(f"v_lshlrev_b32 v{48+i}, 16, v{48+i}")
    for i in range(0, 8, 2): a(f"v_pk_add_f32 v[{48+i}:{49+i}], v[{48+i}:{49+i}], v[{32+i}:{33+i}]")
    for i in range(4): a(f"v_cvt_pk_bf16_f32 v{16+i}, v{48+2*i}, v{49+2*i}")
    a(f"""
    buffer_store_dwordx4 v[16:19], v4, s[56:59], s65 offen
    s_cmp_lg_u32 s5, 0
    s_cbranch_scc1 L_Q_done
    v_mov_b32 v8, s60
    v_mov_b32 v9, s61
    v_mov_b32 v10, 0
    s_mov_b64 exec, 1
    buffer_store_dwordx2 v[8:9], v10, s[44:47], 0 offen
    s_mov_b64 exec, -1
    L_Q_done:
    """)
    stamp(8)
    if dbg2:
        srd(48, 38, 256)
        a("s_cmp_lg_u32 s2, 0")
        a("s_cbranch_scc1 L_Q_nodbg")
        for i in range(9):
            a(f"s_sub_u32 s10, s{70+2*i}, s70")
            a(f"v_mov_b32 v{100+i}, s10")
        a("""
        v_mov_b32 v99, 0
        s_mov_b64 exec, 1
        buffer_store_dwordx4 v[100:103], v99, s[48:51], 0 offen
        buffer_store_dwordx4 v[104:107], v99, s[48:51], 0 offen offset:16
        buffer_store_dword v108, v99, s[48:51], 0 offen offset:32
        s_mov_b64 exec, -1
        L_Q_nodbg:
        """)
    dump_stamps()
    a("s_endpgm")
    a("L_Q_fb:")
    for i in range(4):
        a(f"v_and_b32 v{24+2*i}, 0xffff, v{16+i}")
        a(f"v_lshrrev_b32 v{25+2*i}, 16, v{16+i}")
    a(f"""
    s_movk_i32 s10, 0x800
    v_mov_b32 v42, {f32bits(GC0):#x}
    v_mov_b32 v43, {f32bits(GC0):#x}
    v_mov_b32 v44, 1.0
    v_mov_b32 v45, 1.0
    s_mov_b32 s92, {f32bits(GC1):#x}
    s_mov_b32 s93, {f32bits(GC1):#x}
    """)
    for i in range(8):
        Lf = a.label("Lfb"); Ld = a.label("Lfbd")
        a(f"""
        v_and_b32 v46, 0x7fff, v{24+i}
        v_subrev_u32 v46, {e0 << 7}, v46
        v_cmp_le_u32 s[94:95], s10, v46
        {Lf}:
        s_cmp_eq_u64 s[94:95], 0
        s_cbranch_scc1 {Ld}
        s_ff1_i32_b64 s96, s[94:95]
        s_bitset0_b64 s[94:95], s96
        s_mov_b32 m0, s96
        s_nop 1
        v_readlane_b32 s68, v{24+i}, m0
        s_call_b64 s[98:99], L_eval
        s_nop 3
        v_writelane_b32 v{48+i}, s68, m0
        s_branch {Lf}
        {Ld}:
        """)
    a("s_nop 1")
    a("s_branch L_Q_nofb")
    a(f"""
    L_eval:
    s_nop 3
    s_lshl_b32 s68, s68, 16
    s_mov_b32 s69, s68
    v_mov_b32 v40, 0
    """)
    for p in range(0, 14, 2):
        unpack(14, 15, FB1 + p); unpack(62, 63, FB1 + p + 1)
        gelu_pairs(a, [(FW1 + 2*p, 14, FW2 + p, 8), (FW1 + 2*p + 2, 62, FW2 + p + 1, 56)], 40, "s[68:69]", "s[92:93]", 42, 44)
    allreduce([40], "add", [41])
    rbf(40, 40)
    a(f"""
    v_add_f32 v40, v40, v120
    v_cvt_pk_bf16_f32 v40, v40, v40
    v_and_b32 v40, 0xffff, v40
    v_readfirstlane_b32 s68, v40
    s_setpc_b64 s[98:99]
    """)

    a("L_roleT:")
    stamp(0)
    a("s_sub_u32 s9, s3, 10")
    srd(64, 34, 2)
    W1 = 8; B1 = 36; W2 = 64; TP = 80
    a("v_mov_b32 v5, 0")
    a("buffer_load_ushort v6, v5, s[64:67], 0 offen")
    lds_wait(FL_WT, 1)
    stamp(10)
    a("v_lshl_add_u32 v4, v0, 3, v2")
    for i in range(7):
        a(f"ds_read_b64 v[{TP+2*i}:{TP+2*i+1}], v4 offset:{WT + 512*i}")
        a(f"ds_read_b64 v[{TP+14+2*i}:{TP+15+2*i}], v4 offset:{WT + 4096 + 512*i}")
    a("s_waitcnt lgkmcnt(0)")
    for i in range(7):
        a(f"ds_read_b64 v[{W2+2*i}:{W2+2*i+1}], v4 offset:{WT + 8192 + 512*i}")
    for i in range(14):
        unpack(W1 + 2*i, W1 + 2*i + 1, TP + i)
        unpack(B1 + 2*i, B1 + 2*i + 1, TP + 14 + i)
    a(f"""
    v_mov_b32 v80, {f32bits(GC0):#x}
    v_mov_b32 v81, {f32bits(GC0):#x}
    v_mov_b32 v82, 1.0
    v_mov_b32 v83, 1.0
    s_mov_b32 s92, {f32bits(GC1):#x}
    s_mov_b32 s93, {f32bits(GC1):#x}
    s_lshl_b32 s10, s2, 4
    s_lshl_b32 s11, s9, 2
    s_add_u32 s10, s10, s11
    s_lshr_b32 s11, s10, 11
    s_and_b32 s10, s10, 0x7ff
    s_add_u32 s10, s10, {e0 << 7}
    s_lshl_b32 s10, s10, 16
    s_lshl_b32 s11, s11, 31
    s_or_b32 s68, s10, s11
    s_mov_b32 s69, s68
    s_mov_b32 s11, 0
    """)
    get_tag()
    a(f"""
    v_mov_b32 v3, 1
    s_mov_b64 exec, 1
    ds_add_u32 v2, v3 offset:{CNT_WT}
    s_mov_b64 exec, -1
    L_T_tab:
    v_mov_b32 v107, v106
    v_mov_b32 v106, v105
    v_mov_b32 v105, v104
    v_mov_b32 v104, 0
    """)
    for p in range(0, 14, 2):
        gelu_pairs(a, [(W1 + 2*p, B1 + 2*p, W2 + p, 88), (W1 + 2*p + 2, B1 + 2*p + 2, W2 + p + 1, 96)], 104, "s[68:69]", "s[92:93]", 80, 82)
    a(f"""
    s_add_u32 s68, s68, 0x10000
    s_mov_b32 s69, s68
    s_add_u32 s11, s11, 1
    s_cmp_lt_u32 s11, 4
    s_cbranch_scc1 L_T_tab
    s_nop 2
    """)
    allreduce([104, 105, 106, 107], "add", [84, 85, 86, 87])
    for r in (104, 105, 106, 107): rbf(r, r)
    a(f"""
    s_waitcnt vmcnt(0)
    v_lshlrev_b32 v6, 16, v6
    v_add_f32 v104, v104, v6
    v_add_f32 v105, v105, v6
    v_add_f32 v106, v106, v6
    v_add_f32 v107, v107, v6
    v_cvt_pk_bf16_f32 v88, v107, v106
    v_cvt_pk_bf16_f32 v89, v105, v104
    v_mov_b32 v90, s60
    v_mov_b32 v91, s61
    s_lshl_b32 s10, s2, 2
    s_add_u32 s10, s10, s9
    s_lshl_b32 s10, s10, 4
    s_add_u32 s10, s10, {TG}
    s_mov_b64 exec, 1
    buffer_store_dwordx4 v[88:91], v5, s[44:47], s10 offen sc1
    s_mov_b64 exec, -1
    """)
    stamp(1)
    dump_stamps()
    a("s_endpgm")

    a("L_roleW:")
    a("s_setprio 2")
    stamp(0)
    a("s_sub_u32 s9, s3, 2")
    srd(64, 16, 4096)
    a(f"""
    v_and_b32 v7, 31, v0
    v_lshlrev_b32 v7, 2, v7
    s_lshl_b32 s10, s6, 10
    s_lshl_b32 s11, s9, 7
    s_add_u32 s10, s10, s11
    buffer_load_dword v96, v7, s[64:67], s10 offen
    """)
    get_tag()
    stamp(1)
    a(f"""
    v_and_b32 v4, 15, v0
    v_lshrrev_b32 v5, 4, v0
    v_xor_b32 v6, v4, v5
    v_lshlrev_b32 v6, 4, v6
    v_lshl_add_u32 v6, v4, 8, v6
    s_lshl_b32 s10, s9, 13
    v_add_u32 v8, s10, v6
    v_xor_b32 v9, 64, v8
    v_xor_b32 v10, 128, v8
    v_xor_b32 v11, 192, v8
    v_and_b32 v7, 3, v0
    v_lshlrev_b32 v12, 8, v7
    v_lshl_add_u32 v12, v5, 4, v12
    v_add_u32 v12, v12, v2
    v_mov_b32 v74, s60
    v_mov_b32 v75, s61
    s_lshl_b32 s64, s8, 15
    s_lshl_b32 s12, s7, 12
    s_add_u32 s64, s64, s12
    s_lshr_b32 s12, s9, 2
    s_lshl_b32 s12, s12, 11
    s_add_u32 s64, s64, s12
    s_and_b32 s12, s9, 3
    s_lshl_b32 s12, s12, 6
    s_add_u32 s64, s64, s12
    s_add_u32 s64, s64, {SG}
    s_lshl_b32 s65, s8, 12
    s_lshl_b32 s12, s7, 9
    s_add_u32 s65, s65, s12
    s_lshl_b32 s12, s9, 6
    s_add_u32 s65, s65, s12
    s_add_u32 s65, s65, {STG}
    v_lshlrev_b32 v13, 4, v7
    v_add_u32 v15, s65, v13
    v_lshl_add_u32 v13, v5, 8, v13
    v_add_u32 v13, s64, v13
    v_bfe_u32 v14, v0, 2, 2
    v_cmp_eq_u32 s[64:65], 1, v14
    v_cmp_eq_u32 s[68:69], 2, v14
    v_add_u32 v14, 1024, v13
    v_cndmask_b32 v13, v13, v14, s[64:65]
    v_cndmask_b32 v13, v13, v15, s[68:69]
    v_lshlrev_b32 v14, 4, v0
    s_lshl_b32 s11, s9, 3
    s_add_u32 s11, s11, s42
    s_add_u32 s11, s11, 8
    """)
    lds_wait(PROG, "s11")
    for T in range(2):
        for s in range(4):
            a(f"ds_read_b128 v[{32+16*T+4*s}:{35+16*T+4*s}], v{8+s} offset:{4096*T}")
    lds_wait(FL_QREADY, 1)
    stamp(2)
    for s in range(4):
        a(f"ds_read_b128 v[{16+4*s}:{19+4*s}], v12 offset:{QI + 64*s}")
    a(f"""
    v_mov_b32 v3, 1
    s_mov_b64 exec, 1
    ds_add_u32 v2, v3 offset:{CNT_QK}
    s_mov_b64 exec, -1
    s_mov_b32 s10, {f32bits(SCALE):#x}
    s_mov_b32 s11, {f32bits(LOG2E):#x}
    """)
    for s in range(4):
        a(f"s_waitcnt lgkmcnt({4 - s})")
        for T in range(2):
            c = "0" if s == 0 else f"v[{64+4*T}:{67+4*T}]"
            a(f"v_mfma_f32_16x16x32_bf16 v[{64+4*T}:{67+4*T}], v[{32+16*T+4*s}:{35+16*T+4*s}], v[{16+4*s}:{19+4*s}], {c}")
    for T in range(2):
        a(f"v_cvt_pk_bf16_f32 v{80+2*T}, v{64+4*T}, v{65+4*T}")
        a(f"v_cvt_pk_bf16_f32 v{81+2*T}, v{66+4*T}, v{67+4*T}")
    for i in range(4): unpack(64 + 2*i, 65 + 2*i, 80 + i)
    for i in range(8): a(f"v_mul_f32 v{64+i}, s10, v{64+i}")
    for T in range(2):
        a(f"v_cvt_pk_bf16_f32 v{72+4*T}, v{64+4*T}, v{65+4*T}")
        a(f"v_cvt_pk_bf16_f32 v{73+4*T}, v{66+4*T}, v{67+4*T}")
    unpack(64, 65, 72); unpack(66, 67, 73); unpack(68, 69, 76); unpack(70, 71, 77)
    a("v_cndmask_b32 v72, v72, v76, s[64:65]")
    a("v_cndmask_b32 v73, v73, v77, s[64:65]")
    a(f"""
    v_max3_f32 v84, v64, v65, v66
    v_max3_f32 v85, v67, v68, v69
    v_max3_f32 v84, v84, v70, v71
    v_max_f32 v84, v84, v85
    """)
    xrow([84], "max", [88])
    for i in range(8): a(f"v_sub_f32 v{64+i}, v{64+i}, v84")
    for i in range(8): a(f"v_mul_f32 v{64+i}, s11, v{64+i}")
    for i in range(8): a(f"v_exp_f32 v{64+i}, v{64+i}")
    a(f"""
    v_add_f32 v85, v64, v65
    v_add_f32 v88, v66, v67
    v_add_f32 v89, v68, v69
    v_add_f32 v90, v70, v71
    v_add_f32 v85, v85, v88
    v_add_f32 v89, v89, v90
    v_add_f32 v85, v85, v89
    """)
    xrow([85], "add", [88])
    a(f"""
    v_cndmask_b32 v72, v72, v84, s[68:69]
    v_cndmask_b32 v73, v73, v85, s[68:69]
    s_mov_b32 exec_lo, 0x00ff0fff
    s_mov_b32 exec_hi, 0x00ff00ff
    s_mov_b32 s12, {MIRROR}
    buffer_store_dwordx4 v[72:75], v13, s[44:47], 0 offen
    """)
    stamp(3)
    a(f"""
    buffer_store_dwordx4 v[72:75], v13, s[44:47], s12 offen sc1
    s_mov_b64 exec, -1
    s_lshl_b32 s10, s8, 15
    s_lshr_b32 s12, s7, 2
    s_lshl_b32 s12, s12, 14
    s_add_u32 s10, s10, s12
    s_lshl_b32 s12, s9, 11
    s_add_u32 s10, s10, s12
    s_add_u32 s66, s10, {SG}
    v_lshrrev_b32 v16, 2, v0
    v_lshlrev_b32 v17, 3, v7
    v_lshl_add_u32 v16, v16, 6, v17
    s_lshl_b32 s10, s9, 13
    s_add_u32 s10, s10, {V_L}
    v_add_u32 v17, s10, v16
    v_lshl_add_u32 v18, v7, 3, v2
    v_lshlrev_b32 v19, 7, v7
    v_lshl_add_u32 v19, v5, 4, v19
    s_lshl_b32 s10, s9, 9
    v_add3_u32 v19, v19, v2, s10
    s_lshl_b32 s64, s9, 3
    s_add_u32 s64, s64, s42
    s_add_u32 s64, s64, 72
    """)
    poll([(20, 14, "s66", 0), (24, 14, "s66", 1024)], dual=R0, trig=FL_STATS, nspin=NSP)
    stamp(4)
    unpack(28, 29, 20); unpack(30, 31, 21); unpack(32, 33, 24); unpack(34, 35, 25)
    a(f"""
    v_max3_f32 v38, v28, v29, v30
    v_max3_f32 v39, v31, v32, v33
    v_max3_f32 v38, v38, v34, v35
    v_max_f32 v38, v38, v39
    """)
    for i in range(8): a(f"v_sub_f32 v{28+i}, v{28+i}, v38")
    for i in range(8): a(f"v_mul_f32 v{28+i}, s11, v{28+i}")
    for i in range(8): a(f"v_exp_f32 v{28+i}, v{28+i}")
    lds_wait(CNT_WT, 4)
    lds_wait(PROG, "s64")
    for c in range(4):
        for dt in range(2):
            r = 56 + 8*c + 4*dt
            a(f"ds_read_b64_tr_b16 v[{r}:{r+1}], v17 offset:{2048*c + 32*dt}")
            a(f"ds_read_b64_tr_b16 v[{r+2}:{r+3}], v17 offset:{2048*c + 32*dt + 1024}")
        if c == 2: a("s_waitcnt lgkmcnt(8)")
    lds_wait(FL_STATS, 1, slp=0)
    stamp(5)
    a(f"""
    ds_read_b64 v[36:37], v18 offset:{ST}
    s_waitcnt lgkmcnt(0)
    v_sub_f32 v38, v38, v36
    v_mul_f32 v38, s11, v38
    v_exp_f32 v38, v38
    v_mul_f32 v38, v38, v37
    v_mov_b32 v39, v38
    """)
    for i in range(0, 8, 2): a(f"v_pk_mul_f32 v[{28+i}:{29+i}], v[{28+i}:{29+i}], v[38:39]")
    for i in range(4): a(f"v_cvt_pk_bf16_f32 v{40+i}, v{28+2*i}, v{29+2*i}")
    for c in range(4):
        if c:
            for i in range(4):
                a(f"v_mov_b32_dpp v{40+4*c+i}, v{40+i} row_shl:{4*c} row_mask:0xf bank_mask:0xf")
        for dt in range(2):
            r = 56 + 8*c + 4*dt
            cc = "0" if c == 0 else f"v[{88+4*dt}:{91+4*dt}]"
            a(f"v_mfma_f32_16x16x32_bf16 v[{88+4*dt}:{91+4*dt}], v[{r}:{r+3}], v[{40+4*c}:{43+4*c}], {cc}")
    a(f"""
    v_lshl_add_u32 v20, v0, 3, v2
    v_and_b32 v21, 1, v4
    v_lshlrev_b32 v21, 10, v21
    v_lshl_add_u32 v21, v5, 13, v21
    v_bfe_u32 v22, v4, 1, 2
    v_lshl_add_u32 v21, v22, 8, v21
    v_lshrrev_b32 v22, 3, v4
    v_lshl_add_u32 v21, v22, 6, v21
    s_lshl_b32 s10, s4, 15
    s_and_b32 s11, s7, 3
    s_lshl_b32 s11, s11, 11
    s_add_u32 s10, s10, s11
    s_lshr_b32 s11, s7, 2
    s_lshl_b32 s11, s11, 7
    s_add_u32 s10, s10, s11
    s_lshl_b32 s11, s6, 4
    s_add_u32 s10, s10, s11
    s_add_u32 s10, s10, {OG}
    s_add_u32 s11, s10, {MIRROR}
    s_mov_b32 exec_lo, {MASK4}
    s_mov_b32 exec_hi, {MASK4}
    ds_write_b128 v19, v[88:91] offset:{OS}
    ds_write_b128 v19, v[92:95] offset:{OS + 64}
    s_mov_b64 exec, -1
    """)
    lds_count(CNT_O)
    a(f"""
    s_cmp_lg_u32 s12, 7
    s_cbranch_scc1 L_W_onot
    """)
    def slot_sum(base):
        for w in range(8):
            a(f"ds_read_b64 v[{24+2*w}:{25+2*w}], v20 offset:{base + 512*w}")
        a("s_waitcnt lgkmcnt(0)")
        a("""
        v_pk_add_f32 v[24:25], v[24:25], v[26:27]
        v_pk_add_f32 v[28:29], v[28:29], v[30:31]
        v_pk_add_f32 v[32:33], v[32:33], v[34:35]
        v_pk_add_f32 v[36:37], v[36:37], v[38:39]
        v_mov_b32 v26, s60
        v_pk_add_f32 v[24:25], v[24:25], v[28:29]
        v_pk_add_f32 v[32:33], v[32:33], v[36:37]
        v_mov_b32 v27, s61
        v_pk_add_f32 v[24:25], v[24:25], v[32:33]
        """)
    slot_sum(OS)
    a(f"""
    buffer_store_dwordx4 v[24:27], v21, s[44:47], s10 offen
    buffer_store_dwordx4 v[24:27], v21, s[44:47], s11 offen sc1
    """)
    lds_set(FL_OPUB, 1)
    a("L_W_onot:")
    stamp(6)
    a("s_cmp_lt_u32 s5, 16")
    a("s_cbranch_scc1 L_W_qwg")
    a(f"""
    s_lshl_b32 s10, s4, 15
    s_lshl_b32 s11, s9, 12
    s_add_u32 s10, s10, s11
    s_add_u32 s66, s10, {OG}
    s_lshl_b32 s10, s9, 12
    v_add_u32 v17, s10, v16
    v_lshlrev_b32 v22, 4, v4
    v_lshl_add_u32 v22, v5, 15, v22
    s_lshl_b32 s10, s4, 12
    s_sub_u32 s11, s5, 16
    s_lshl_b32 s11, s11, 8
    s_add_u32 s10, s10, s11
    s_add_u32 s65, s10, {AG}
    """)
    lds_wait(PROG, 160)
    for e in range(2):
        for ct in range(2):
            r = 56 + 8*e + 4*ct
            a(f"ds_read_b64_tr_b16 v[{r}:{r+1}], v17 offset:{WO_L + 2048*e + 32*ct}")
            a(f"ds_read_b64_tr_b16 v[{r+2}:{r+3}], v17 offset:{WO_L + 2048*e + 32*ct + 1024}")
    lds_wait(FL_OPUB, 1)
    poll([(24, 14, "s66", 0), (28, 14, "s66", 1024), (32, 14, "s66", 2048), (36, 14, "s66", 3072)], sleep=SA, dual=R0)
    stamp(7)
    for r in (24, 25, 28, 29, 32, 33, 36, 37):
        a(f"v_add_f32_dpp v{r}, v{r}, v{r} row_ror:8 row_mask:0xf bank_mask:0xf")
    a(f"""
    v_cvt_pk_bf16_f32 v40, v24, v25
    v_cvt_pk_bf16_f32 v41, v28, v29
    v_cvt_pk_bf16_f32 v44, v32, v33
    v_cvt_pk_bf16_f32 v45, v36, v37
    v_mov_b32_dpp v42, v40 row_shl:4 row_mask:0xf bank_mask:0xf
    v_mov_b32_dpp v43, v41 row_shl:4 row_mask:0xf bank_mask:0xf
    v_mov_b32_dpp v46, v44 row_shl:4 row_mask:0xf bank_mask:0xf
    v_mov_b32_dpp v47, v45 row_shl:4 row_mask:0xf bank_mask:0xf
    """)
    for e in range(2):
        for ct in range(2):
            r = 56 + 8*e + 4*ct
            cc = "0" if e == 0 else f"v[{88+4*ct}:{91+4*ct}]"
            a(f"v_mfma_f32_16x16x32_bf16 v[{88+4*ct}:{91+4*ct}], v[{r}:{r+3}], v[{40+4*e}:{43+4*e}], {cc}")
    a(f"""
    s_mov_b32 exec_lo, {MASK4}
    s_mov_b32 exec_hi, {MASK4}
    ds_write_b128 v19, v[88:91] offset:{AS}
    ds_write_b128 v19, v[92:95] offset:{AS + 64}
    s_mov_b64 exec, -1
    """)
    lds_count(CNT_A)
    a(f"""
    s_cmp_lg_u32 s12, 7
    s_cbranch_scc1 L_W_done
    """)
    slot_sum(AS)
    a(f"""
    buffer_store_dwordx4 v[24:27], v22, s[44:47], s65 offen sc1
    s_branch L_W_done
    L_W_qwg:
    s_cmp_lg_u32 s4, 0
    s_cbranch_scc1 L_W_done
    s_cmp_ge_u32 s5, 4
    s_cbranch_scc1 L_W_done
    v_and_b32 v21, 31, v0
    v_lshlrev_b32 v22, 4, v21
    v_lshrrev_b32 v23, 5, v0
    v_lshl_add_u32 v22, v23, 14, v22
    s_lshl_b32 s10, s5, 15
    s_lshl_b32 s11, s9, 9
    s_add_u32 s10, s10, s11
    s_add_u32 s66, s10, {AG}
    s_add_u32 s67, s66, 4096
    s_add_u32 s68, s66, 8192
    s_add_u32 s69, s66, 12288
    s_lshl_b32 s10, s9, 8
    v_lshl_add_u32 v21, v21, 3, v2
    v_add_u32 v21, s10, v21
    v_lshlrev_b32 v44, 16, v96
    v_and_b32 v45, 0xffff0000, v96
    """)
    lds_wait(FL_OPUB, 1)
    poll([(24 + 4*i, 22, f"s{66+i}", 0) for i in range(4)], sleep=SB)
    stamp(8)
    a(f"""
    v_pk_add_f32 v[24:25], v[24:25], v[28:29]
    v_pk_add_f32 v[32:33], v[32:33], v[36:37]
    v_pk_add_f32 v[24:25], v[24:25], v[32:33]
    v_mov_b32 v26, v24
    v_mov_b32 v27, v25
    v_permlane32_swap_b32 v24, v26
    v_permlane32_swap_b32 v25, v27
    v_pk_add_f32 v[24:25], v[24:25], v[26:27]
    v_cvt_pk_bf16_f32 v26, v24, v25
    v_lshlrev_b32 v24, 16, v26
    v_and_b32 v25, 0xffff0000, v26
    v_pk_add_f32 v[24:25], v[24:25], v[44:45]
    v_cvt_pk_bf16_f32 v26, v24, v25
    v_lshlrev_b32 v24, 16, v26
    v_and_b32 v25, 0xffff0000, v26
    ds_write_b64 v21, v[24:25] offset:{ROW}
    v_mov_b32 v3, 1
    s_mov_b64 exec, 1
    ds_add_u32 v2, v3 offset:{CNT_ROW}
    s_mov_b64 exec, -1
    L_W_done:
    """)
    stamp(9)
    dump_stamps()
    a("L_end:")
    a("s_endpgm")
    a("L_code_end:")
    return wrap(a.text(), 256, 896, LDS_TOTAL, 128, denorm=True)

if __name__ == "__main__":
    import argparse
    ap = argparse.ArgumentParser()
    ap.add_argument("-o", default="t/k7.s"); ap.add_argument("--dbg", action="store_true"); ap.add_argument("--dbg2", action="store_true")
    ap.add_argument("--pol", default="nt"); ap.add_argument("--nopf", action="store_true")
    for n, d in (("dq", 20), ("dw", 16), ("dwq", 32), ("dk0", 8), ("nk0", 16), ("sq", 2), ("ss", 2), ("sa", 1), ("sb", 1), ("e0", 114), ("priol", 0), ("r0", 24), ("wqd", -1), ("nsp", 6)):
        ap.add_argument("--" + n, type=int, default=d)
    g = ap.parse_args()
    open(g.o, "w").write(gen(dbg=g.dbg, dbg2=g.dbg2, pol=g.pol, prefetch=not g.nopf, DQ=g.dq, DW=g.dw, DWQ=g.dwq, DK0=g.dk0, NK0=g.nk0,
                             SQ=g.sq, SS=g.ss, SA=g.sa, SB=g.sb, e0=g.e0, prioL=g.priol, R0=g.r0, WQD=g.wqd, NSP=g.nsp))
```

```python
import sys, struct
from asmgen import *

def f32bits(x): return struct.unpack("<I", struct.pack("<f", x))[0]

K_L = 0; V_L = 65536; WQ_L = 98304; WO_L = 0
MISC = 131072
XN = 0; QI = 4096; FL = 5120; ST = 5376; OS = 6144; AS = 10240; ROW = 14336; TAB = 16384; WT = 6144
LDS_TOTAL = MISC + 24576
FL_QPROJ = FL + 0; FL_QREADY = FL + 4; PROG = FL + 8; FL_STATS = FL + 20; CNT_QK = FL + 24; CNT_O = FL + 28
CNT_A = FL + 32; CNT_ROW = FL + 36; FL_OPUB = FL + 48; FL_WT = FL + 52; CNT_WT = FL + 56
QG = 0xB0000; STG = 0x20000; OG = 0x40000; AG = 0x80000; TG = 0xA0000; SG = 0x100000; DBGA = 0x600000
WS_BYTES = 0x800000; MIRROR = 0x200000
TAB_E0 = 114
LOG2E = 1.4426950408889634
SCALE = 128 ** -0.5
GC0 = -2.0 * 0.7978845608028654 * LOG2E
GC1 = GC0 * 0.044715
MASK4 = "0x000f000f"

def gelu_pairs(a, items, acc, st, sc1, vc0, vone):
    for (w, b, w2, t) in items: a(f"v_pk_mul_f32 v[{t}:{t+1}], v[{w}:{w+1}], {st}")
    for (w, b, w2, t) in items: a(f"v_cvt_pk_bf16_f32 v{t+2}, v{t}, v{t+1}")
    for (w, b, w2, t) in items:
        a(f"v_lshlrev_b32 v{t}, 16, v{t+2}"); a(f"v_and_b32 v{t+1}, 0xffff0000, v{t+2}")
    for (w, b, w2, t) in items: a(f"v_pk_add_f32 v[{t}:{t+1}], v[{t}:{t+1}], v[{b}:{b+1}]")
    for (w, b, w2, t) in items: a(f"v_cvt_pk_bf16_f32 v{t+2}, v{t}, v{t+1}")
    for (w, b, w2, t) in items:
        a(f"v_lshlrev_b32 v{t}, 16, v{t+2}"); a(f"v_and_b32 v{t+1}, 0xffff0000, v{t+2}")
    for (w, b, w2, t) in items: a(f"v_pk_mul_f32 v[{t+2}:{t+3}], v[{t}:{t+1}], v[{t}:{t+1}]")
    for (w, b, w2, t) in items: a(f"v_pk_fma_f32 v[{t+2}:{t+3}], v[{t+2}:{t+3}], {sc1}, v[{vc0}:{vc0+1}]")
    for (w, b, w2, t) in items: a(f"v_pk_mul_f32 v[{t+2}:{t+3}], v[{t+2}:{t+3}], v[{t}:{t+1}]")
    for (w, b, w2, t) in items:
        a(f"v_exp_f32 v{t+2}, v{t+2}"); a(f"v_exp_f32 v{t+3}, v{t+3}")
    for (w, b, w2, t) in items: a(f"v_pk_add_f32 v[{t+2}:{t+3}], v[{t+2}:{t+3}], v[{vone}:{vone+1}]")
    for (w, b, w2, t) in items:
        a(f"v_rcp_f32 v{t+2}, v{t+2}"); a(f"v_rcp_f32 v{t+3}, v{t+3}")
    for (w, b, w2, t) in items: a(f"v_pk_mul_f32 v[{t+2}:{t+3}], v[{t+2}:{t+3}], v[{t}:{t+1}]")
    for (w, b, w2, t) in items: a(f"v_cvt_pk_bf16_f32 v{t+4}, v{t+2}, v{t+3}")
    for (w, b, w2, t) in items: a(f"v_dot2_f32_bf16 v{acc}, v{t+4}, v{w2}, v{acc}")

def gen(dbg=False, pol="nt", prefetch=True, DQ=20, DW=16, DWQ=32, DK0=8, NK0=16, SQ=2, SS=2, SA=1, SB=1, dbg2=False, e0=114, prioL=0, R0=24, WQD=-1, NSP=6, DQV=0, DWV=0, DWO=0, abl=False, X="", QDELAY=0):
    DQV = DQV or DQ; DWV = DWV or DW; DWO = DWO or DW
    a = A()
    POL = " " + pol if pol else ""
    nstamp = [0]
    def stamp(i=None):
        if dbg:
            if i is None:
                i = nstamp[0]; nstamp[0] += 1
            a(f"s_memrealtime s[{70+2*i}:{71+2*i}]")
            a("s_waitcnt lgkmcnt(0)")
    def dump_stamps():
        if dbg:
            a("s_mov_b64 exec, -1")
            a("s_waitcnt vmcnt(0) lgkmcnt(0)")
            for i in range(12):
                a(f"v_mov_b32 v{100+i}, s{70+2*i}")
            a(f"""
            s_mul_i32 s10, s2, 14
            s_add_u32 s10, s10, s3
            s_mul_i32 s10, s10, 64
            s_add_u32 s10, s10, {DBGA}
            v_mov_b32 v99, s10
            s_mov_b64 exec, 1
            buffer_store_dwordx4 v[100:103], v99, s[44:47], 0 offen
            buffer_store_dwordx4 v[104:107], v99, s[44:47], 0 offen offset:16
            buffer_store_dwordx4 v[108:111], v99, s[44:47], 0 offen offset:32
            """)
        nstamp[0] = 0
    def srd(d, ptr, nbytes):
        a(f"""
        s_mov_b32 s{d}, s{ptr}
        s_and_b32 s{d+1}, s{ptr+1}, 0xffff
        s_mov_b32 s{d+2}, {nbytes}
        s_mov_b32 s{d+3}, 0x20000
        """)
    def lds_wait(off, val, vt=3, slp=1):
        L = a.label("Lw"); D = a.label("Lwd")
        a(f"""
        s_mov_b32 s13, 0x40000
        {L}:
        ds_read_b32 v{vt}, v2 offset:{off}
        s_waitcnt lgkmcnt(0)
        v_readfirstlane_b32 s12, v{vt}
        s_cmp_ge_u32 s12, {val}
        s_cbranch_scc1 {D}
        s_sub_u32 s13, s13, 1
        s_cbranch_scc1 {D}
        """)
        if slp: a(f"s_sleep {slp}")
        a(f"""
        s_branch {L}
        {D}:
        """)
    def lds_set(off, val, vt=3):
        a(f"""
        v_mov_b32 v{vt}, {val}
        s_mov_b64 exec, 1
        ds_write_b32 v2, v{vt} offset:{off}
        s_mov_b64 exec, -1
        """)
    def lds_count(off, vt=3):
        a(f"""
        v_mov_b32 v{vt}, 1
        s_mov_b64 exec, 1
        ds_add_rtn_u32 v{vt}, v2, v{vt} offset:{off}
        s_mov_b64 exec, -1
        s_waitcnt lgkmcnt(0)
        v_readfirstlane_b32 s12, v{vt}
        """)
    def dual_sel(R0):
        a(f"""
        s_and_b32 s12, s13, 1
        s_cmp_lt_u32 s13, {0x3fff - R0}
        s_cselect_b32 s12, s12, 0
        s_mul_i32 s12, s12, {MIRROR}
        s_add_u32 s67, s12, s66
        """)
    def poll(loads, sleep=2, dual=None, trig=None, nspin=6):
        a("s_mov_b32 s13, 0x3fff")
        L = a.label("Lp"); D = a.label("Lpd"); S = a.label("Lps")
        a(f"{L}:")
        if dual: dual_sel(dual)
        for (d, va, so, imm) in loads:
            a(f"buffer_load_dwordx4 v[{d}:{d+3}], v{va}, s[44:47], {'s67' if dual else so} offen offset:{imm} sc1")
        a("s_waitcnt vmcnt(0)")
        for i, (d, va, so, imm) in enumerate(loads):
            if i == 0:
                a(f"v_cmp_ne_u64 s[14:15], s[60:61], v[{d+2}:{d+3}]")
            else:
                a(f"v_cmp_ne_u64 vcc, s[60:61], v[{d+2}:{d+3}]")
                a("s_or_b64 s[14:15], s[14:15], vcc")
        a(f"""
        s_cmp_eq_u64 s[14:15], 0
        s_cbranch_scc1 {D}
        s_sub_u32 s13, s13, 1
        s_cbranch_scc1 {D}
        """)
        if trig is None:
            a(f"s_sleep {sleep}")
            a(f"s_branch {L}")
        else:
            a(f"""
            s_mov_b32 s14, {nspin}
            {S}:
            s_sleep 1
            ds_read_b32 v3, v2 offset:{trig}
            s_waitcnt lgkmcnt(0)
            v_readfirstlane_b32 s12, v3
            s_cmp_lg_u32 s12, 0
            s_cbranch_scc1 {L}
            s_sub_u32 s14, s14, 1
            s_cbranch_scc0 {S}
            s_branch {L}
            """)
        a(f"{D}:")
    def xrow(regs, op, tmps):
        for sw in ("v_permlane16_swap_b32", "v_permlane32_swap_b32"):
            for r, t in zip(regs, tmps): a(f"v_mov_b32 v{t}, v{r}")
            for r, t in zip(regs, tmps): a(f"{sw} v{r}, v{t}")
            for r, t in zip(regs, tmps): a(f"v_{op}_f32 v{r}, v{r}, v{t}")
    def allreduce(regs, op, tmps):
        for m in ("quad_perm:[1,0,3,2]", "quad_perm:[2,3,0,1]", "row_half_mirror", "row_mirror"):
            for r in regs:
                a(f"v_{op}_f32_dpp v{r}, v{r}, v{r} {m} row_mask:0xf bank_mask:0xf")
        xrow(regs, op, tmps)
    def rbf(dst, src):
        a(f"v_cvt_pk_bf16_f32 v{dst}, v{src}, v{src}")
        a(f"v_lshlrev_b32 v{dst}, 16, v{dst}")
    def unpack(dlo, dhi, src):
        a(f"v_lshlrev_b32 v{dlo}, 16, v{src}")
        a(f"v_and_b32 v{dhi}, 0xffff0000, v{src}")
    def layernorm4(rows, tmpb):
        n = len(rows)
        S = [tmpb + i for i in range(n)]; T = [tmpb + n + i for i in range(n)]; Mb = [tmpb + 2*n + i for i in range(n)]
        D = [tmpb + 3*n + 8*i for i in range(n)]
        for x, s, t in zip(rows, S, T):
            a(f"v_add_f32 v{s}, v{x}, v{x+1}"); a(f"v_add_f32 v{t}, v{x+2}, v{x+3}")
        for x, s, t in zip(rows, S, T):
            a(f"v_add_f32 v{s}, v{s}, v{x+4}"); a(f"v_add_f32 v{t}, v{t}, v{x+5}")
        for x, s, t in zip(rows, S, T):
            a(f"v_add_f32 v{s}, v{s}, v{x+6}"); a(f"v_add_f32 v{t}, v{t}, v{x+7}")
        for s, t in zip(S, T): a(f"v_add_f32 v{s}, v{s}, v{t}")
        allreduce(S, "add", T)
        for s in S: a(f"v_mul_f32 v{s}, {f32bits(1/512):#x}, v{s}")
        for x, s, d in zip(rows, S, D):
            for i in range(8): a(f"v_sub_f32 v{d+i}, v{x+i}, v{s}")
        for s, m in zip(S, Mb): rbf(m, s)
        for s, t, d in zip(S, T, D):
            a(f"v_mul_f32 v{s}, v{d}, v{d}"); a(f"v_mul_f32 v{t}, v{d+1}, v{d+1}")
        for i in range(2, 8, 2):
            for s, t, d in zip(S, T, D):
                a(f"v_fmac_f32 v{s}, v{d+i}, v{d+i}"); a(f"v_fmac_f32 v{t}, v{d+i+1}, v{d+i+1}")
        for s, t in zip(S, T): a(f"v_add_f32 v{s}, v{s}, v{t}")
        allreduce(S, "add", T)
        for s in S: a(f"v_mul_f32 v{s}, {f32bits(1/512):#x}, v{s}")
        for s in S: rbf(s, s)
        for s in S: a(f"v_add_f32 v{s}, {f32bits(1e-5):#x}, v{s}")
        for s in S: rbf(s, s)
        for s in S: a(f"v_sqrt_f32 v{s}, v{s}")
        for s in S: rbf(s, s)
        for s in S: a(f"v_rcp_f32 v{s}, v{s}")
        for x, m, d in zip(rows, Mb, D):
            for i in range(8): a(f"v_sub_f32 v{d+i}, v{x+i}, v{m}")
        for x, d in zip(rows, D):
            for i in range(0, 8, 2): a(f"v_cvt_pk_bf16_f32 v{x+i}, v{d+i}, v{d+i+1}")
        for x, d in zip(rows, D):
            for i in range(0, 8, 2): unpack(d+i, d+i+1, x+i)
        for s, d in zip(S, D):
            for i in range(8): a(f"v_mul_f32 v{d+i}, v{d+i}, v{s}")
        return D
    def layernorm1(x, t, outp, shift):
        d = t; s1 = t + 8; s2 = t + 10; u = t + 12
        if shift:
            for i in range(0, 8, 2):
                a(f"v_pk_add_f32 v[{d+i}:{d+i+1}], v[{x+i}:{x+i+1}], {shift} neg_lo:[0,1] neg_hi:[0,1]")
            src = d
        else: src = x
        a(f"""
        v_pk_add_f32 v[{s1}:{s1+1}], v[{src}:{src+1}], v[{src+2}:{src+3}]
        v_pk_mul_f32 v[{s2}:{s2+1}], v[{src}:{src+1}], v[{src}:{src+1}]
        v_pk_add_f32 v[{u}:{u+1}], v[{src+4}:{src+5}], v[{src+6}:{src+7}]
        v_pk_fma_f32 v[{s2}:{s2+1}], v[{src+2}:{src+3}], v[{src+2}:{src+3}], v[{s2}:{s2+1}]
        v_pk_add_f32 v[{s1}:{s1+1}], v[{s1}:{s1+1}], v[{u}:{u+1}]
        v_pk_fma_f32 v[{s2}:{s2+1}], v[{src+4}:{src+5}], v[{src+4}:{src+5}], v[{s2}:{s2+1}]
        v_add_f32 v{s1}, v{s1}, v{s1+1}
        v_pk_fma_f32 v[{s2}:{s2+1}], v[{src+6}:{src+7}], v[{src+6}:{src+7}], v[{s2}:{s2+1}]
        v_add_f32 v{s2}, v{s2}, v{s2+1}
        """)
        allreduce([s1, s2], "add", [u, u + 1])
        a(f"""
        v_mul_f32 v{s1}, {f32bits(1/512):#x}, v{s1}
        v_mul_f32 v{s2}, {f32bits(1/512):#x}, v{s2}
        v_fma_f32 v{s2}, -v{s1}, v{s1}, v{s2}
        v_max_f32 v{s2}, 0, v{s2}
        """)
        if shift: a(f"v_add_f32 v{s1}, {shift.replace('[','').split(':')[0]}, v{s1}")
        a(f"""
        v_cvt_pk_bf16_f32 v{u}, v{s1}, v{s2}
        v_and_b32 v{s2}, 0xffff0000, v{u}
        v_lshlrev_b32 v{s1}, 16, v{u}
        v_add_f32 v{s2}, {f32bits(1e-5):#x}, v{s2}
        v_mov_b32 v{s1+1}, v{s1}
        v_cvt_pk_bf16_f32 v{s2}, v{s2}, v{s2}
        """)
        for i in range(0, 4, 2):
            a(f"v_pk_add_f32 v[{d+i}:{d+i+1}], v[{x+i}:{x+i+1}], v[{s1}:{s1+1}] neg_lo:[0,1] neg_hi:[0,1]")
        a(f"v_lshlrev_b32 v{s2}, 16, v{s2}")
        for i in range(4, 8, 2):
            a(f"v_pk_add_f32 v[{d+i}:{d+i+1}], v[{x+i}:{x+i+1}], v[{s1}:{s1+1}] neg_lo:[0,1] neg_hi:[0,1]")
        a(f"v_sqrt_f32 v{s2}, v{s2}")
        for i in range(2): a(f"v_cvt_pk_bf16_f32 v{outp+i}, v{d+2*i}, v{d+2*i+1}")
        a(f"v_cvt_pk_bf16_f32 v{s2}, v{s2}, v{s2}")
        for i in range(2, 4): a(f"v_cvt_pk_bf16_f32 v{outp+i}, v{d+2*i}, v{d+2*i+1}")
        a(f"v_lshlrev_b32 v{s2}, 16, v{s2}")
        for i in range(2): unpack(d + 2*i, d + 2*i + 1, outp + i)
        a(f"v_rcp_f32 v{s2}, v{s2}")
        for i in range(2, 4): unpack(d + 2*i, d + 2*i + 1, outp + i)
        a(f"v_mov_b32 v{s2+1}, v{s2}")
        for i in range(0, 8, 2):
            a(f"v_pk_mul_f32 v[{d+i}:{d+i+1}], v[{d+i}:{d+i+1}], v[{s2}:{s2+1}]")
        for i in range(4): a(f"v_cvt_pk_bf16_f32 v{outp+i}, v{d+2*i}, v{d+2*i+1}")
    def get_tag():
        a("""
        s_waitcnt lgkmcnt(0)
        s_add_u32 s60, s62, 0x7f4a7c15
        s_addc_u32 s61, s63, 0x9e3779b9
        """)

    a(f"""
    s_cmp_ge_u32 s2, 256
    s_cbranch_scc1 L_end
    s_load_dwordx16 s[16:31], s[0:1], 0
    s_load_dwordx8 s[32:39], s[0:1], 64
    s_load_dwordx2 s[40:41], s[0:1], 96
    v_lshrrev_b32 v1, 6, v0
    v_and_b32 v0, 63, v0
    v_readfirstlane_b32 s3, v1
    v_mov_b32 v2, {MISC}
    v_lshl_add_u32 v3, v0, 2, v2
    v_mov_b32 v4, 0
    ds_write_b32 v3, v4 offset:{FL}
    s_and_b32 s4, s2, 7
    s_lshr_b32 s5, s2, 3
    s_and_b32 s6, s5, 3
    s_lshr_b32 s7, s5, 2
    s_lshl_b32 s8, s6, 3
    s_add_u32 s8, s8, s4
    s_cmp_lt_u32 s5, 16
    s_cselect_b32 s42, 32, 0
    s_waitcnt lgkmcnt(0)
    s_barrier
    s_load_dwordx2 s[62:63], s[40:41], 0
    """)
    srd(44, 40, WS_BYTES)
    a("""
    s_cmp_eq_u32 s3, 0
    s_cbranch_scc1 L_roleL
    """)
    if abl: a("s_endpgm")
    a("""
    v_lshlrev_b32 v4, 4, v0
    s_cmp_eq_u32 s3, 1
    s_cbranch_scc1 L_earlyQ
    s_cmp_eq_u32 s3, 10
    s_cbranch_scc1 L_earlyT
    s_cmp_ge_u32 s3, 10
    s_cbranch_scc1 L_roleT
    s_branch L_roleW
    L_earlyQ:
    """)
    srd(48, 16, 4096)
    for b in range(4):
        a(f"buffer_load_dwordx4 v[{8+4*b}:{11+4*b}], v4, s[48:51], 0 offen offset:{1024*b}")
    a("s_branch L_roleQ")
    a("L_earlyT:")
    for k, (sr, ptr) in enumerate(((48, 28), (52, 30), (56, 32))):
        srd(sr, ptr, 3584)
        a(f"s_mov_b32 m0, {MISC + WT + 4096*k}")
        for i in range(4):
            a(f"buffer_load_dwordx4 v4, s[{sr}:{sr+3}], 0 offen offset:{1024*i} lds")
    a("s_waitcnt vmcnt(0)")
    lds_set(FL_WT, 1)
    a("s_branch L_roleT")

    a("L_roleL:")
    if prioL: a(f"s_setprio {prioL}")
    stamp(0)
    a(f"""
    v_lshrrev_b32 v4, 2, v0
    v_and_b32 v5, 3, v0
    v_lshlrev_b32 v5, 4, v5
    s_mov_b32 s43, 0
    s_mov_b32 s14, 0
    s_cmp_ge_u32 s5, 16
    s_cbranch_scc1 L_L_setup2
    """)
    srd(64, 22, 0x400000)
    a(f"""
    v_lshrrev_b32 v6, 3, v0
    v_and_b32 v7, 7, v0
    v_lshlrev_b32 v7, 4, v7
    v_lshl_add_u32 v32, v6, 13, v7
    s_lshl_b32 s94, s4, 10
    s_and_b32 s10, s5, 7
    s_lshl_b32 s10, s10, 7
    s_add_u32 s94, s94, s10
    s_lshr_b32 s10, s5, 3
    s_lshl_b32 s10, s10, 21
    s_add_u32 s94, s94, s10
    s_mov_b32 s95, {WQ_L}
    v_add_u32 v33, {65536-1024}, v32
    v_add_u32 v34, {2*(65536-1024)}, v32
    v_add_u32 v35, {3*(65536-1024)}, v32
    L_L_wq:
    s_mov_b32 m0, s95
    s_add_u32 s43, s43, 4
    """)
    for n in range(4):
        a(f"buffer_load_dwordx4 v{32+n}, s[64:67], s94 offen offset:{n*1024}{POL} lds")
    a(f"""
    s_add_u32 s94, s94, {4*65536}
    s_add_u32 s95, s95, 4096
    s_cmp_lt_u32 s43, 32
    s_cbranch_scc1 L_L_wq
    L_L_setup2:
    """)
    srd(48, 18, 0x4000000)
    a(f"""
    v_lshrrev_b32 v8, 4, v0
    v_and_b32 v9, 15, v0
    """)
    for n in range(4):
        a(f"""
        v_add_u32 v6, {4*n}, v8
        v_xor_b32 v7, v6, v9
        v_lshlrev_b32 v7, 4, v7
        v_lshl_add_u32 v{20+n}, v8, 8, v7
        """)
    a(f"""
    s_lshl_b32 s9, s8, 21
    s_add_u32 s9, s9, {6144*256}
    s_lshl_b32 s10, s7, 16
    s_add_u32 s96, s9, s10
    s_cmp_lt_u32 s5, 16
    s_cbranch_scc1 L_L_setup3
    s_mov_b32 s94, s96
    s_mov_b32 s95, {K_L}
    L_L_k0:
    s_mov_b32 m0, s95
    s_add_u32 s43, s43, 4
    """)
    for n in range(4):
        a(f"buffer_load_dwordx4 v{20+n}, s[48:51], s94 offen offset:{n*1024}{POL} lds")
    a(f"""
    s_add_u32 s94, s94, 4096
    s_add_u32 s95, s95, 4096
    s_cmp_lt_u32 s43, {DK0}
    s_cbranch_scc1 L_L_k0
    L_L_setup3:
    """)
    srd(52, 20, 0x4000000); srd(56, 24, 0x400000)
    a(f"""
    v_lshl_add_u32 v24, v4, 8, v5
    v_lshl_add_u32 v28, v4, 10, v5
    """)
    for n in range(1, 4):
        a(f"v_add_u32 v{24+n}, {n*(4096-1024)}, v24")
        a(f"v_add_u32 v{28+n}, {n*(16384-1024)}, v28")
    a(f"""
    s_lshr_b32 s10, s7, 2
    s_lshl_b32 s10, s10, 18
    s_add_u32 s97, s9, s10
    s_and_b32 s10, s7, 3
    s_lshl_b32 s10, s10, 6
    s_add_u32 s97, s97, s10
    s_lshl_b32 s98, s4, 19
    s_sub_u32 s10, s5, 16
    s_lshl_b32 s10, s10, 6
    s_add_u32 s98, s98, s10
    s_cmp_ge_u32 s5, 16
    s_cbranch_scc1 L_L_wo
    """)
    def seg(ngroups, vbase, srdr, soff, ldsbase, gstep, D, first_free=0):
        L = a.label("Ls")
        if soff is not None: a(f"s_mov_b32 s94, {soff}")
        if ldsbase is not None: a(f"s_mov_b32 s95, {ldsbase}")
        a(f"s_mov_b32 s11, {ngroups}")
        a(f"""
        {L}:
        s_mov_b32 m0, s95
        s_sub_i32 s10, s43, {D-4}
        s_max_i32 s14, s10, s14
        v_mov_b32 v3, s14
        s_mov_b64 exec, 1
        s_waitcnt vmcnt({D-4})
        ds_write_b32 v2, v3 offset:{PROG}
        s_mov_b64 exec, -1
        """)
        for n in range(4):
            a(f"buffer_load_dwordx4 v{vbase+n}, s[{srdr}:{srdr+3}], s94 offen offset:{n*1024}{POL} lds")
        a(f"""
        s_add_u32 s94, s94, {gstep}
        s_add_u32 s95, s95, 4096
        s_add_u32 s43, s43, 4
        s_sub_u32 s11, s11, 1
        s_cmp_lg_u32 s11, 0
        s_cbranch_scc1 {L}
        """)
    def drain(D, total, stampat={}):
        for k in range(D - 4, -1, -4):
            a(f"s_waitcnt vmcnt({k})")
            lds_set(PROG, total - k)
            if total - k in stampat: stamp(stampat[total - k])
    if WQD >= 0:
        for k in range(24, WQD - 1, -8):
            a(f"s_waitcnt vmcnt({k})")
            lds_set(PROG, 32 - k)
        a(f"s_mov_b32 s14, {32 - WQD}")
    seg(16, 20, 48, "s96", K_L, 4096, DQ)
    seg(8, 24, 52, "s97", V_L, 16384, DQV)
    stamp(1)
    if not abl: lds_wait(FL_QPROJ, 1)
    seg(8, 24, 52, None, None, 16384, DQV)
    drain(DQV, 160, {160: 2})
    a("s_branch L_L_done")
    a("L_L_wo:")
    if NK0 > DK0: seg((NK0 - DK0) // 4, 20, 48, None, None, 4096, DK0)
    seg(16 - NK0 // 4, 20, 48, None, None, 4096, DW)
    seg(16, 24, 52, "s97", V_L, 16384, DWV)
    stamp(1)
    if not abl: lds_wait(CNT_QK, 8)
    seg(8, 28, 56, "s98", WO_L, 4 * 16384, DWO)
    stamp(2)
    drain(DWO, 160, {160: 3})
    a("L_L_done:")
    dump_stamps()
    a("s_endpgm")

    a("L_roleQ:")
    a("s_setprio 3")
    stamp(0)
    srd(56, 36, 4096)
    a("s_lshl_b32 s10, s6, 10")
    a("buffer_load_dwordx4 v[120:123], v4, s[56:59], s10 offen")
    if prefetch:
        a(f"""
        s_getpc_b64 s[10:11]
        L_pc_here:
        s_sub_u32 s10, s10, L_pc_here - {NAME}_kernel
        s_subb_u32 s11, s11, 0
        s_lshl_b32 s12, s5, 10
        v_add_u32 v7, s12, v4
        v_min_u32 v7, L_code_end - {NAME}_kernel - 16, v7
        global_load_dwordx4 v[124:127], v7, s[10:11]
        """)
    else:
        a("buffer_load_dwordx4 v[124:127], v4, s[56:59], s10 offen")
    a(f"""
    s_cmp_ge_u32 s5, 16
    s_cbranch_scc1 L_Q_gather
    s_waitcnt vmcnt(2)
    """)
    X = [24 + 8*b for b in range(4)]
    for b in range(4):
        for i in range(4): unpack(X[b] + 2*i, X[b] + 2*i + 1, 8 + 4*b + i)
    D = layernorm4(X, 56)
    for b in range(4):
        for i in range(4): a(f"v_cvt_pk_bf16_f32 v{8+4*b+i}, v{D[b]+2*i}, v{D[b]+2*i+1}")
    a("v_add_u32 v5, v4, v2")
    for b in range(4):
        a(f"ds_write_b128 v5, v[{8+4*b}:{11+4*b}] offset:{XN + 1024*b}")
    get_tag()
    stamp(1)
    a(f"""
    v_lshrrev_b32 v5, 2, v0
    v_and_b32 v6, 3, v0
    v_lshlrev_b32 v7, 3, v6
    v_lshl_add_u32 v5, v5, 7, v7
    v_add_u32 v5, {WQ_L}, v5
    v_lshrrev_b32 v7, 4, v0
    v_lshlrev_b32 v7, 3, v7
    v_lshl_add_u32 v6, v6, 10, v7
    s_lshr_b32 s10, s5, 3
    s_lshl_b32 s10, s10, 9
    v_add3_u32 v6, v6, v2, s10
    """)
    for i in range(8):
        a(f"ds_read2_b64 v[{8+4*i}:{11+4*i}], v6 offset0:{8*i} offset1:{8*i+4}")
    a(f"""
    v_and_b32 v6, 3, v0
    v_lshlrev_b32 v6, 16, v6
    v_lshrrev_b32 v7, 4, v0
    v_lshl_add_u32 v6, v7, 4, v6
    v_bfe_u32 v7, v0, 2, 2
    v_lshl_add_u32 v6, v7, 6, v6
    v_cmp_eq_u32 s[64:65], 1, v7
    v_cmp_eq_u32 s[66:67], 2, v7
    v_cmp_eq_u32 s[68:69], 3, v7
    s_lshl_b32 s10, s4, 13
    s_and_b32 s11, s5, 7
    s_lshl_b32 s11, s11, 8
    s_add_u32 s10, s10, s11
    s_lshr_b32 s11, s5, 3
    s_lshl_b32 s11, s11, 12
    s_add_u32 s10, s10, s11
    s_add_u32 s10, s10, {QG}
    s_add_u32 s11, s10, {MIRROR}
    v_mov_b32 v82, s60
    v_mov_b32 v83, s61
    v_mov_b32 v86, s60
    v_mov_b32 v87, s61
    """)
    for h in range(4):
        lds_wait(PROG, 8 * (h + 1), slp=(0 if h == 3 else 1))
        if h == 3: stamp(2)
        for ii in range(2):
            i = 2*h + ii
            for ct in range(4):
                r = 88 + 16*ii + 4*ct
                a(f"ds_read_b64_tr_b16 v[{r}:{r+1}], v5 offset:{4096*i + 32*ct}")
                a(f"ds_read_b64_tr_b16 v[{r+2}:{r+3}], v5 offset:{4096*i + 32*ct + 2048}")
            if ii == 0: a("s_waitcnt lgkmcnt(4)")
        for ii in range(2):
            i = 2*h + ii
            for ct in range(4):
                if ii == 0 and ct == 2: a("s_waitcnt lgkmcnt(8)")
                if ii == 1 and ct == 0: a("s_waitcnt lgkmcnt(4)")
                if ii == 1 and ct == 2: a("s_waitcnt lgkmcnt(0)")
                r = 88 + 16*ii + 4*ct
                cc = "0" if i == 0 else f"v[{48+4*ct}:{51+4*ct}]"
                a(f"v_mfma_f32_16x16x32_bf16 v[{48+4*ct}:{51+4*ct}], v[{r}:{r+3}], v[{8+4*i}:{11+4*i}], {cc}")
    for k, m in enumerate(("s[64:65]", "s[66:67]", "s[68:69]")):
        for j in range(4):
            dst = (80, 81, 84, 85)[j] if k == 2 else 48 + j
            a(f"v_cndmask_b32 v{dst}, v{48+j}, v{52+4*k+j}, {m}")
    a(f"""
    buffer_store_dwordx4 v[80:83], v6, s[44:47], s10 offen
    buffer_store_dwordx4 v[84:87], v6, s[44:47], s10 offen offset:2048
    """)
    stamp(3)
    a(f"""
    buffer_store_dwordx4 v[80:83], v6, s[44:47], s11 offen sc1
    buffer_store_dwordx4 v[84:87], v6, s[44:47], s11 offen offset:2048 sc1
    """)
    lds_set(FL_QPROJ, 1)
    a(f"""
    s_branch L_Q_gather2
    L_Q_gather:
    """)
    get_tag()
    a(f"""
    L_Q_gather2:
    s_lshl_b32 s10, s6, 16
    s_lshl_b32 s11, s4, 13
    s_add_u32 s10, s10, s11
    s_add_u32 s66, s10, {QG}
    v_lshl_add_u32 v5, v0, 3, v2
    v_lshl_add_u32 v6, v0, 2, v2
    v_add_u32 v7, 4096, v4
    """)
    if QDELAY:
        a(f"s_add_u32 s11, s42, {QDELAY}")
        lds_wait(PROG, "s11", slp=2)
    poll([(8 + 4*i, 4 if i < 4 else 7, "s66", 1024*(i & 3)) for i in range(8)], sleep=SQ, dual=R0)
    for i in range(4):
        a(f"v_pk_add_f32 v[{8+4*i}:{9+4*i}], v[{8+4*i}:{9+4*i}], v[{24+4*i}:{25+4*i}]")
    a(f"""
    v_cvt_pk_bf16_f32 v40, v8, v9
    v_cvt_pk_bf16_f32 v41, v16, v17
    v_cvt_pk_bf16_f32 v42, v12, v13
    v_cvt_pk_bf16_f32 v43, v20, v21
    ds_write_b64 v5, v[40:41] offset:{QI}
    ds_write_b64 v5, v[42:43] offset:{QI + 512}
    """)
    lds_set(FL_QREADY, 1)
    stamp(4)
    a(f"""
    s_lshl_b32 s10, s8, 12
    s_add_u32 s66, s10, {STG}
    s_mov_b32 s10, {f32bits(LOG2E):#x}
    """)
    if "SL" in X: lds_wait(CNT_QK, 8, slp=2)
    poll([(8 + 4*i, 4, "s66", 1024*i) for i in range(4)], sleep=SS, dual=R0)
    a(f"""
    v_max_f32 v24, v8, v12
    v_max3_f32 v24, v24, v16, v20
    v_max_f32_dpp v24, v24, v24 row_ror:4 row_mask:0xf bank_mask:0xf
    v_max_f32_dpp v24, v24, v24 row_ror:8 row_mask:0xf bank_mask:0xf
    """)
    xrow([24], "max", [25])
    for i in range(4): a(f"v_sub_f32 v{26+i}, v{8+4*i}, v24")
    for i in range(4): a(f"v_mul_f32 v{26+i}, s10, v{26+i}")
    for i in range(4): a(f"v_exp_f32 v{26+i}, v{26+i}")
    a(f"""
    v_mul_f32 v30, v26, v9
    v_fmac_f32 v30, v27, v13
    v_fmac_f32 v30, v28, v17
    v_fmac_f32 v30, v29, v21
    v_add_f32_dpp v30, v30, v30 row_ror:4 row_mask:0xf bank_mask:0xf
    v_add_f32_dpp v30, v30, v30 row_ror:8 row_mask:0xf bank_mask:0xf
    """)
    xrow([30], "add", [25])
    a(f"""
    v_rcp_f32 v25, v30
    v_fma_f32 v31, -v30, v25, 1.0
    v_fmac_f32 v25, v31, v25
    s_mov_b64 exec, 15
    ds_write_b64 v5, v[24:25] offset:{ST}
    s_mov_b64 exec, -1
    """)
    lds_set(FL_STATS, 1)
    stamp(5)
    a(f"""
    s_cmp_lg_u32 s4, 0
    s_cbranch_scc1 L_Q_done
    s_cmp_ge_u32 s5, 4
    s_cbranch_scc1 L_Q_done
    s_setprio 0
    """)
    lds_wait(CNT_WT, 4)
    for bt in range(2):
        a(f"s_mov_b32 s66, {TG + bt * 8192}")
        a(f"s_mov_b32 s67, {TG + bt * 8192 + 4096}")
        poll([(8 + 4*i, 4, "s66" if i < 4 else "s67", 1024*(i & 3)) for i in range(8)], sleep=4)
        for i in range(8):
            a(f"ds_write_b64 v5, v[{8+4*i}:{9+4*i}] offset:{TAB + (bt * 8 + i) * 512}")
    stamp(6)
    FW1 = 64; FB1 = 92; FW2 = 106
    srd(64, 28, 3584); srd(48, 30, 3584); srd(52, 32, 3584)
    a("v_lshlrev_b32 v6, 3, v0")
    for i in range(7):
        a(f"buffer_load_dwordx2 v[{8+2*i}:{9+2*i}], v6, s[64:67], 0 offen offset:{512*i}")
        a(f"buffer_load_dwordx2 v[{FB1+2*i}:{FB1+2*i+1}], v6, s[48:51], 0 offen offset:{512*i}")
        a(f"buffer_load_dwordx2 v[{FW2+2*i}:{FW2+2*i+1}], v6, s[52:55], 0 offen offset:{512*i}")
    srd(64, 34, 2)
    a("v_mov_b32 v7, 0")
    a("buffer_load_ushort v120, v7, s[64:67], 0 offen")
    a("s_waitcnt vmcnt(0)")
    for i in range(14):
        unpack(FW1 + 2*i, FW1 + 2*i + 1, 8 + i)
    a(f"""
    v_lshlrev_b32 v120, 16, v120
    v_lshl_add_u32 v5, v0, 5, v2
    s_mov_b32 s10, 0x08000800
    s_mov_b32 s11, {(e0 << 7) | (e0 << 23):#x}
    s_lshl_b32 s65, s5, 10
    s_setprio 3
    """)
    lds_wait(CNT_ROW, 8, slp=0)
    stamp(7)
    a(f"""
    ds_read_b128 v[32:35], v5 offset:{ROW}
    ds_read_b128 v[36:39], v5 offset:{ROW + 16}
    s_waitcnt lgkmcnt(0)
    v_readfirstlane_b32 s68, v32
    s_mov_b32 s69, s68
    """)
    layernorm1(32, 46, 16, "s[68:69]")
    for i in range(4): unpack(24 + 2*i, 25 + 2*i, 16 + i)
    layernorm1(24, 46, 16, None)
    for i in range(4):
        a(f"v_and_b32 v{40+i}, 0x7fff7fff, v{16+i}")
    for i in range(4):
        a(f"v_pk_sub_u16 v{40+i}, v{40+i}, s11")
    for i in range(4):
        a(f"v_lshrrev_b32 v{44+i}, 4, v{16+i}")
    a("v_or3_b32 v3, v40, v41, v42")
    for i in range(4):
        a(f"v_and_b32 v{44+i}, s10, v{44+i}")
    a("v_or_b32 v3, v3, v43")
    a("v_and_b32 v3, 0xf800f800, v3")
    a("s_mov_b32 s12, 0x07ff07ff")
    for i in range(4):
        a(f"v_and_or_b32 v{40+i}, v{40+i}, s12, v{44+i}")
    a("v_cmp_ne_u32 s[14:15], 0, v3")
    for i in range(4):
        a(f"v_and_b32 v{44+i}, 0xffff, v{40+i}")
        a(f"v_lshrrev_b32 v{40+i}, 16, v{40+i}")
        a(f"v_lshl_add_u32 v{44+i}, v{44+i}, 1, v2")
        a(f"v_lshl_add_u32 v{40+i}, v{40+i}, 1, v2")
        a(f"ds_read_u16 v{48+2*i}, v{44+i} offset:{TAB}")
        a(f"ds_read_u16 v{49+2*i}, v{40+i} offset:{TAB}")
    a(f"""
    s_cmp_eq_u64 s[14:15], 0
    s_waitcnt lgkmcnt(0)
    s_cbranch_scc0 L_Q_fb
    L_Q_nofb:
    """)
    for i in range(8): a(f"v_lshlrev_b32 v{48+i}, 16, v{48+i}")
    for i in range(0, 8, 2): a(f"v_pk_add_f32 v[{48+i}:{49+i}], v[{48+i}:{49+i}], v[{32+i}:{33+i}]")
    for i in range(4): a(f"v_cvt_pk_bf16_f32 v{16+i}, v{48+2*i}, v{49+2*i}")
    a(f"""
    buffer_store_dwordx4 v[16:19], v4, s[56:59], s65 offen
    s_cmp_lg_u32 s5, 0
    s_cbranch_scc1 L_Q_done
    v_mov_b32 v8, s60
    v_mov_b32 v9, s61
    v_mov_b32 v10, 0
    s_mov_b64 exec, 1
    buffer_store_dwordx2 v[8:9], v10, s[44:47], 0 offen
    s_mov_b64 exec, -1
    L_Q_done:
    """)
    stamp(8)
    if dbg2:
        srd(48, 38, 256)
        a("s_cmp_lg_u32 s2, 0")
        a("s_cbranch_scc1 L_Q_nodbg")
        for i in range(9):
            a(f"s_sub_u32 s10, s{70+2*i}, s70")
            a(f"v_mov_b32 v{100+i}, s10")
        a("""
        v_mov_b32 v99, 0
        s_mov_b64 exec, 1
        buffer_store_dwordx4 v[100:103], v99, s[48:51], 0 offen
        buffer_store_dwordx4 v[104:107], v99, s[48:51], 0 offen offset:16
        buffer_store_dword v108, v99, s[48:51], 0 offen offset:32
        s_mov_b64 exec, -1
        L_Q_nodbg:
        """)
    dump_stamps()
    a("s_endpgm")
    a("L_Q_fb:")
    for i in range(4):
        a(f"v_and_b32 v{24+2*i}, 0xffff, v{16+i}")
        a(f"v_lshrrev_b32 v{25+2*i}, 16, v{16+i}")
    a(f"""
    s_movk_i32 s10, 0x800
    v_mov_b32 v42, {f32bits(GC0):#x}
    v_mov_b32 v43, {f32bits(GC0):#x}
    v_mov_b32 v44, 1.0
    v_mov_b32 v45, 1.0
    s_mov_b32 s92, {f32bits(GC1):#x}
    s_mov_b32 s93, {f32bits(GC1):#x}
    """)
    for i in range(8):
        Lf = a.label("Lfb"); Ld = a.label("Lfbd")
        a(f"""
        v_and_b32 v46, 0x7fff, v{24+i}
        v_subrev_u32 v46, {e0 << 7}, v46
        v_cmp_le_u32 s[94:95], s10, v46
        {Lf}:
        s_cmp_eq_u64 s[94:95], 0
        s_cbranch_scc1 {Ld}
        s_ff1_i32_b64 s96, s[94:95]
        s_bitset0_b64 s[94:95], s96
        s_mov_b32 m0, s96
        s_nop 1
        v_readlane_b32 s68, v{24+i}, m0
        s_call_b64 s[98:99], L_eval
        s_nop 3
        v_writelane_b32 v{48+i}, s68, m0
        s_branch {Lf}
        {Ld}:
        """)
    a("s_nop 1")
    a("s_branch L_Q_nofb")
    a(f"""
    L_eval:
    s_nop 3
    s_lshl_b32 s68, s68, 16
    s_mov_b32 s69, s68
    v_mov_b32 v40, 0
    """)
    for p in range(0, 14, 2):
        unpack(14, 15, FB1 + p); unpack(62, 63, FB1 + p + 1)
        gelu_pairs(a, [(FW1 + 2*p, 14, FW2 + p, 8), (FW1 + 2*p + 2, 62, FW2 + p + 1, 56)], 40, "s[68:69]", "s[92:93]", 42, 44)
    allreduce([40], "add", [41])
    rbf(40, 40)
    a(f"""
    v_add_f32 v40, v40, v120
    v_cvt_pk_bf16_f32 v40, v40, v40
    v_and_b32 v40, 0xffff, v40
    v_readfirstlane_b32 s68, v40
    s_setpc_b64 s[98:99]
    """)

    a("L_roleT:")
    stamp(0)
    if "T0" in X:
        a(f"""
        v_mov_b32 v3, 1
        s_mov_b64 exec, 1
        ds_add_u32 v2, v3 offset:{CNT_WT}
        s_endpgm
        """)
    a("s_sub_u32 s9, s3, 10")
    srd(64, 34, 2)
    W1 = 8; B1 = 36; W2 = 64; TP = 80
    a("v_mov_b32 v5, 0")
    a("buffer_load_ushort v6, v5, s[64:67], 0 offen")
    lds_wait(FL_WT, 1)
    stamp(10)
    a("v_lshl_add_u32 v4, v0, 3, v2")
    for i in range(7):
        a(f"ds_read_b64 v[{TP+2*i}:{TP+2*i+1}], v4 offset:{WT + 512*i}")
        a(f"ds_read_b64 v[{TP+14+2*i}:{TP+15+2*i}], v4 offset:{WT + 4096 + 512*i}")
    a("s_waitcnt lgkmcnt(0)")
    for i in range(7):
        a(f"ds_read_b64 v[{W2+2*i}:{W2+2*i+1}], v4 offset:{WT + 8192 + 512*i}")
    for i in range(14):
        unpack(W1 + 2*i, W1 + 2*i + 1, TP + i)
        unpack(B1 + 2*i, B1 + 2*i + 1, TP + 14 + i)
    a(f"""
    v_mov_b32 v80, {f32bits(GC0):#x}
    v_mov_b32 v81, {f32bits(GC0):#x}
    v_mov_b32 v82, 1.0
    v_mov_b32 v83, 1.0
    s_mov_b32 s92, {f32bits(GC1):#x}
    s_mov_b32 s93, {f32bits(GC1):#x}
    s_lshl_b32 s10, s2, 4
    s_lshl_b32 s11, s9, 2
    s_add_u32 s10, s10, s11
    s_lshr_b32 s11, s10, 11
    s_and_b32 s10, s10, 0x7ff
    s_add_u32 s10, s10, {e0 << 7}
    s_lshl_b32 s10, s10, 16
    s_lshl_b32 s11, s11, 31
    s_or_b32 s68, s10, s11
    s_mov_b32 s69, s68
    s_mov_b32 s11, 0
    """)
    get_tag()
    a(f"""
    v_mov_b32 v3, 1
    s_mov_b64 exec, 1
    ds_add_u32 v2, v3 offset:{CNT_WT}
    s_mov_b64 exec, -1
    L_T_tab:
    v_mov_b32 v107, v106
    v_mov_b32 v106, v105
    v_mov_b32 v105, v104
    v_mov_b32 v104, 0
    """)
    for p in range(0, 14, 2):
        gelu_pairs(a, [(W1 + 2*p, B1 + 2*p, W2 + p, 88), (W1 + 2*p + 2, B1 + 2*p + 2, W2 + p + 1, 96)], 104, "s[68:69]", "s[92:93]", 80, 82)
    a(f"""
    s_add_u32 s68, s68, 0x10000
    s_mov_b32 s69, s68
    s_add_u32 s11, s11, 1
    s_cmp_lt_u32 s11, 4
    s_cbranch_scc1 L_T_tab
    s_nop 2
    """)
    allreduce([104, 105, 106, 107], "add", [84, 85, 86, 87])
    for r in (104, 105, 106, 107): rbf(r, r)
    a(f"""
    s_waitcnt vmcnt(0)
    v_lshlrev_b32 v6, 16, v6
    v_add_f32 v104, v104, v6
    v_add_f32 v105, v105, v6
    v_add_f32 v106, v106, v6
    v_add_f32 v107, v107, v6
    v_cvt_pk_bf16_f32 v88, v107, v106
    v_cvt_pk_bf16_f32 v89, v105, v104
    v_mov_b32 v90, s60
    v_mov_b32 v91, s61
    s_lshl_b32 s10, s2, 2
    s_add_u32 s10, s10, s9
    s_lshl_b32 s10, s10, 4
    s_add_u32 s10, s10, {TG}
    s_mov_b64 exec, 1
    buffer_store_dwordx4 v[88:91], v5, s[44:47], s10 offen sc1
    s_mov_b64 exec, -1
    """)
    stamp(1)
    dump_stamps()
    a("s_endpgm")

    a("L_roleW:")
    a("s_setprio 2")
    stamp(0)
    a("s_sub_u32 s9, s3, 2")
    srd(64, 16, 4096)
    a(f"""
    v_and_b32 v7, 31, v0
    v_lshlrev_b32 v7, 2, v7
    s_lshl_b32 s10, s6, 10
    s_lshl_b32 s11, s9, 7
    s_add_u32 s10, s10, s11
    buffer_load_dword v96, v7, s[64:67], s10 offen
    """)
    get_tag()
    stamp(1)
    a(f"""
    v_and_b32 v4, 15, v0
    v_lshrrev_b32 v5, 4, v0
    v_xor_b32 v6, v4, v5
    v_lshlrev_b32 v6, 4, v6
    v_lshl_add_u32 v6, v4, 8, v6
    s_lshl_b32 s10, s9, 13
    v_add_u32 v8, s10, v6
    v_xor_b32 v9, 64, v8
    v_xor_b32 v10, 128, v8
    v_xor_b32 v11, 192, v8
    v_and_b32 v7, 3, v0
    v_lshlrev_b32 v12, 8, v7
    v_lshl_add_u32 v12, v5, 4, v12
    v_add_u32 v12, v12, v2
    v_mov_b32 v74, s60
    v_mov_b32 v75, s61
    s_lshl_b32 s64, s8, 15
    s_lshl_b32 s12, s7, 12
    s_add_u32 s64, s64, s12
    s_lshr_b32 s12, s9, 2
    s_lshl_b32 s12, s12, 11
    s_add_u32 s64, s64, s12
    s_and_b32 s12, s9, 3
    s_lshl_b32 s12, s12, 6
    s_add_u32 s64, s64, s12
    s_add_u32 s64, s64, {SG}
    s_lshl_b32 s65, s8, 12
    s_lshl_b32 s12, s7, 9
    s_add_u32 s65, s65, s12
    s_lshl_b32 s12, s9, 6
    s_add_u32 s65, s65, s12
    s_add_u32 s65, s65, {STG}
    v_lshlrev_b32 v13, 4, v7
    v_add_u32 v15, s65, v13
    v_lshl_add_u32 v13, v5, 8, v13
    v_add_u32 v13, s64, v13
    v_bfe_u32 v14, v0, 2, 2
    v_cmp_eq_u32 s[64:65], 1, v14
    v_cmp_eq_u32 s[68:69], 2, v14
    v_add_u32 v14, 1024, v13
    v_cndmask_b32 v13, v13, v14, s[64:65]
    v_cndmask_b32 v13, v13, v15, s[68:69]
    v_lshlrev_b32 v14, 4, v0
    s_lshl_b32 s11, s9, 3
    s_add_u32 s11, s11, s42
    s_add_u32 s11, s11, 8
    """)
    lds_wait(PROG, "s11")
    for T in range(2):
        for s in range(4):
            a(f"ds_read_b128 v[{32+16*T+4*s}:{35+16*T+4*s}], v{8+s} offset:{4096*T}")
    lds_wait(FL_QREADY, 1)
    stamp(2)
    for s in range(4):
        a(f"ds_read_b128 v[{16+4*s}:{19+4*s}], v12 offset:{QI + 64*s}")
    a(f"""
    v_mov_b32 v3, 1
    s_mov_b64 exec, 1
    ds_add_u32 v2, v3 offset:{CNT_QK}
    s_mov_b64 exec, -1
    s_mov_b32 s10, {f32bits(SCALE):#x}
    s_mov_b32 s11, {f32bits(LOG2E):#x}
    """)
    for s in range(4):
        a(f"s_waitcnt lgkmcnt({4 - s})")
        for T in range(2):
            c = "0" if s == 0 else f"v[{64+4*T}:{67+4*T}]"
            a(f"v_mfma_f32_16x16x32_bf16 v[{64+4*T}:{67+4*T}], v[{32+16*T+4*s}:{35+16*T+4*s}], v[{16+4*s}:{19+4*s}], {c}")
    for T in range(2):
        a(f"v_cvt_pk_bf16_f32 v{80+2*T}, v{64+4*T}, v{65+4*T}")
        a(f"v_cvt_pk_bf16_f32 v{81+2*T}, v{66+4*T}, v{67+4*T}")
    for i in range(4): unpack(64 + 2*i, 65 + 2*i, 80 + i)
    for i in range(8): a(f"v_mul_f32 v{64+i}, s10, v{64+i}")
    for T in range(2):
        a(f"v_cvt_pk_bf16_f32 v{72+4*T}, v{64+4*T}, v{65+4*T}")
        a(f"v_cvt_pk_bf16_f32 v{73+4*T}, v{66+4*T}, v{67+4*T}")
    unpack(64, 65, 72); unpack(66, 67, 73); unpack(68, 69, 76); unpack(70, 71, 77)
    a("v_cndmask_b32 v72, v72, v76, s[64:65]")
    a("v_cndmask_b32 v73, v73, v77, s[64:65]")
    a(f"""
    v_max3_f32 v84, v64, v65, v66
    v_max3_f32 v85, v67, v68, v69
    v_max3_f32 v84, v84, v70, v71
    v_max_f32 v84, v84, v85
    """)
    xrow([84], "max", [88])
    for i in range(8): a(f"v_sub_f32 v{64+i}, v{64+i}, v84")
    for i in range(8): a(f"v_mul_f32 v{64+i}, s11, v{64+i}")
    for i in range(8): a(f"v_exp_f32 v{64+i}, v{64+i}")
    a(f"""
    v_add_f32 v85, v64, v65
    v_add_f32 v88, v66, v67
    v_add_f32 v89, v68, v69
    v_add_f32 v90, v70, v71
    v_add_f32 v85, v85, v88
    v_add_f32 v89, v89, v90
    v_add_f32 v85, v85, v89
    """)
    xrow([85], "add", [88])
    a(f"""
    v_cndmask_b32 v72, v72, v84, s[68:69]
    v_cndmask_b32 v73, v73, v85, s[68:69]
    s_mov_b32 exec_lo, 0x00ff0fff
    s_mov_b32 exec_hi, 0x00ff00ff
    s_mov_b32 s12, {MIRROR}
    buffer_store_dwordx4 v[72:75], v13, s[44:47], 0 offen
    """)
    stamp(3)
    a(f"""
    buffer_store_dwordx4 v[72:75], v13, s[44:47], s12 offen sc1
    s_mov_b64 exec, -1
    s_lshl_b32 s10, s8, 15
    s_lshr_b32 s12, s7, 2
    s_lshl_b32 s12, s12, 14
    s_add_u32 s10, s10, s12
    s_lshl_b32 s12, s9, 11
    s_add_u32 s10, s10, s12
    s_add_u32 s66, s10, {SG}
    v_lshrrev_b32 v16, 2, v0
    v_lshlrev_b32 v17, 3, v7
    v_lshl_add_u32 v16, v16, 6, v17
    s_lshl_b32 s10, s9, 13
    s_add_u32 s10, s10, {V_L}
    v_add_u32 v17, s10, v16
    v_lshl_add_u32 v18, v7, 3, v2
    v_lshlrev_b32 v19, 7, v7
    v_lshl_add_u32 v19, v5, 4, v19
    s_lshl_b32 s10, s9, 9
    v_add3_u32 v19, v19, v2, s10
    s_lshl_b32 s64, s9, 3
    s_add_u32 s64, s64, s42
    s_add_u32 s64, s64, 72
    """)
    poll([(20, 14, "s66", 0), (24, 14, "s66", 1024)], dual=R0, trig=FL_STATS, nspin=NSP)
    stamp(4)
    unpack(28, 29, 20); unpack(30, 31, 21); unpack(32, 33, 24); unpack(34, 35, 25)
    a(f"""
    v_max3_f32 v38, v28, v29, v30
    v_max3_f32 v39, v31, v32, v33
    v_max3_f32 v38, v38, v34, v35
    v_max_f32 v38, v38, v39
    """)
    for i in range(8): a(f"v_sub_f32 v{28+i}, v{28+i}, v38")
    for i in range(8): a(f"v_mul_f32 v{28+i}, s11, v{28+i}")
    for i in range(8): a(f"v_exp_f32 v{28+i}, v{28+i}")
    lds_wait(CNT_WT, 4)
    lds_wait(PROG, "s64")
    for c in range(4):
        for dt in range(2):
            r = 56 + 8*c + 4*dt
            a(f"ds_read_b64_tr_b16 v[{r}:{r+1}], v17 offset:{2048*c + 32*dt}")
            a(f"ds_read_b64_tr_b16 v[{r+2}:{r+3}], v17 offset:{2048*c + 32*dt + 1024}")
        if c == 2: a("s_waitcnt lgkmcnt(8)")
    lds_wait(FL_STATS, 1, slp=0)
    stamp(5)
    a(f"""
    ds_read_b64 v[36:37], v18 offset:{ST}
    s_waitcnt lgkmcnt(0)
    v_sub_f32 v38, v38, v36
    v_mul_f32 v38, s11, v38
    v_exp_f32 v38, v38
    v_mul_f32 v38, v38, v37
    v_mov_b32 v39, v38
    """)
    for i in range(0, 8, 2): a(f"v_pk_mul_f32 v[{28+i}:{29+i}], v[{28+i}:{29+i}], v[38:39]")
    for i in range(4): a(f"v_cvt_pk_bf16_f32 v{40+i}, v{28+2*i}, v{29+2*i}")
    for c in range(4):
        if c:
            for i in range(4):
                a(f"v_mov_b32_dpp v{40+4*c+i}, v{40+i} row_shl:{4*c} row_mask:0xf bank_mask:0xf")
        for dt in range(2):
            r = 56 + 8*c + 4*dt
            cc = "0" if c == 0 else f"v[{88+4*dt}:{91+4*dt}]"
            a(f"v_mfma_f32_16x16x32_bf16 v[{88+4*dt}:{91+4*dt}], v[{r}:{r+3}], v[{40+4*c}:{43+4*c}], {cc}")
    a(f"""
    v_lshl_add_u32 v20, v0, 3, v2
    v_and_b32 v21, 1, v4
    v_lshlrev_b32 v21, 10, v21
    v_lshl_add_u32 v21, v5, 13, v21
    v_bfe_u32 v22, v4, 1, 2
    v_lshl_add_u32 v21, v22, 8, v21
    v_lshrrev_b32 v22, 3, v4
    v_lshl_add_u32 v21, v22, 6, v21
    s_lshl_b32 s10, s4, 15
    s_and_b32 s11, s7, 3
    s_lshl_b32 s11, s11, 11
    s_add_u32 s10, s10, s11
    s_lshr_b32 s11, s7, 2
    s_lshl_b32 s11, s11, 7
    s_add_u32 s10, s10, s11
    s_lshl_b32 s11, s6, 4
    s_add_u32 s10, s10, s11
    s_add_u32 s10, s10, {OG}
    s_add_u32 s11, s10, {MIRROR}
    s_mov_b32 exec_lo, {MASK4}
    s_mov_b32 exec_hi, {MASK4}
    ds_write_b128 v19, v[88:91] offset:{OS}
    ds_write_b128 v19, v[92:95] offset:{OS + 64}
    s_mov_b64 exec, -1
    """)
    lds_count(CNT_O)
    a(f"""
    s_cmp_lg_u32 s12, 7
    s_cbranch_scc1 L_W_onot
    """)
    def slot_sum(base):
        for w in range(8):
            a(f"ds_read_b64 v[{24+2*w}:{25+2*w}], v20 offset:{base + 512*w}")
        a("s_waitcnt lgkmcnt(0)")
        a("""
        v_pk_add_f32 v[24:25], v[24:25], v[26:27]
        v_pk_add_f32 v[28:29], v[28:29], v[30:31]
        v_pk_add_f32 v[32:33], v[32:33], v[34:35]
        v_pk_add_f32 v[36:37], v[36:37], v[38:39]
        v_mov_b32 v26, s60
        v_pk_add_f32 v[24:25], v[24:25], v[28:29]
        v_pk_add_f32 v[32:33], v[32:33], v[36:37]
        v_mov_b32 v27, s61
        v_pk_add_f32 v[24:25], v[24:25], v[32:33]
        """)
    slot_sum(OS)
    a(f"""
    buffer_store_dwordx4 v[24:27], v21, s[44:47], s10 offen
    buffer_store_dwordx4 v[24:27], v21, s[44:47], s11 offen sc1
    """)
    lds_set(FL_OPUB, 1)
    a("L_W_onot:")
    stamp(6)
    a("s_cmp_lt_u32 s5, 16")
    a("s_cbranch_scc1 L_W_qwg")
    a(f"""
    s_lshl_b32 s10, s4, 15
    s_lshl_b32 s11, s9, 12
    s_add_u32 s10, s10, s11
    s_add_u32 s66, s10, {OG}
    s_lshl_b32 s10, s9, 12
    v_add_u32 v17, s10, v16
    v_lshlrev_b32 v22, 4, v4
    v_lshl_add_u32 v22, v5, 15, v22
    s_lshl_b32 s10, s4, 12
    s_sub_u32 s11, s5, 16
    s_lshl_b32 s11, s11, 8
    s_add_u32 s10, s10, s11
    s_add_u32 s65, s10, {AG}
    """)
    lds_wait(PROG, 160)
    for e in range(2):
        for ct in range(2):
            r = 56 + 8*e + 4*ct
            a(f"ds_read_b64_tr_b16 v[{r}:{r+1}], v17 offset:{WO_L + 2048*e + 32*ct}")
            a(f"ds_read_b64_tr_b16 v[{r+2}:{r+3}], v17 offset:{WO_L + 2048*e + 32*ct + 1024}")
    lds_wait(FL_OPUB, 1)
    poll([(24, 14, "s66", 0), (28, 14, "s66", 1024), (32, 14, "s66", 2048), (36, 14, "s66", 3072)], sleep=SA, dual=R0)
    stamp(7)
    for r in (24, 25, 28, 29, 32, 33, 36, 37):
        a(f"v_add_f32_dpp v{r}, v{r}, v{r} row_ror:8 row_mask:0xf bank_mask:0xf")
    a(f"""
    v_cvt_pk_bf16_f32 v40, v24, v25
    v_cvt_pk_bf16_f32 v41, v28, v29
    v_cvt_pk_bf16_f32 v44, v32, v33
    v_cvt_pk_bf16_f32 v45, v36, v37
    v_mov_b32_dpp v42, v40 row_shl:4 row_mask:0xf bank_mask:0xf
    v_mov_b32_dpp v43, v41 row_shl:4 row_mask:0xf bank_mask:0xf
    v_mov_b32_dpp v46, v44 row_shl:4 row_mask:0xf bank_mask:0xf
    v_mov_b32_dpp v47, v45 row_shl:4 row_mask:0xf bank_mask:0xf
    """)
    for e in range(2):
        for ct in range(2):
            r = 56 + 8*e + 4*ct
            cc = "0" if e == 0 else f"v[{88+4*ct}:{91+4*ct}]"
            a(f"v_mfma_f32_16x16x32_bf16 v[{88+4*ct}:{91+4*ct}], v[{r}:{r+3}], v[{40+4*e}:{43+4*e}], {cc}")
    a(f"""
    s_mov_b32 exec_lo, {MASK4}
    s_mov_b32 exec_hi, {MASK4}
    ds_write_b128 v19, v[88:91] offset:{AS}
    ds_write_b128 v19, v[92:95] offset:{AS + 64}
    s_mov_b64 exec, -1
    """)
    lds_count(CNT_A)
    a(f"""
    s_cmp_lg_u32 s12, 7
    s_cbranch_scc1 L_W_done
    """)
    slot_sum(AS)
    a(f"""
    buffer_store_dwordx4 v[24:27], v22, s[44:47], s65 offen sc1
    s_branch L_W_done
    L_W_qwg:
    s_cmp_lg_u32 s4, 0
    s_cbranch_scc1 L_W_done
    s_cmp_ge_u32 s5, 4
    s_cbranch_scc1 L_W_done
    v_and_b32 v21, 31, v0
    v_lshlrev_b32 v22, 4, v21
    v_lshrrev_b32 v23, 5, v0
    v_lshl_add_u32 v22, v23, 14, v22
    s_lshl_b32 s10, s5, 15
    s_lshl_b32 s11, s9, 9
    s_add_u32 s10, s10, s11
    s_add_u32 s66, s10, {AG}
    s_add_u32 s67, s66, 4096
    s_add_u32 s68, s66, 8192
    s_add_u32 s69, s66, 12288
    s_lshl_b32 s10, s9, 8
    v_lshl_add_u32 v21, v21, 3, v2
    v_add_u32 v21, s10, v21
    v_lshlrev_b32 v44, 16, v96
    v_and_b32 v45, 0xffff0000, v96
    """)
    lds_wait(FL_OPUB, 1)
    poll([(24 + 4*i, 22, f"s{66+i}", 0) for i in range(4)], sleep=SB)
    stamp(8)
    a(f"""
    v_pk_add_f32 v[24:25], v[24:25], v[28:29]
    v_pk_add_f32 v[32:33], v[32:33], v[36:37]
    v_pk_add_f32 v[24:25], v[24:25], v[32:33]
    v_mov_b32 v26, v24
    v_mov_b32 v27, v25
    v_permlane32_swap_b32 v24, v26
    v_permlane32_swap_b32 v25, v27
    v_pk_add_f32 v[24:25], v[24:25], v[26:27]
    v_cvt_pk_bf16_f32 v26, v24, v25
    v_lshlrev_b32 v24, 16, v26
    v_and_b32 v25, 0xffff0000, v26
    v_pk_add_f32 v[24:25], v[24:25], v[44:45]
    v_cvt_pk_bf16_f32 v26, v24, v25
    v_lshlrev_b32 v24, 16, v26
    v_and_b32 v25, 0xffff0000, v26
    ds_write_b64 v21, v[24:25] offset:{ROW}
    v_mov_b32 v3, 1
    s_mov_b64 exec, 1
    ds_add_u32 v2, v3 offset:{CNT_ROW}
    s_mov_b64 exec, -1
    L_W_done:
    """)
    stamp(9)
    dump_stamps()
    a("L_end:")
    a("s_endpgm")
    a("L_code_end:")
    txt = a.text().split("\n")
    out = []
    for l in txt:
        if "M0" in X and "buffer_store_dwordx4" in l and l.rstrip().endswith("sc1") and ("s11 offen" in l or "s12 offen" in l):
            continue
        if "SN" in X and ("buffer_load" in l or "global_load" in l) and " nt" not in l and "sc1" not in l:
            l = l.replace(" lds", " nt lds") if l.rstrip().endswith("lds") else l.rstrip() + " nt"
        if "PN" in X and "buffer_load" in l and l.rstrip().endswith("sc1"):
            l = l.rstrip() + " nt"
        out.append(l)
    return wrap("\n".join(out), 256, 896, LDS_TOTAL, 128, denorm=True)

if __name__ == "__main__":
    import argparse
    ap = argparse.ArgumentParser()
    ap.add_argument("-o", default="t/k7.s"); ap.add_argument("--dbg", action="store_true"); ap.add_argument("--dbg2", action="store_true")
    ap.add_argument("--abl", action="store_true"); ap.add_argument("--x", default=""); ap.add_argument("--pol", default="nt"); ap.add_argument("--nopf", action="store_true")
    for n, d in (("dq", 20), ("dw", 16), ("dwq", 32), ("dk0", 8), ("nk0", 16), ("sq", 2), ("ss", 2), ("sa", 1), ("sb", 1), ("e0", 114), ("priol", 0), ("r0", 24), ("wqd", -1), ("nsp", 6), ("dqv", 0), ("dwv", 0), ("dwo", 0), ("qdelay", 0)):
        ap.add_argument("--" + n, type=int, default=d)
    g = ap.parse_args()
    open(g.o, "w").write(gen(dbg=g.dbg, dbg2=g.dbg2, pol=g.pol, prefetch=not g.nopf, DQ=g.dq, DW=g.dw, DWQ=g.dwq, DK0=g.dk0, NK0=g.nk0,
                             SQ=g.sq, SS=g.ss, SA=g.sa, SB=g.sb, e0=g.e0, prioL=g.priol, R0=g.r0, WQD=g.wqd, NSP=g.nsp, DQV=g.dqv, DWV=g.dwv, DWO=g.dwo, abl=g.abl, X=g.x, QDELAY=g.qdelay))
```

```python
import sys, struct
from asmgen import *

def f32bits(x): return struct.unpack("<I", struct.pack("<f", x))[0]

K_L = 0; V_L = 65536; WQ_L = 98304; WO_L = 0
MISC = 131072
XN = 0; QI = 4096; FL = 5120; ST = 5376; OS = 6144; AS = 10240; ROW = 14336; TAB = 16384; WT = 6144
LDS_TOTAL = MISC + 24576
FL_QPROJ = FL + 0; FL_QREADY = FL + 4; PROG = FL + 8; FL_STATS = FL + 20; CNT_QK = FL + 24; CNT_O = FL + 28
CNT_A = FL + 32; CNT_ROW = FL + 36; FL_OPUB = FL + 48; FL_WT = FL + 52; CNT_WT = FL + 56; FL_MIR = FL + 60
XT = 0x8000
QG = 0xB0000; STG = 0x20000; OG = 0x40000; AG = 0x80000; TG = 0xA0000; SG = 0x100000; DBGA = 0x600000
WS_BYTES = 0x800000; MIRROR = 0x200000
TAB_E0 = 114
LOG2E = 1.4426950408889634
SCALE = 128 ** -0.5
GC0 = -2.0 * 0.7978845608028654 * LOG2E
GC1 = GC0 * 0.044715
MASK4 = "0x000f000f"

def gelu_pairs(a, items, acc, st, sc1, vc0, vone):
    for (w, b, w2, t) in items: a(f"v_pk_mul_f32 v[{t}:{t+1}], v[{w}:{w+1}], {st}")
    for (w, b, w2, t) in items: a(f"v_cvt_pk_bf16_f32 v{t+2}, v{t}, v{t+1}")
    for (w, b, w2, t) in items:
        a(f"v_lshlrev_b32 v{t}, 16, v{t+2}"); a(f"v_and_b32 v{t+1}, 0xffff0000, v{t+2}")
    for (w, b, w2, t) in items: a(f"v_pk_add_f32 v[{t}:{t+1}], v[{t}:{t+1}], v[{b}:{b+1}]")
    for (w, b, w2, t) in items: a(f"v_cvt_pk_bf16_f32 v{t+2}, v{t}, v{t+1}")
    for (w, b, w2, t) in items:
        a(f"v_lshlrev_b32 v{t}, 16, v{t+2}"); a(f"v_and_b32 v{t+1}, 0xffff0000, v{t+2}")
    for (w, b, w2, t) in items: a(f"v_pk_mul_f32 v[{t+2}:{t+3}], v[{t}:{t+1}], v[{t}:{t+1}]")
    for (w, b, w2, t) in items: a(f"v_pk_fma_f32 v[{t+2}:{t+3}], v[{t+2}:{t+3}], {sc1}, v[{vc0}:{vc0+1}]")
    for (w, b, w2, t) in items: a(f"v_pk_mul_f32 v[{t+2}:{t+3}], v[{t+2}:{t+3}], v[{t}:{t+1}]")
    for (w, b, w2, t) in items:
        a(f"v_exp_f32 v{t+2}, v{t+2}"); a(f"v_exp_f32 v{t+3}, v{t+3}")
    for (w, b, w2, t) in items: a(f"v_pk_add_f32 v[{t+2}:{t+3}], v[{t+2}:{t+3}], v[{vone}:{vone+1}]")
    for (w, b, w2, t) in items:
        a(f"v_rcp_f32 v{t+2}, v{t+2}"); a(f"v_rcp_f32 v{t+3}, v{t+3}")
    for (w, b, w2, t) in items: a(f"v_pk_mul_f32 v[{t+2}:{t+3}], v[{t+2}:{t+3}], v[{t}:{t+1}]")
    for (w, b, w2, t) in items: a(f"v_cvt_pk_bf16_f32 v{t+4}, v{t+2}, v{t+3}")
    for (w, b, w2, t) in items: a(f"v_dot2_f32_bf16 v{acc}, v{t+4}, v{w2}, v{acc}")

def gen(dbg=False, pol="nt", prefetch=True, DQ=20, DW=16, DWQ=32, DK0=8, NK0=16, SQ=2, SS=2, SA=1, SB=1, dbg2=False, e0=114, prioL=0, R0=24, WQD=-1, NSP=6, DQV=0, DWV=0, DWO=0, abl=False, XF="", QDELAY=0, DEFER=1, R1=8, R1L=256, TD=0):
    DQV = DQV or DQ; DWV = DWV or DW; DWO = DWO or DW
    a = A()
    POL = " " + pol if pol else ""
    nstamp = [0]
    def stamp(i=None):
        if dbg:
            if i is None:
                i = nstamp[0]; nstamp[0] += 1
            a(f"s_memrealtime s[{70+2*i}:{71+2*i}]")
            a("s_waitcnt lgkmcnt(0)")
    def dump_stamps():
        if dbg:
            a("s_mov_b64 exec, -1")
            a("s_waitcnt vmcnt(0) lgkmcnt(0)")
            for i in range(12):
                a(f"v_mov_b32 v{100+i}, s{70+2*i}")
            a(f"""
            s_mul_i32 s10, s2, 14
            s_add_u32 s10, s10, s3
            s_mul_i32 s10, s10, 64
            s_add_u32 s10, s10, {DBGA}
            v_mov_b32 v99, s10
            s_mov_b64 exec, 1
            buffer_store_dwordx4 v[100:103], v99, s[44:47], 0 offen
            buffer_store_dwordx4 v[104:107], v99, s[44:47], 0 offen offset:16
            buffer_store_dwordx4 v[108:111], v99, s[44:47], 0 offen offset:32
            """)
        nstamp[0] = 0
    def srd(d, ptr, nbytes):
        a(f"""
        s_mov_b32 s{d}, s{ptr}
        s_and_b32 s{d+1}, s{ptr+1}, 0xffff
        s_mov_b32 s{d+2}, {nbytes}
        s_mov_b32 s{d+3}, 0x20000
        """)
    def lds_wait(off, val, vt=3, slp=1, esc=None):
        L = a.label("Lw"); D = a.label("Lwd")
        a(f"""
        s_mov_b32 s13, 0x40000
        {L}:
        ds_read_b32 v{vt}, v2 offset:{off}
        s_waitcnt lgkmcnt(0)
        v_readfirstlane_b32 s12, v{vt}
        s_cmp_ge_u32 s12, {val}
        s_cbranch_scc1 {D}
        s_sub_u32 s13, s13, 1
        s_cbranch_scc1 {D}
        """)
        if esc:
            E = a.label("Le")
            a(f"s_cmp_eq_u32 s13, {0x40000 - R1L}")
            a(f"s_cbranch_scc0 {E}")
            esc()
            a(f"{E}:")
        if slp: a(f"s_sleep {slp}")
        a(f"""
        s_branch {L}
        {D}:
        """)
    def lds_set(off, val, vt=3):
        a(f"""
        v_mov_b32 v{vt}, {val}
        s_mov_b64 exec, 1
        ds_write_b32 v2, v{vt} offset:{off}
        s_mov_b64 exec, -1
        """)
    def lds_count(off, vt=3):
        a(f"""
        v_mov_b32 v{vt}, 1
        s_mov_b64 exec, 1
        ds_add_rtn_u32 v{vt}, v2, v{vt} offset:{off}
        s_mov_b64 exec, -1
        s_waitcnt lgkmcnt(0)
        v_readfirstlane_b32 s12, v{vt}
        """)
    def dual_sel(R0):
        a(f"""
        s_and_b32 s12, s13, 1
        s_cmp_lt_u32 s13, {0x3fff - R0}
        s_cselect_b32 s12, s12, 0
        s_mul_i32 s12, s12, {MIRROR}
        s_add_u32 s67, s12, s66
        """)
    def poll(loads, sleep=2, dual=None, trig=None, nspin=6, esc=None):
        a("s_mov_b32 s13, 0x3fff")
        L = a.label("Lp"); D = a.label("Lpd"); S = a.label("Lps")
        a(f"{L}:")
        if dual: dual_sel(dual)
        for (d, va, so, imm) in loads:
            a(f"buffer_load_dwordx4 v[{d}:{d+3}], v{va}, s[44:47], {'s67' if dual else so} offen offset:{imm}{' nt' if (dual and 'PN' in XF) else ''} sc1")
        a("s_waitcnt vmcnt(0)")
        for i, (d, va, so, imm) in enumerate(loads):
            if i == 0:
                a(f"v_cmp_ne_u64 s[14:15], s[60:61], v[{d+2}:{d+3}]")
            else:
                a(f"v_cmp_ne_u64 vcc, s[60:61], v[{d+2}:{d+3}]")
                a("s_or_b64 s[14:15], s[14:15], vcc")
        a(f"""
        s_cmp_eq_u64 s[14:15], 0
        s_cbranch_scc1 {D}
        s_sub_u32 s13, s13, 1
        s_cbranch_scc1 {D}
        """)
        if esc:
            E = a.label("Le")
            a(f"s_cmp_eq_u32 s13, {0x3fff - R1}")
            a(f"s_cbranch_scc0 {E}")
            esc()
            a(f"{E}:")
        if trig is None:
            a(f"s_sleep {sleep}")
            a(f"s_branch {L}")
        else:
            a(f"""
            s_mov_b32 s14, {nspin}
            {S}:
            s_sleep 1
            ds_read_b32 v3, v2 offset:{trig}
            s_waitcnt lgkmcnt(0)
            v_readfirstlane_b32 s12, v3
            s_cmp_lg_u32 s12, 0
            s_cbranch_scc1 {L}
            s_sub_u32 s14, s14, 1
            s_cbranch_scc0 {S}
            s_branch {L}
            """)
        a(f"{D}:")
    def pub_xcc():
        a(f"""
        s_getreg_b32 s95, hwreg(HW_REG_XCC_ID)
        s_and_b32 s95, s95, 0xf
        s_lshl_b32 s12, s4, 9
        s_lshl_b32 s13, s5, 4
        s_add_u32 s12, s12, s13
        s_add_u32 s12, s12, {XT}
        v_mov_b32 v108, s95
        v_mov_b32 v109, 0
        v_mov_b32 v110, s60
        v_mov_b32 v111, s61
        s_mov_b64 exec, 1
        buffer_store_dwordx4 v[108:111], v109, s[44:47], s12 offen sc1
        s_mov_b64 exec, -1
        """)
    def chk_xcc():
        S = a.label("Lx")
        a(f"""
        s_lshl_b32 s12, s4, 9
        s_add_u32 s12, s12, {XT}
        s_mov_b32 exec_hi, 0
        buffer_load_dwordx4 v[108:111], v4, s[44:47], s12 offen sc1
        s_waitcnt vmcnt(0)
        v_cmp_ne_u64 s[14:15], s[60:61], v[110:111]
        v_cmp_ne_u32 vcc, s95, v108
        s_mov_b64 exec, -1
        s_or_b64 s[14:15], s[14:15], vcc
        s_cmp_eq_u64 s[14:15], 0
        s_cbranch_scc0 {S}
        s_mov_b32 s96, 0
        """)
        lds_set(FL_MIR, 1)
        a(f"{S}:")
    def flushQ():
        S = a.label("Lf")
        a(f"""
        s_cmp_eq_u32 s96, 0
        s_cbranch_scc1 {S}
        buffer_store_dwordx4 v[100:103], v98, s[44:47], s97 offen sc1
        buffer_store_dwordx4 v[104:107], v98, s[44:47], s97 offen offset:2048 sc1
        s_mov_b32 s96, 0
        {S}:
        """)
    def flushW():
        S = a.label("Lf")
        a(f"""
        s_cmp_eq_u32 s96, 0
        s_cbranch_scc1 {S}
        ds_read_b32 v3, v2 offset:{FL_MIR}
        s_waitcnt lgkmcnt(0)
        v_readfirstlane_b32 s12, v3
        s_cmp_eq_u32 s12, 1
        s_cbranch_scc1 {S}
        s_mov_b32 exec_lo, 0x00ff0fff
        s_mov_b32 exec_hi, 0x00ff00ff
        buffer_store_dwordx4 v[100:103], v13, s[44:47], s97 offen sc1
        s_mov_b64 exec, -1
        s_mov_b32 s96, 0
        {S}:
        """)
    def xrow(regs, op, tmps):
        for sw in ("v_permlane16_swap_b32", "v_permlane32_swap_b32"):
            for r, t in zip(regs, tmps): a(f"v_mov_b32 v{t}, v{r}")
            for r, t in zip(regs, tmps): a(f"{sw} v{r}, v{t}")
            for r, t in zip(regs, tmps): a(f"v_{op}_f32 v{r}, v{r}, v{t}")
    def allreduce(regs, op, tmps):
        for m in ("quad_perm:[1,0,3,2]", "quad_perm:[2,3,0,1]", "row_half_mirror", "row_mirror"):
            for r in regs:
                a(f"v_{op}_f32_dpp v{r}, v{r}, v{r} {m} row_mask:0xf bank_mask:0xf")
        xrow(regs, op, tmps)
    def rbf(dst, src):
        a(f"v_cvt_pk_bf16_f32 v{dst}, v{src}, v{src}")
        a(f"v_lshlrev_b32 v{dst}, 16, v{dst}")
    def unpack(dlo, dhi, src):
        a(f"v_lshlrev_b32 v{dlo}, 16, v{src}")
        a(f"v_and_b32 v{dhi}, 0xffff0000, v{src}")
    def layernorm4(rows, tmpb):
        n = len(rows)
        S = [tmpb + i for i in range(n)]; T = [tmpb + n + i for i in range(n)]; Mb = [tmpb + 2*n + i for i in range(n)]
        D = [tmpb + 3*n + 8*i for i in range(n)]
        for x, s, t in zip(rows, S, T):
            a(f"v_add_f32 v{s}, v{x}, v{x+1}"); a(f"v_add_f32 v{t}, v{x+2}, v{x+3}")
        for x, s, t in zip(rows, S, T):
            a(f"v_add_f32 v{s}, v{s}, v{x+4}"); a(f"v_add_f32 v{t}, v{t}, v{x+5}")
        for x, s, t in zip(rows, S, T):
            a(f"v_add_f32 v{s}, v{s}, v{x+6}"); a(f"v_add_f32 v{t}, v{t}, v{x+7}")
        for s, t in zip(S, T): a(f"v_add_f32 v{s}, v{s}, v{t}")
        allreduce(S, "add", T)
        for s in S: a(f"v_mul_f32 v{s}, {f32bits(1/512):#x}, v{s}")
        for x, s, d in zip(rows, S, D):
            for i in range(8): a(f"v_sub_f32 v{d+i}, v{x+i}, v{s}")
        for s, m in zip(S, Mb): rbf(m, s)
        for s, t, d in zip(S, T, D):
            a(f"v_mul_f32 v{s}, v{d}, v{d}"); a(f"v_mul_f32 v{t}, v{d+1}, v{d+1}")
        for i in range(2, 8, 2):
            for s, t, d in zip(S, T, D):
                a(f"v_fmac_f32 v{s}, v{d+i}, v{d+i}"); a(f"v_fmac_f32 v{t}, v{d+i+1}, v{d+i+1}")
        for s, t in zip(S, T): a(f"v_add_f32 v{s}, v{s}, v{t}")
        allreduce(S, "add", T)
        for s in S: a(f"v_mul_f32 v{s}, {f32bits(1/512):#x}, v{s}")
        for s in S: rbf(s, s)
        for s in S: a(f"v_add_f32 v{s}, {f32bits(1e-5):#x}, v{s}")
        for s in S: rbf(s, s)
        for s in S: a(f"v_sqrt_f32 v{s}, v{s}")
        for s in S: rbf(s, s)
        for s in S: a(f"v_rcp_f32 v{s}, v{s}")
        for x, m, d in zip(rows, Mb, D):
            for i in range(8): a(f"v_sub_f32 v{d+i}, v{x+i}, v{m}")
        for x, d in zip(rows, D):
            for i in range(0, 8, 2): a(f"v_cvt_pk_bf16_f32 v{x+i}, v{d+i}, v{d+i+1}")
        for x, d in zip(rows, D):
            for i in range(0, 8, 2): unpack(d+i, d+i+1, x+i)
        for s, d in zip(S, D):
            for i in range(8): a(f"v_mul_f32 v{d+i}, v{d+i}, v{s}")
        return D
    def layernorm1(x, t, outp, shift):
        d = t; s1 = t + 8; s2 = t + 10; u = t + 12
        if shift:
            for i in range(0, 8, 2):
                a(f"v_pk_add_f32 v[{d+i}:{d+i+1}], v[{x+i}:{x+i+1}], {shift} neg_lo:[0,1] neg_hi:[0,1]")
            src = d
        else: src = x
        a(f"""
        v_pk_add_f32 v[{s1}:{s1+1}], v[{src}:{src+1}], v[{src+2}:{src+3}]
        v_pk_mul_f32 v[{s2}:{s2+1}], v[{src}:{src+1}], v[{src}:{src+1}]
        v_pk_add_f32 v[{u}:{u+1}], v[{src+4}:{src+5}], v[{src+6}:{src+7}]
        v_pk_fma_f32 v[{s2}:{s2+1}], v[{src+2}:{src+3}], v[{src+2}:{src+3}], v[{s2}:{s2+1}]
        v_pk_add_f32 v[{s1}:{s1+1}], v[{s1}:{s1+1}], v[{u}:{u+1}]
        v_pk_fma_f32 v[{s2}:{s2+1}], v[{src+4}:{src+5}], v[{src+4}:{src+5}], v[{s2}:{s2+1}]
        v_add_f32 v{s1}, v{s1}, v{s1+1}
        v_pk_fma_f32 v[{s2}:{s2+1}], v[{src+6}:{src+7}], v[{src+6}:{src+7}], v[{s2}:{s2+1}]
        v_add_f32 v{s2}, v{s2}, v{s2+1}
        """)
        allreduce([s1, s2], "add", [u, u + 1])
        a(f"""
        v_mul_f32 v{s1}, {f32bits(1/512):#x}, v{s1}
        v_mul_f32 v{s2}, {f32bits(1/512):#x}, v{s2}
        v_fma_f32 v{s2}, -v{s1}, v{s1}, v{s2}
        v_max_f32 v{s2}, 0, v{s2}
        """)
        if shift: a(f"v_add_f32 v{s1}, {shift.replace('[','').split(':')[0]}, v{s1}")
        a(f"""
        v_cvt_pk_bf16_f32 v{u}, v{s1}, v{s2}
        v_and_b32 v{s2}, 0xffff0000, v{u}
        v_lshlrev_b32 v{s1}, 16, v{u}
        v_add_f32 v{s2}, {f32bits(1e-5):#x}, v{s2}
        v_mov_b32 v{s1+1}, v{s1}
        v_cvt_pk_bf16_f32 v{s2}, v{s2}, v{s2}
        """)
        for i in range(0, 4, 2):
            a(f"v_pk_add_f32 v[{d+i}:{d+i+1}], v[{x+i}:{x+i+1}], v[{s1}:{s1+1}] neg_lo:[0,1] neg_hi:[0,1]")
        a(f"v_lshlrev_b32 v{s2}, 16, v{s2}")
        for i in range(4, 8, 2):
            a(f"v_pk_add_f32 v[{d+i}:{d+i+1}], v[{x+i}:{x+i+1}], v[{s1}:{s1+1}] neg_lo:[0,1] neg_hi:[0,1]")
        a(f"v_sqrt_f32 v{s2}, v{s2}")
        for i in range(2): a(f"v_cvt_pk_bf16_f32 v{outp+i}, v{d+2*i}, v{d+2*i+1}")
        a(f"v_cvt_pk_bf16_f32 v{s2}, v{s2}, v{s2}")
        for i in range(2, 4): a(f"v_cvt_pk_bf16_f32 v{outp+i}, v{d+2*i}, v{d+2*i+1}")
        a(f"v_lshlrev_b32 v{s2}, 16, v{s2}")
        for i in range(2): unpack(d + 2*i, d + 2*i + 1, outp + i)
        a(f"v_rcp_f32 v{s2}, v{s2}")
        for i in range(2, 4): unpack(d + 2*i, d + 2*i + 1, outp + i)
        a(f"v_mov_b32 v{s2+1}, v{s2}")
        for i in range(0, 8, 2):
            a(f"v_pk_mul_f32 v[{d+i}:{d+i+1}], v[{d+i}:{d+i+1}], v[{s2}:{s2+1}]")
        for i in range(4): a(f"v_cvt_pk_bf16_f32 v{outp+i}, v{d+2*i}, v{d+2*i+1}")
    def get_tag():
        a("""
        s_waitcnt lgkmcnt(0)
        s_add_u32 s60, s62, 0x7f4a7c15
        s_addc_u32 s61, s63, 0x9e3779b9
        """)

    a(f"""
    s_cmp_ge_u32 s2, 256
    s_cbranch_scc1 L_end
    s_load_dwordx16 s[16:31], s[0:1], 0
    s_load_dwordx8 s[32:39], s[0:1], 64
    s_load_dwordx2 s[40:41], s[0:1], 96
    v_lshrrev_b32 v1, 6, v0
    v_and_b32 v0, 63, v0
    v_readfirstlane_b32 s3, v1
    v_mov_b32 v2, {MISC}
    v_lshl_add_u32 v3, v0, 2, v2
    v_mov_b32 v4, 0
    ds_write_b32 v3, v4 offset:{FL}
    s_and_b32 s4, s2, 7
    s_lshr_b32 s5, s2, 3
    s_and_b32 s6, s5, 3
    s_lshr_b32 s7, s5, 2
    s_lshl_b32 s8, s6, 3
    s_add_u32 s8, s8, s4
    s_cmp_lt_u32 s5, 16
    s_cselect_b32 s42, 32, 0
    s_waitcnt lgkmcnt(0)
    s_barrier
    s_load_dwordx2 s[62:63], s[40:41], 0
    """)
    srd(44, 40, WS_BYTES)
    a("""
    s_cmp_eq_u32 s3, 0
    s_cbranch_scc1 L_roleL
    """)
    if abl: a("s_endpgm")
    a("""
    v_lshlrev_b32 v4, 4, v0
    s_cmp_eq_u32 s3, 1
    s_cbranch_scc1 L_earlyQ
    s_cmp_eq_u32 s3, 10
    s_cbranch_scc1 L_earlyT
    s_cmp_ge_u32 s3, 10
    s_cbranch_scc1 L_roleT
    s_branch L_roleW
    L_earlyQ:
    """)
    srd(48, 16, 4096)
    for b in range(4):
        a(f"buffer_load_dwordx4 v[{8+4*b}:{11+4*b}], v4, s[48:51], 0 offen offset:{1024*b}")
    a("s_branch L_roleQ")
    a("L_earlyT:")
    for k, (sr, ptr) in enumerate(((48, 28), (52, 30), (56, 32))):
        srd(sr, ptr, 3584)
        a(f"s_mov_b32 m0, {MISC + WT + 4096*k}")
        for i in range(4):
            a(f"buffer_load_dwordx4 v4, s[{sr}:{sr+3}], 0 offen offset:{1024*i} lds")
    a("s_waitcnt vmcnt(0)")
    lds_set(FL_WT, 1)
    a("s_branch L_roleT")

    a("L_roleL:")
    if prioL: a(f"s_setprio {prioL}")
    stamp(0)
    a(f"""
    v_lshrrev_b32 v4, 2, v0
    v_and_b32 v5, 3, v0
    v_lshlrev_b32 v5, 4, v5
    s_mov_b32 s43, 0
    s_mov_b32 s14, 0
    s_cmp_ge_u32 s5, 16
    s_cbranch_scc1 L_L_setup2
    """)
    srd(64, 22, 0x400000)
    a(f"""
    v_lshrrev_b32 v6, 3, v0
    v_and_b32 v7, 7, v0
    v_lshlrev_b32 v7, 4, v7
    v_lshl_add_u32 v32, v6, 13, v7
    s_lshl_b32 s94, s4, 10
    s_and_b32 s10, s5, 7
    s_lshl_b32 s10, s10, 7
    s_add_u32 s94, s94, s10
    s_lshr_b32 s10, s5, 3
    s_lshl_b32 s10, s10, 21
    s_add_u32 s94, s94, s10
    s_mov_b32 s95, {WQ_L}
    v_add_u32 v33, {65536-1024}, v32
    v_add_u32 v34, {2*(65536-1024)}, v32
    v_add_u32 v35, {3*(65536-1024)}, v32
    L_L_wq:
    s_mov_b32 m0, s95
    s_add_u32 s43, s43, 4
    """)
    for n in range(4):
        a(f"buffer_load_dwordx4 v{32+n}, s[64:67], s94 offen offset:{n*1024}{POL} lds")
    a(f"""
    s_add_u32 s94, s94, {4*65536}
    s_add_u32 s95, s95, 4096
    s_cmp_lt_u32 s43, 32
    s_cbranch_scc1 L_L_wq
    L_L_setup2:
    """)
    srd(48, 18, 0x4000000)
    a(f"""
    v_lshrrev_b32 v8, 4, v0
    v_and_b32 v9, 15, v0
    """)
    for n in range(4):
        a(f"""
        v_add_u32 v6, {4*n}, v8
        v_xor_b32 v7, v6, v9
        v_lshlrev_b32 v7, 4, v7
        v_lshl_add_u32 v{20+n}, v8, 8, v7
        """)
    a(f"""
    s_lshl_b32 s9, s8, 21
    s_add_u32 s9, s9, {6144*256}
    s_lshl_b32 s10, s7, 16
    s_add_u32 s96, s9, s10
    s_cmp_lt_u32 s5, 16
    s_cbranch_scc1 L_L_setup3
    s_mov_b32 s94, s96
    s_mov_b32 s95, {K_L}
    L_L_k0:
    s_mov_b32 m0, s95
    s_add_u32 s43, s43, 4
    """)
    for n in range(4):
        a(f"buffer_load_dwordx4 v{20+n}, s[48:51], s94 offen offset:{n*1024}{POL} lds")
    a(f"""
    s_add_u32 s94, s94, 4096
    s_add_u32 s95, s95, 4096
    s_cmp_lt_u32 s43, {DK0}
    s_cbranch_scc1 L_L_k0
    L_L_setup3:
    """)
    srd(52, 20, 0x4000000); srd(56, 24, 0x400000)
    a(f"""
    v_lshl_add_u32 v24, v4, 8, v5
    v_lshl_add_u32 v28, v4, 10, v5
    """)
    for n in range(1, 4):
        a(f"v_add_u32 v{24+n}, {n*(4096-1024)}, v24")
        a(f"v_add_u32 v{28+n}, {n*(16384-1024)}, v28")
    a(f"""
    s_lshr_b32 s10, s7, 2
    s_lshl_b32 s10, s10, 18
    s_add_u32 s97, s9, s10
    s_and_b32 s10, s7, 3
    s_lshl_b32 s10, s10, 6
    s_add_u32 s97, s97, s10
    s_lshl_b32 s98, s4, 19
    s_sub_u32 s10, s5, 16
    s_lshl_b32 s10, s10, 6
    s_add_u32 s98, s98, s10
    s_cmp_ge_u32 s5, 16
    s_cbranch_scc1 L_L_wo
    """)
    def seg(ngroups, vbase, srdr, soff, ldsbase, gstep, D, first_free=0):
        L = a.label("Ls")
        if soff is not None: a(f"s_mov_b32 s94, {soff}")
        if ldsbase is not None: a(f"s_mov_b32 s95, {ldsbase}")
        a(f"s_mov_b32 s11, {ngroups}")
        a(f"""
        {L}:
        s_mov_b32 m0, s95
        s_sub_i32 s10, s43, {D-4}
        s_max_i32 s14, s10, s14
        v_mov_b32 v3, s14
        s_mov_b64 exec, 1
        s_waitcnt vmcnt({D-4})
        ds_write_b32 v2, v3 offset:{PROG}
        s_mov_b64 exec, -1
        """)
        for n in range(4):
            a(f"buffer_load_dwordx4 v{vbase+n}, s[{srdr}:{srdr+3}], s94 offen offset:{n*1024}{POL} lds")
        a(f"""
        s_add_u32 s94, s94, {gstep}
        s_add_u32 s95, s95, 4096
        s_add_u32 s43, s43, 4
        s_sub_u32 s11, s11, 1
        s_cmp_lg_u32 s11, 0
        s_cbranch_scc1 {L}
        """)
    def drain(D, total, stampat={}):
        for k in range(D - 4, -1, -4):
            a(f"s_waitcnt vmcnt({k})")
            lds_set(PROG, total - k)
            if total - k in stampat: stamp(stampat[total - k])
    if WQD >= 0:
        for k in range(24, WQD - 1, -8):
            a(f"s_waitcnt vmcnt({k})")
            lds_set(PROG, 32 - k)
        a(f"s_mov_b32 s14, {32 - WQD}")
    seg(16, 20, 48, "s96", K_L, 4096, DQ)
    seg(8, 24, 52, "s97", V_L, 16384, DQV)
    stamp(1)
    if not abl: lds_wait(FL_QPROJ, 1)
    seg(8, 24, 52, None, None, 16384, DQV)
    drain(DQV, 160, {160: 2})
    a("s_branch L_L_done")
    a("L_L_wo:")
    if NK0 > DK0: seg((NK0 - DK0) // 4, 20, 48, None, None, 4096, DK0)
    seg(16 - NK0 // 4, 20, 48, None, None, 4096, DW)
    seg(16, 24, 52, "s97", V_L, 16384, DWV)
    stamp(1)
    if not abl: lds_wait(CNT_QK, 8)
    seg(8, 28, 56, "s98", WO_L, 4 * 16384, DWO)
    stamp(2)
    drain(DWO, 160, {160: 3})
    a("L_L_done:")
    dump_stamps()
    a("s_endpgm")

    a("L_roleQ:")
    a("s_setprio 3")
    stamp(0)
    srd(56, 36, 4096)
    a("s_lshl_b32 s10, s6, 10")
    a("buffer_load_dwordx4 v[120:123], v4, s[56:59], s10 offen")
    if prefetch:
        a(f"""
        s_getpc_b64 s[10:11]
        L_pc_here:
        s_sub_u32 s10, s10, L_pc_here - {NAME}_kernel
        s_subb_u32 s11, s11, 0
        s_lshl_b32 s12, s5, 10
        v_add_u32 v7, s12, v4
        v_min_u32 v7, L_code_end - {NAME}_kernel - 16, v7
        global_load_dwordx4 v[124:127], v7, s[10:11]
        """)
    else:
        a("buffer_load_dwordx4 v[124:127], v4, s[56:59], s10 offen")
    a(f"""
    s_cmp_ge_u32 s5, 16
    s_cbranch_scc1 L_Q_gather
    s_waitcnt vmcnt(2)
    """)
    X = [24 + 8*b for b in range(4)]
    for b in range(4):
        for i in range(4): unpack(X[b] + 2*i, X[b] + 2*i + 1, 8 + 4*b + i)
    D = layernorm4(X, 56)
    for b in range(4):
        for i in range(4): a(f"v_cvt_pk_bf16_f32 v{8+4*b+i}, v{D[b]+2*i}, v{D[b]+2*i+1}")
    a("v_add_u32 v5, v4, v2")
    for b in range(4):
        a(f"ds_write_b128 v5, v[{8+4*b}:{11+4*b}] offset:{XN + 1024*b}")
    get_tag()
    pub_xcc()
    stamp(1)
    a(f"""
    v_lshrrev_b32 v5, 2, v0
    v_and_b32 v6, 3, v0
    v_lshlrev_b32 v7, 3, v6
    v_lshl_add_u32 v5, v5, 7, v7
    v_add_u32 v5, {WQ_L}, v5
    v_lshrrev_b32 v7, 4, v0
    v_lshlrev_b32 v7, 3, v7
    v_lshl_add_u32 v6, v6, 10, v7
    s_lshr_b32 s10, s5, 3
    s_lshl_b32 s10, s10, 9
    v_add3_u32 v6, v6, v2, s10
    """)
    for i in range(8):
        a(f"ds_read2_b64 v[{8+4*i}:{11+4*i}], v6 offset0:{8*i} offset1:{8*i+4}")
    a(f"""
    v_and_b32 v6, 3, v0
    v_lshlrev_b32 v6, 16, v6
    v_lshrrev_b32 v7, 4, v0
    v_lshl_add_u32 v6, v7, 4, v6
    v_bfe_u32 v7, v0, 2, 2
    v_lshl_add_u32 v6, v7, 6, v6
    v_cmp_eq_u32 s[64:65], 1, v7
    v_cmp_eq_u32 s[66:67], 2, v7
    v_cmp_eq_u32 s[68:69], 3, v7
    s_lshl_b32 s10, s4, 13
    s_and_b32 s11, s5, 7
    s_lshl_b32 s11, s11, 8
    s_add_u32 s10, s10, s11
    s_lshr_b32 s11, s5, 3
    s_lshl_b32 s11, s11, 12
    s_add_u32 s10, s10, s11
    s_add_u32 s10, s10, {QG}
    s_add_u32 s11, s10, {MIRROR}
    v_mov_b32 v82, s60
    v_mov_b32 v83, s61
    v_mov_b32 v86, s60
    v_mov_b32 v87, s61
    """)
    for h in range(4):
        lds_wait(PROG, 8 * (h + 1), slp=(0 if h == 3 else 1))
        if h == 3: stamp(2)
        for ii in range(2):
            i = 2*h + ii
            for ct in range(4):
                r = 88 + 16*ii + 4*ct
                a(f"ds_read_b64_tr_b16 v[{r}:{r+1}], v5 offset:{4096*i + 32*ct}")
                a(f"ds_read_b64_tr_b16 v[{r+2}:{r+3}], v5 offset:{4096*i + 32*ct + 2048}")
            if ii == 0: a("s_waitcnt lgkmcnt(4)")
        for ii in range(2):
            i = 2*h + ii
            for ct in range(4):
                if ii == 0 and ct == 2: a("s_waitcnt lgkmcnt(8)")
                if ii == 1 and ct == 0: a("s_waitcnt lgkmcnt(4)")
                if ii == 1 and ct == 2: a("s_waitcnt lgkmcnt(0)")
                r = 88 + 16*ii + 4*ct
                cc = "0" if i == 0 else f"v[{48+4*ct}:{51+4*ct}]"
                a(f"v_mfma_f32_16x16x32_bf16 v[{48+4*ct}:{51+4*ct}], v[{r}:{r+3}], v[{8+4*i}:{11+4*i}], {cc}")
    for k, m in enumerate(("s[64:65]", "s[66:67]", "s[68:69]")):
        for j in range(4):
            dst = (80, 81, 84, 85)[j] if k == 2 else 48 + j
            a(f"v_cndmask_b32 v{dst}, v{48+j}, v{52+4*k+j}, {m}")
    a(f"""
    buffer_store_dwordx4 v[80:83], v6, s[44:47], s10 offen
    buffer_store_dwordx4 v[84:87], v6, s[44:47], s10 offen offset:2048
    """)
    stamp(3)
    if DEFER:
        for j in range(8): a(f"v_mov_b32 v{100+j}, v{80+j}")
        a("v_mov_b32 v98, v6"); a("s_mov_b32 s97, s11"); a("s_mov_b32 s96, 1")
    else:
        a(f"""
        buffer_store_dwordx4 v[80:83], v6, s[44:47], s11 offen sc1
        buffer_store_dwordx4 v[84:87], v6, s[44:47], s11 offen offset:2048 sc1
        s_mov_b32 s96, 0
        """)
    lds_set(FL_QPROJ, 1)
    a(f"""
    s_branch L_Q_gather2
    L_Q_gather:
    s_mov_b32 s96, 0
    s_mov_b32 s97, 0
    v_mov_b32 v98, 0
    """)
    get_tag()
    pub_xcc()
    a(f"""
    L_Q_gather2:
    s_lshl_b32 s10, s6, 16
    s_lshl_b32 s11, s4, 13
    s_add_u32 s10, s10, s11
    s_add_u32 s66, s10, {QG}
    v_lshl_add_u32 v5, v0, 3, v2
    v_lshl_add_u32 v6, v0, 2, v2
    v_add_u32 v7, 4096, v4
    """)
    if QDELAY:
        a(f"s_add_u32 s11, s42, {QDELAY}")
        lds_wait(PROG, "s11", slp=2)
    poll([(8 + 4*i, 4 if i < 4 else 7, "s66", 1024*(i & 3)) for i in range(8)], sleep=SQ, dual=R0, esc=flushQ)
    for i in range(4):
        a(f"v_pk_add_f32 v[{8+4*i}:{9+4*i}], v[{8+4*i}:{9+4*i}], v[{24+4*i}:{25+4*i}]")
    a(f"""
    v_cvt_pk_bf16_f32 v40, v8, v9
    v_cvt_pk_bf16_f32 v41, v16, v17
    v_cvt_pk_bf16_f32 v42, v12, v13
    v_cvt_pk_bf16_f32 v43, v20, v21
    ds_write_b64 v5, v[40:41] offset:{QI}
    ds_write_b64 v5, v[42:43] offset:{QI + 512}
    """)
    lds_set(FL_QREADY, 1)
    stamp(4)
    chk_xcc()
    a(f"""
    s_lshl_b32 s10, s8, 12
    s_add_u32 s66, s10, {STG}
    s_mov_b32 s10, {f32bits(LOG2E):#x}
    """)
    if "SL" in XF: lds_wait(CNT_QK, 8, slp=2)
    poll([(8 + 4*i, 4, "s66", 1024*i) for i in range(4)], sleep=SS, dual=R0, esc=flushQ)
    a(f"""
    v_max_f32 v24, v8, v12
    v_max3_f32 v24, v24, v16, v20
    v_max_f32_dpp v24, v24, v24 row_ror:4 row_mask:0xf bank_mask:0xf
    v_max_f32_dpp v24, v24, v24 row_ror:8 row_mask:0xf bank_mask:0xf
    """)
    xrow([24], "max", [25])
    for i in range(4): a(f"v_sub_f32 v{26+i}, v{8+4*i}, v24")
    for i in range(4): a(f"v_mul_f32 v{26+i}, s10, v{26+i}")
    for i in range(4): a(f"v_exp_f32 v{26+i}, v{26+i}")
    a(f"""
    v_mul_f32 v30, v26, v9
    v_fmac_f32 v30, v27, v13
    v_fmac_f32 v30, v28, v17
    v_fmac_f32 v30, v29, v21
    v_add_f32_dpp v30, v30, v30 row_ror:4 row_mask:0xf bank_mask:0xf
    v_add_f32_dpp v30, v30, v30 row_ror:8 row_mask:0xf bank_mask:0xf
    """)
    xrow([30], "add", [25])
    a(f"""
    v_rcp_f32 v25, v30
    v_fma_f32 v31, -v30, v25, 1.0
    v_fmac_f32 v25, v31, v25
    s_mov_b64 exec, 15
    ds_write_b64 v5, v[24:25] offset:{ST}
    s_mov_b64 exec, -1
    """)
    lds_set(FL_STATS, 1)
    stamp(5)
    flushQ()
    a(f"""
    s_cmp_lg_u32 s4, 0
    s_cbranch_scc1 L_Q_done
    s_cmp_ge_u32 s5, 4
    s_cbranch_scc1 L_Q_done
    s_setprio 0
    """)
    lds_wait(CNT_WT, 4)
    for bt in range(2):
        a(f"s_mov_b32 s66, {TG + bt * 8192}")
        a(f"s_mov_b32 s67, {TG + bt * 8192 + 4096}")
        poll([(8 + 4*i, 4, "s66" if i < 4 else "s67", 1024*(i & 3)) for i in range(8)], sleep=4)
        for i in range(8):
            a(f"ds_write_b64 v5, v[{8+4*i}:{9+4*i}] offset:{TAB + (bt * 8 + i) * 512}")
    stamp(6)
    FW1 = 64; FB1 = 92; FW2 = 106
    srd(64, 28, 3584); srd(48, 30, 3584); srd(52, 32, 3584)
    a("v_lshlrev_b32 v6, 3, v0")
    for i in range(7):
        a(f"buffer_load_dwordx2 v[{8+2*i}:{9+2*i}], v6, s[64:67], 0 offen offset:{512*i}")
        a(f"buffer_load_dwordx2 v[{FB1+2*i}:{FB1+2*i+1}], v6, s[48:51], 0 offen offset:{512*i}")
        a(f"buffer_load_dwordx2 v[{FW2+2*i}:{FW2+2*i+1}], v6, s[52:55], 0 offen offset:{512*i}")
    srd(64, 34, 2)
    a("v_mov_b32 v7, 0")
    a("buffer_load_ushort v120, v7, s[64:67], 0 offen")
    a("s_waitcnt vmcnt(0)")
    for i in range(14):
        unpack(FW1 + 2*i, FW1 + 2*i + 1, 8 + i)
    a(f"""
    v_lshlrev_b32 v120, 16, v120
    v_lshl_add_u32 v5, v0, 5, v2
    s_mov_b32 s10, 0x08000800
    s_mov_b32 s11, {(e0 << 7) | (e0 << 23):#x}
    s_lshl_b32 s65, s5, 10
    s_setprio 3
    """)
    lds_wait(CNT_ROW, 8, slp=0)
    stamp(7)
    a(f"""
    ds_read_b128 v[32:35], v5 offset:{ROW}
    ds_read_b128 v[36:39], v5 offset:{ROW + 16}
    s_waitcnt lgkmcnt(0)
    v_readfirstlane_b32 s68, v32
    s_mov_b32 s69, s68
    """)
    layernorm1(32, 46, 16, "s[68:69]")
    for i in range(4): unpack(24 + 2*i, 25 + 2*i, 16 + i)
    layernorm1(24, 46, 16, None)
    for i in range(4):
        a(f"v_and_b32 v{40+i}, 0x7fff7fff, v{16+i}")
    for i in range(4):
        a(f"v_pk_sub_u16 v{40+i}, v{40+i}, s11")
    for i in range(4):
        a(f"v_lshrrev_b32 v{44+i}, 4, v{16+i}")
    a("v_or3_b32 v3, v40, v41, v42")
    for i in range(4):
        a(f"v_and_b32 v{44+i}, s10, v{44+i}")
    a("v_or_b32 v3, v3, v43")
    a("v_and_b32 v3, 0xf800f800, v3")
    a("s_mov_b32 s12, 0x07ff07ff")
    for i in range(4):
        a(f"v_and_or_b32 v{40+i}, v{40+i}, s12, v{44+i}")
    a("v_cmp_ne_u32 s[14:15], 0, v3")
    for i in range(4):
        a(f"v_and_b32 v{44+i}, 0xffff, v{40+i}")
        a(f"v_lshrrev_b32 v{40+i}, 16, v{40+i}")
        a(f"v_lshl_add_u32 v{44+i}, v{44+i}, 1, v2")
        a(f"v_lshl_add_u32 v{40+i}, v{40+i}, 1, v2")
        a(f"ds_read_u16 v{48+2*i}, v{44+i} offset:{TAB}")
        a(f"ds_read_u16 v{49+2*i}, v{40+i} offset:{TAB}")
    a(f"""
    s_cmp_eq_u64 s[14:15], 0
    s_waitcnt lgkmcnt(0)
    s_cbranch_scc0 L_Q_fb
    L_Q_nofb:
    """)
    for i in range(8): a(f"v_lshlrev_b32 v{48+i}, 16, v{48+i}")
    for i in range(0, 8, 2): a(f"v_pk_add_f32 v[{48+i}:{49+i}], v[{48+i}:{49+i}], v[{32+i}:{33+i}]")
    for i in range(4): a(f"v_cvt_pk_bf16_f32 v{16+i}, v{48+2*i}, v{49+2*i}")
    a(f"""
    buffer_store_dwordx4 v[16:19], v4, s[56:59], s65 offen
    s_cmp_lg_u32 s5, 0
    s_cbranch_scc1 L_Q_done
    v_mov_b32 v8, s60
    v_mov_b32 v9, s61
    v_mov_b32 v10, 0
    s_mov_b64 exec, 1
    buffer_store_dwordx2 v[8:9], v10, s[44:47], 0 offen
    s_mov_b64 exec, -1
    L_Q_done:
    """)
    stamp(8)
    if dbg2:
        srd(48, 38, 256)
        a("s_cmp_lg_u32 s2, 0")
        a("s_cbranch_scc1 L_Q_nodbg")
        for i in range(9):
            a(f"s_sub_u32 s10, s{70+2*i}, s70")
            a(f"v_mov_b32 v{100+i}, s10")
        a("""
        v_mov_b32 v99, 0
        s_mov_b64 exec, 1
        buffer_store_dwordx4 v[100:103], v99, s[48:51], 0 offen
        buffer_store_dwordx4 v[104:107], v99, s[48:51], 0 offen offset:16
        buffer_store_dword v108, v99, s[48:51], 0 offen offset:32
        s_mov_b64 exec, -1
        L_Q_nodbg:
        """)
    dump_stamps()
    a("s_endpgm")
    a("L_Q_fb:")
    for i in range(4):
        a(f"v_and_b32 v{24+2*i}, 0xffff, v{16+i}")
        a(f"v_lshrrev_b32 v{25+2*i}, 16, v{16+i}")
    a(f"""
    s_movk_i32 s10, 0x800
    v_mov_b32 v42, {f32bits(GC0):#x}
    v_mov_b32 v43, {f32bits(GC0):#x}
    v_mov_b32 v44, 1.0
    v_mov_b32 v45, 1.0
    s_mov_b32 s92, {f32bits(GC1):#x}
    s_mov_b32 s93, {f32bits(GC1):#x}
    """)
    for i in range(8):
        Lf = a.label("Lfb"); Ld = a.label("Lfbd")
        a(f"""
        v_and_b32 v46, 0x7fff, v{24+i}
        v_subrev_u32 v46, {e0 << 7}, v46
        v_cmp_le_u32 s[94:95], s10, v46
        {Lf}:
        s_cmp_eq_u64 s[94:95], 0
        s_cbranch_scc1 {Ld}
        s_ff1_i32_b64 s96, s[94:95]
        s_bitset0_b64 s[94:95], s96
        s_mov_b32 m0, s96
        s_nop 1
        v_readlane_b32 s68, v{24+i}, m0
        s_call_b64 s[98:99], L_eval
        s_nop 3
        v_writelane_b32 v{48+i}, s68, m0
        s_branch {Lf}
        {Ld}:
        """)
    a("s_nop 1")
    a("s_branch L_Q_nofb")
    a(f"""
    L_eval:
    s_nop 3
    s_lshl_b32 s68, s68, 16
    s_mov_b32 s69, s68
    v_mov_b32 v40, 0
    """)
    for p in range(0, 14, 2):
        unpack(14, 15, FB1 + p); unpack(62, 63, FB1 + p + 1)
        gelu_pairs(a, [(FW1 + 2*p, 14, FW2 + p, 8), (FW1 + 2*p + 2, 62, FW2 + p + 1, 56)], 40, "s[68:69]", "s[92:93]", 42, 44)
    allreduce([40], "add", [41])
    rbf(40, 40)
    a(f"""
    v_add_f32 v40, v40, v120
    v_cvt_pk_bf16_f32 v40, v40, v40
    v_and_b32 v40, 0xffff, v40
    v_readfirstlane_b32 s68, v40
    s_setpc_b64 s[98:99]
    """)

    a("L_roleT:")
    stamp(0)
    if "T0" in XF:
        a(f"""
        v_mov_b32 v3, 1
        s_mov_b64 exec, 1
        ds_add_u32 v2, v3 offset:{CNT_WT}
        s_endpgm
        """)
    a("s_sub_u32 s9, s3, 10")
    srd(64, 34, 2)
    W1 = 8; B1 = 36; W2 = 64; TP = 80
    a("v_mov_b32 v5, 0")
    a("buffer_load_ushort v6, v5, s[64:67], 0 offen")
    lds_wait(FL_WT, 1)
    stamp(10)
    a("v_lshl_add_u32 v4, v0, 3, v2")
    for i in range(7):
        a(f"ds_read_b64 v[{TP+2*i}:{TP+2*i+1}], v4 offset:{WT + 512*i}")
        a(f"ds_read_b64 v[{TP+14+2*i}:{TP+15+2*i}], v4 offset:{WT + 4096 + 512*i}")
    a("s_waitcnt lgkmcnt(0)")
    for i in range(7):
        a(f"ds_read_b64 v[{W2+2*i}:{W2+2*i+1}], v4 offset:{WT + 8192 + 512*i}")
    for i in range(14):
        unpack(W1 + 2*i, W1 + 2*i + 1, TP + i)
        unpack(B1 + 2*i, B1 + 2*i + 1, TP + 14 + i)
    a(f"""
    v_mov_b32 v80, {f32bits(GC0):#x}
    v_mov_b32 v81, {f32bits(GC0):#x}
    v_mov_b32 v82, 1.0
    v_mov_b32 v83, 1.0
    s_mov_b32 s92, {f32bits(GC1):#x}
    s_mov_b32 s93, {f32bits(GC1):#x}
    s_lshl_b32 s10, s2, 4
    s_lshl_b32 s11, s9, 2
    s_add_u32 s10, s10, s11
    s_lshr_b32 s11, s10, 11
    s_and_b32 s10, s10, 0x7ff
    s_add_u32 s10, s10, {e0 << 7}
    s_lshl_b32 s10, s10, 16
    s_lshl_b32 s11, s11, 31
    s_or_b32 s68, s10, s11
    s_mov_b32 s69, s68
    s_mov_b32 s11, 0
    """)
    get_tag()
    a(f"""
    v_mov_b32 v3, 1
    s_mov_b64 exec, 1
    ds_add_u32 v2, v3 offset:{CNT_WT}
    s_mov_b64 exec, -1
    """)
    if TD: lds_wait(PROG, TD, slp=8)
    a(f"""
    L_T_tab:
    v_mov_b32 v107, v106
    v_mov_b32 v106, v105
    v_mov_b32 v105, v104
    v_mov_b32 v104, 0
    """)
    for p in range(0, 14, 2):
        gelu_pairs(a, [(W1 + 2*p, B1 + 2*p, W2 + p, 88), (W1 + 2*p + 2, B1 + 2*p + 2, W2 + p + 1, 96)], 104, "s[68:69]", "s[92:93]", 80, 82)
    a(f"""
    s_add_u32 s68, s68, 0x10000
    s_mov_b32 s69, s68
    s_add_u32 s11, s11, 1
    s_cmp_lt_u32 s11, 4
    s_cbranch_scc1 L_T_tab
    s_nop 2
    """)
    allreduce([104, 105, 106, 107], "add", [84, 85, 86, 87])
    for r in (104, 105, 106, 107): rbf(r, r)
    a(f"""
    s_waitcnt vmcnt(0)
    v_lshlrev_b32 v6, 16, v6
    v_add_f32 v104, v104, v6
    v_add_f32 v105, v105, v6
    v_add_f32 v106, v106, v6
    v_add_f32 v107, v107, v6
    v_cvt_pk_bf16_f32 v88, v107, v106
    v_cvt_pk_bf16_f32 v89, v105, v104
    v_mov_b32 v90, s60
    v_mov_b32 v91, s61
    s_lshl_b32 s10, s2, 2
    s_add_u32 s10, s10, s9
    s_lshl_b32 s10, s10, 4
    s_add_u32 s10, s10, {TG}
    s_mov_b64 exec, 1
    buffer_store_dwordx4 v[88:91], v5, s[44:47], s10 offen sc1
    s_mov_b64 exec, -1
    """)
    stamp(1)
    dump_stamps()
    a("s_endpgm")

    a("L_roleW:")
    a("s_setprio 2")
    stamp(0)
    a("s_sub_u32 s9, s3, 2")
    srd(64, 16, 4096)
    a(f"""
    v_and_b32 v7, 31, v0
    v_lshlrev_b32 v7, 2, v7
    s_lshl_b32 s10, s6, 10
    s_lshl_b32 s11, s9, 7
    s_add_u32 s10, s10, s11
    buffer_load_dword v96, v7, s[64:67], s10 offen
    """)
    get_tag()
    stamp(1)
    a(f"""
    v_and_b32 v4, 15, v0
    v_lshrrev_b32 v5, 4, v0
    v_xor_b32 v6, v4, v5
    v_lshlrev_b32 v6, 4, v6
    v_lshl_add_u32 v6, v4, 8, v6
    s_lshl_b32 s10, s9, 13
    v_add_u32 v8, s10, v6
    v_xor_b32 v9, 64, v8
    v_xor_b32 v10, 128, v8
    v_xor_b32 v11, 192, v8
    v_and_b32 v7, 3, v0
    v_lshlrev_b32 v12, 8, v7
    v_lshl_add_u32 v12, v5, 4, v12
    v_add_u32 v12, v12, v2
    v_mov_b32 v74, s60
    v_mov_b32 v75, s61
    s_lshl_b32 s64, s8, 15
    s_lshl_b32 s12, s7, 12
    s_add_u32 s64, s64, s12
    s_lshr_b32 s12, s9, 2
    s_lshl_b32 s12, s12, 11
    s_add_u32 s64, s64, s12
    s_and_b32 s12, s9, 3
    s_lshl_b32 s12, s12, 6
    s_add_u32 s64, s64, s12
    s_add_u32 s64, s64, {SG}
    s_lshl_b32 s65, s8, 12
    s_lshl_b32 s12, s7, 9
    s_add_u32 s65, s65, s12
    s_lshl_b32 s12, s9, 6
    s_add_u32 s65, s65, s12
    s_add_u32 s65, s65, {STG}
    v_lshlrev_b32 v13, 4, v7
    v_add_u32 v15, s65, v13
    v_lshl_add_u32 v13, v5, 8, v13
    v_add_u32 v13, s64, v13
    v_bfe_u32 v14, v0, 2, 2
    v_cmp_eq_u32 s[64:65], 1, v14
    v_cmp_eq_u32 s[68:69], 2, v14
    v_add_u32 v14, 1024, v13
    v_cndmask_b32 v13, v13, v14, s[64:65]
    v_cndmask_b32 v13, v13, v15, s[68:69]
    v_lshlrev_b32 v14, 4, v0
    s_lshl_b32 s11, s9, 3
    s_add_u32 s11, s11, s42
    s_add_u32 s11, s11, 8
    """)
    lds_wait(PROG, "s11")
    for T in range(2):
        for s in range(4):
            a(f"ds_read_b128 v[{32+16*T+4*s}:{35+16*T+4*s}], v{8+s} offset:{4096*T}")
    lds_wait(FL_QREADY, 1)
    stamp(2)
    for s in range(4):
        a(f"ds_read_b128 v[{16+4*s}:{19+4*s}], v12 offset:{QI + 64*s}")
    a(f"""
    v_mov_b32 v3, 1
    s_mov_b64 exec, 1
    ds_add_u32 v2, v3 offset:{CNT_QK}
    s_mov_b64 exec, -1
    s_mov_b32 s10, {f32bits(SCALE):#x}
    s_mov_b32 s11, {f32bits(LOG2E):#x}
    """)
    for s in range(4):
        a(f"s_waitcnt lgkmcnt({4 - s})")
        for T in range(2):
            c = "0" if s == 0 else f"v[{64+4*T}:{67+4*T}]"
            a(f"v_mfma_f32_16x16x32_bf16 v[{64+4*T}:{67+4*T}], v[{32+16*T+4*s}:{35+16*T+4*s}], v[{16+4*s}:{19+4*s}], {c}")
    for T in range(2):
        a(f"v_cvt_pk_bf16_f32 v{80+2*T}, v{64+4*T}, v{65+4*T}")
        a(f"v_cvt_pk_bf16_f32 v{81+2*T}, v{66+4*T}, v{67+4*T}")
    for i in range(4): unpack(64 + 2*i, 65 + 2*i, 80 + i)
    for i in range(8): a(f"v_mul_f32 v{64+i}, s10, v{64+i}")
    for T in range(2):
        a(f"v_cvt_pk_bf16_f32 v{72+4*T}, v{64+4*T}, v{65+4*T}")
        a(f"v_cvt_pk_bf16_f32 v{73+4*T}, v{66+4*T}, v{67+4*T}")
    unpack(64, 65, 72); unpack(66, 67, 73); unpack(68, 69, 76); unpack(70, 71, 77)
    a("v_cndmask_b32 v72, v72, v76, s[64:65]")
    a("v_cndmask_b32 v73, v73, v77, s[64:65]")
    a(f"""
    v_max3_f32 v84, v64, v65, v66
    v_max3_f32 v85, v67, v68, v69
    v_max3_f32 v84, v84, v70, v71
    v_max_f32 v84, v84, v85
    """)
    xrow([84], "max", [88])
    for i in range(8): a(f"v_sub_f32 v{64+i}, v{64+i}, v84")
    for i in range(8): a(f"v_mul_f32 v{64+i}, s11, v{64+i}")
    for i in range(8): a(f"v_exp_f32 v{64+i}, v{64+i}")
    a(f"""
    v_add_f32 v85, v64, v65
    v_add_f32 v88, v66, v67
    v_add_f32 v89, v68, v69
    v_add_f32 v90, v70, v71
    v_add_f32 v85, v85, v88
    v_add_f32 v89, v89, v90
    v_add_f32 v85, v85, v89
    """)
    xrow([85], "add", [88])
    a(f"""
    v_cndmask_b32 v72, v72, v84, s[68:69]
    v_cndmask_b32 v73, v73, v85, s[68:69]
    s_mov_b32 exec_lo, 0x00ff0fff
    s_mov_b32 exec_hi, 0x00ff00ff
    s_mov_b32 s12, {MIRROR}
    buffer_store_dwordx4 v[72:75], v13, s[44:47], 0 offen
    """)
    stamp(3)
    if DEFER:
        a("s_mov_b64 exec, -1")
        for j in range(4): a(f"v_mov_b32 v{100+j}, v{72+j}")
        a(f"s_mov_b32 s97, {MIRROR}"); a("s_mov_b32 s96, 1")
    else:
        a(f"""
        buffer_store_dwordx4 v[72:75], v13, s[44:47], s12 offen sc1
        s_mov_b64 exec, -1
        s_mov_b32 s96, 0
        """)
    a(f"""
    s_lshl_b32 s10, s8, 15
    s_lshr_b32 s12, s7, 2
    s_lshl_b32 s12, s12, 14
    s_add_u32 s10, s10, s12
    s_lshl_b32 s12, s9, 11
    s_add_u32 s10, s10, s12
    s_add_u32 s66, s10, {SG}
    v_lshrrev_b32 v16, 2, v0
    v_lshlrev_b32 v17, 3, v7
    v_lshl_add_u32 v16, v16, 6, v17
    s_lshl_b32 s10, s9, 13
    s_add_u32 s10, s10, {V_L}
    v_add_u32 v17, s10, v16
    v_lshl_add_u32 v18, v7, 3, v2
    v_lshlrev_b32 v19, 7, v7
    v_lshl_add_u32 v19, v5, 4, v19
    s_lshl_b32 s10, s9, 9
    v_add3_u32 v19, v19, v2, s10
    s_lshl_b32 s64, s9, 3
    s_add_u32 s64, s64, s42
    s_add_u32 s64, s64, 72
    """)
    poll([(20, 14, "s66", 0), (24, 14, "s66", 1024)], dual=R0, trig=FL_STATS, nspin=NSP, esc=flushW)
    stamp(4)
    unpack(28, 29, 20); unpack(30, 31, 21); unpack(32, 33, 24); unpack(34, 35, 25)
    a(f"""
    v_max3_f32 v38, v28, v29, v30
    v_max3_f32 v39, v31, v32, v33
    v_max3_f32 v38, v38, v34, v35
    v_max_f32 v38, v38, v39
    """)
    for i in range(8): a(f"v_sub_f32 v{28+i}, v{28+i}, v38")
    for i in range(8): a(f"v_mul_f32 v{28+i}, s11, v{28+i}")
    for i in range(8): a(f"v_exp_f32 v{28+i}, v{28+i}")
    lds_wait(CNT_WT, 4)
    lds_wait(PROG, "s64")
    for c in range(4):
        for dt in range(2):
            r = 56 + 8*c + 4*dt
            a(f"ds_read_b64_tr_b16 v[{r}:{r+1}], v17 offset:{2048*c + 32*dt}")
            a(f"ds_read_b64_tr_b16 v[{r+2}:{r+3}], v17 offset:{2048*c + 32*dt + 1024}")
        if c == 2: a("s_waitcnt lgkmcnt(8)")
    lds_wait(FL_STATS, 1, slp=0, esc=flushW)
    stamp(5)
    a(f"""
    ds_read_b64 v[36:37], v18 offset:{ST}
    s_waitcnt lgkmcnt(0)
    v_sub_f32 v38, v38, v36
    v_mul_f32 v38, s11, v38
    v_exp_f32 v38, v38
    v_mul_f32 v38, v38, v37
    v_mov_b32 v39, v38
    """)
    for i in range(0, 8, 2): a(f"v_pk_mul_f32 v[{28+i}:{29+i}], v[{28+i}:{29+i}], v[38:39]")
    for i in range(4): a(f"v_cvt_pk_bf16_f32 v{40+i}, v{28+2*i}, v{29+2*i}")
    for c in range(4):
        if c:
            for i in range(4):
                a(f"v_mov_b32_dpp v{40+4*c+i}, v{40+i} row_shl:{4*c} row_mask:0xf bank_mask:0xf")
        for dt in range(2):
            r = 56 + 8*c + 4*dt
            cc = "0" if c == 0 else f"v[{88+4*dt}:{91+4*dt}]"
            a(f"v_mfma_f32_16x16x32_bf16 v[{88+4*dt}:{91+4*dt}], v[{r}:{r+3}], v[{40+4*c}:{43+4*c}], {cc}")
    a(f"""
    v_lshl_add_u32 v20, v0, 3, v2
    v_and_b32 v21, 1, v4
    v_lshlrev_b32 v21, 10, v21
    v_lshl_add_u32 v21, v5, 13, v21
    v_bfe_u32 v22, v4, 1, 2
    v_lshl_add_u32 v21, v22, 8, v21
    v_lshrrev_b32 v22, 3, v4
    v_lshl_add_u32 v21, v22, 6, v21
    s_lshl_b32 s10, s4, 15
    s_and_b32 s11, s7, 3
    s_lshl_b32 s11, s11, 11
    s_add_u32 s10, s10, s11
    s_lshr_b32 s11, s7, 2
    s_lshl_b32 s11, s11, 7
    s_add_u32 s10, s10, s11
    s_lshl_b32 s11, s6, 4
    s_add_u32 s10, s10, s11
    s_add_u32 s10, s10, {OG}
    s_add_u32 s11, s10, {MIRROR}
    s_mov_b32 exec_lo, {MASK4}
    s_mov_b32 exec_hi, {MASK4}
    ds_write_b128 v19, v[88:91] offset:{OS}
    ds_write_b128 v19, v[92:95] offset:{OS + 64}
    s_mov_b64 exec, -1
    """)
    lds_count(CNT_O)
    a(f"""
    s_cmp_lg_u32 s12, 7
    s_cbranch_scc1 L_W_onot
    """)
    def slot_sum(base):
        for w in range(8):
            a(f"ds_read_b64 v[{24+2*w}:{25+2*w}], v20 offset:{base + 512*w}")
        a("s_waitcnt lgkmcnt(0)")
        a("""
        v_pk_add_f32 v[24:25], v[24:25], v[26:27]
        v_pk_add_f32 v[28:29], v[28:29], v[30:31]
        v_pk_add_f32 v[32:33], v[32:33], v[34:35]
        v_pk_add_f32 v[36:37], v[36:37], v[38:39]
        v_mov_b32 v26, s60
        v_pk_add_f32 v[24:25], v[24:25], v[28:29]
        v_pk_add_f32 v[32:33], v[32:33], v[36:37]
        v_mov_b32 v27, s61
        v_pk_add_f32 v[24:25], v[24:25], v[32:33]
        """)
    slot_sum(OS)
    a(f"""
    buffer_store_dwordx4 v[24:27], v21, s[44:47], s10 offen
    """)
    lds_set(FL_OPUB, 1)
    a(f"""
    ds_read_b32 v3, v2 offset:{FL_MIR}
    s_waitcnt lgkmcnt(0)
    v_readfirstlane_b32 s12, v3
    s_cmp_eq_u32 s12, 1
    s_cbranch_scc1 L_W_onot
    buffer_store_dwordx4 v[24:27], v21, s[44:47], s11 offen sc1
    """)
    a("L_W_onot:")
    stamp(6)
    a("s_cmp_lt_u32 s5, 16")
    a("s_cbranch_scc1 L_W_qwg")
    a(f"""
    s_lshl_b32 s10, s4, 15
    s_lshl_b32 s11, s9, 12
    s_add_u32 s10, s10, s11
    s_add_u32 s66, s10, {OG}
    s_lshl_b32 s10, s9, 12
    v_add_u32 v17, s10, v16
    v_lshlrev_b32 v22, 4, v4
    v_lshl_add_u32 v22, v5, 15, v22
    s_lshl_b32 s10, s4, 12
    s_sub_u32 s11, s5, 16
    s_lshl_b32 s11, s11, 8
    s_add_u32 s10, s10, s11
    s_add_u32 s65, s10, {AG}
    """)
    lds_wait(PROG, 160)
    for e in range(2):
        for ct in range(2):
            r = 56 + 8*e + 4*ct
            a(f"ds_read_b64_tr_b16 v[{r}:{r+1}], v17 offset:{WO_L + 2048*e + 32*ct}")
            a(f"ds_read_b64_tr_b16 v[{r+2}:{r+3}], v17 offset:{WO_L + 2048*e + 32*ct + 1024}")
    lds_wait(FL_OPUB, 1, esc=flushW)
    poll([(24, 14, "s66", 0), (28, 14, "s66", 1024), (32, 14, "s66", 2048), (36, 14, "s66", 3072)], sleep=SA, dual=R0, esc=flushW)
    stamp(7)
    for r in (24, 25, 28, 29, 32, 33, 36, 37):
        a(f"v_add_f32_dpp v{r}, v{r}, v{r} row_ror:8 row_mask:0xf bank_mask:0xf")
    a(f"""
    v_cvt_pk_bf16_f32 v40, v24, v25
    v_cvt_pk_bf16_f32 v41, v28, v29
    v_cvt_pk_bf16_f32 v44, v32, v33
    v_cvt_pk_bf16_f32 v45, v36, v37
    v_mov_b32_dpp v42, v40 row_shl:4 row_mask:0xf bank_mask:0xf
    v_mov_b32_dpp v43, v41 row_shl:4 row_mask:0xf bank_mask:0xf
    v_mov_b32_dpp v46, v44 row_shl:4 row_mask:0xf bank_mask:0xf
    v_mov_b32_dpp v47, v45 row_shl:4 row_mask:0xf bank_mask:0xf
    """)
    for e in range(2):
        for ct in range(2):
            r = 56 + 8*e + 4*ct
            cc = "0" if e == 0 else f"v[{88+4*ct}:{91+4*ct}]"
            a(f"v_mfma_f32_16x16x32_bf16 v[{88+4*ct}:{91+4*ct}], v[{r}:{r+3}], v[{40+4*e}:{43+4*e}], {cc}")
    a(f"""
    s_mov_b32 exec_lo, {MASK4}
    s_mov_b32 exec_hi, {MASK4}
    ds_write_b128 v19, v[88:91] offset:{AS}
    ds_write_b128 v19, v[92:95] offset:{AS + 64}
    s_mov_b64 exec, -1
    """)
    lds_count(CNT_A)
    a(f"""
    s_cmp_lg_u32 s12, 7
    s_cbranch_scc1 L_W_done
    """)
    slot_sum(AS)
    a(f"""
    buffer_store_dwordx4 v[24:27], v22, s[44:47], s65 offen sc1
    s_branch L_W_done
    L_W_qwg:
    s_cmp_lg_u32 s4, 0
    s_cbranch_scc1 L_W_done
    s_cmp_ge_u32 s5, 4
    s_cbranch_scc1 L_W_done
    v_and_b32 v21, 31, v0
    v_lshlrev_b32 v22, 4, v21
    v_lshrrev_b32 v23, 5, v0
    v_lshl_add_u32 v22, v23, 14, v22
    s_lshl_b32 s10, s5, 15
    s_lshl_b32 s11, s9, 9
    s_add_u32 s10, s10, s11
    s_add_u32 s66, s10, {AG}
    s_add_u32 s67, s66, 4096
    s_add_u32 s68, s66, 8192
    s_add_u32 s69, s66, 12288
    s_lshl_b32 s10, s9, 8
    v_lshl_add_u32 v21, v21, 3, v2
    v_add_u32 v21, s10, v21
    v_lshlrev_b32 v44, 16, v96
    v_and_b32 v45, 0xffff0000, v96
    """)
    lds_wait(FL_OPUB, 1, esc=flushW)
    poll([(24 + 4*i, 22, f"s{66+i}", 0) for i in range(4)], sleep=SB, esc=flushW)
    stamp(8)
    a(f"""
    v_pk_add_f32 v[24:25], v[24:25], v[28:29]
    v_pk_add_f32 v[32:33], v[32:33], v[36:37]
    v_pk_add_f32 v[24:25], v[24:25], v[32:33]
    v_mov_b32 v26, v24
    v_mov_b32 v27, v25
    v_permlane32_swap_b32 v24, v26
    v_permlane32_swap_b32 v25, v27
    v_pk_add_f32 v[24:25], v[24:25], v[26:27]
    v_cvt_pk_bf16_f32 v26, v24, v25
    v_lshlrev_b32 v24, 16, v26
    v_and_b32 v25, 0xffff0000, v26
    v_pk_add_f32 v[24:25], v[24:25], v[44:45]
    v_cvt_pk_bf16_f32 v26, v24, v25
    v_lshlrev_b32 v24, 16, v26
    v_and_b32 v25, 0xffff0000, v26
    ds_write_b64 v21, v[24:25] offset:{ROW}
    v_mov_b32 v3, 1
    s_mov_b64 exec, 1
    ds_add_u32 v2, v3 offset:{CNT_ROW}
    s_mov_b64 exec, -1
    L_W_done:
    """)
    stamp(9)
    flushW()
    dump_stamps()
    a("L_end:")
    a("s_endpgm")
    a("L_code_end:")
    txt = a.text().split("\n")
    out = []
    for l in txt:
        if "M0" in XF and "buffer_store_dwordx4" in l and l.rstrip().endswith("sc1") and ("s11 offen" in l or "s12 offen" in l):
            continue
        if "SN" in XF and ("buffer_load" in l or "global_load" in l) and " nt" not in l and "sc1" not in l:
            l = l.replace(" lds", " nt lds") if l.rstrip().endswith("lds") else l.rstrip() + " nt"
        if "PN" in XF and "buffer_load" in l and l.rstrip().endswith("sc1") and "DUAL" in l:
            l = l.rstrip() + " nt"
        out.append(l)
    return wrap("\n".join(out), 256, 896, LDS_TOTAL, 128, denorm=True)

if __name__ == "__main__":
    import argparse
    ap = argparse.ArgumentParser()
    ap.add_argument("-o", default="t/k7.s"); ap.add_argument("--dbg", action="store_true"); ap.add_argument("--dbg2", action="store_true")
    ap.add_argument("--abl", action="store_true"); ap.add_argument("--x", default=""); ap.add_argument("--pol", default="nt"); ap.add_argument("--nopf", action="store_true")
    for n, d in (("dq", 20), ("dw", 16), ("dwq", 32), ("dk0", 8), ("nk0", 16), ("sq", 2), ("ss", 2), ("sa", 1), ("sb", 1), ("e0", 114), ("priol", 0), ("r0", 24), ("wqd", -1), ("nsp", 6), ("dqv", 0), ("dwv", 0), ("dwo", 0), ("qdelay", 0), ("defer", 1), ("td", 0)):
        ap.add_argument("--" + n, type=int, default=d)
    g = ap.parse_args()
    open(g.o, "w").write(gen(dbg=g.dbg, dbg2=g.dbg2, pol=g.pol, prefetch=not g.nopf, DQ=g.dq, DW=g.dw, DWQ=g.dwq, DK0=g.dk0, NK0=g.nk0,
                             SQ=g.sq, SS=g.ss, SA=g.sa, SB=g.sb, e0=g.e0, prioL=g.priol, R0=g.r0, WQD=g.wqd, NSP=g.nsp, DQV=g.dqv, DWV=g.dwv, DWO=g.dwo, abl=g.abl, XF=g.x, QDELAY=g.qdelay, DEFER=g.defer, TD=g.td))
```

```python
import sys, struct
from asmgen import *

def f32bits(x): return struct.unpack("<I", struct.pack("<f", x))[0]

K_L = 0; V_L = 65536; WQ_L = 98304; WO_L = 0
MISC = 131072
XN = 0; QI = 4096; FL = 5120; ST = 5376; OS = 6144; AS = 10240; ROW = 14336; TAB = 16384; WT = 6144
LDS_TOTAL = MISC + 24576
FL_QPROJ = FL + 0; FL_QREADY = FL + 4; PROG = FL + 8; FL_STATS = FL + 20; CNT_QK = FL + 24; CNT_O = FL + 28
CNT_A = FL + 32; CNT_ROW = FL + 36; FL_OPUB = FL + 48; FL_WT = FL + 52; CNT_WT = FL + 56; FL_MIR = FL + 60
XT = 0x8000
QG = 0xB0000; STG = 0x20000; OG = 0x40000; AG = 0x80000; TG = 0xA0000; SG = 0x100000; DBGA = 0x600000
WS_BYTES = 0x800000; MIRROR = 0x200000
TAB_E0 = 114
LOG2E = 1.4426950408889634
SCALE = 128 ** -0.5
GC0 = -2.0 * 0.7978845608028654 * LOG2E
GC1 = GC0 * 0.044715
MASK4 = "0x000f000f"

def gelu_pairs(a, items, acc, st, sc1, vc0, vone):
    for (w, b, w2, t) in items: a(f"v_pk_mul_f32 v[{t}:{t+1}], v[{w}:{w+1}], {st}")
    for (w, b, w2, t) in items: a(f"v_cvt_pk_bf16_f32 v{t+2}, v{t}, v{t+1}")
    for (w, b, w2, t) in items:
        a(f"v_lshlrev_b32 v{t}, 16, v{t+2}"); a(f"v_and_b32 v{t+1}, 0xffff0000, v{t+2}")
    for (w, b, w2, t) in items: a(f"v_pk_add_f32 v[{t}:{t+1}], v[{t}:{t+1}], v[{b}:{b+1}]")
    for (w, b, w2, t) in items: a(f"v_cvt_pk_bf16_f32 v{t+2}, v{t}, v{t+1}")
    for (w, b, w2, t) in items:
        a(f"v_lshlrev_b32 v{t}, 16, v{t+2}"); a(f"v_and_b32 v{t+1}, 0xffff0000, v{t+2}")
    for (w, b, w2, t) in items: a(f"v_pk_mul_f32 v[{t+2}:{t+3}], v[{t}:{t+1}], v[{t}:{t+1}]")
    for (w, b, w2, t) in items: a(f"v_pk_fma_f32 v[{t+2}:{t+3}], v[{t+2}:{t+3}], {sc1}, v[{vc0}:{vc0+1}]")
    for (w, b, w2, t) in items: a(f"v_pk_mul_f32 v[{t+2}:{t+3}], v[{t+2}:{t+3}], v[{t}:{t+1}]")
    for (w, b, w2, t) in items:
        a(f"v_exp_f32 v{t+2}, v{t+2}"); a(f"v_exp_f32 v{t+3}, v{t+3}")
    for (w, b, w2, t) in items: a(f"v_pk_add_f32 v[{t+2}:{t+3}], v[{t+2}:{t+3}], v[{vone}:{vone+1}]")
    for (w, b, w2, t) in items:
        a(f"v_rcp_f32 v{t+2}, v{t+2}"); a(f"v_rcp_f32 v{t+3}, v{t+3}")
    for (w, b, w2, t) in items: a(f"v_pk_mul_f32 v[{t+2}:{t+3}], v[{t+2}:{t+3}], v[{t}:{t+1}]")
    for (w, b, w2, t) in items: a(f"v_cvt_pk_bf16_f32 v{t+4}, v{t+2}, v{t+3}")
    for (w, b, w2, t) in items: a(f"v_dot2_f32_bf16 v{acc}, v{t+4}, v{w2}, v{acc}")

def gen(dbg=False, pol="nt", prefetch=True, DQ=20, DW=16, DWQ=32, DK0=8, NK0=16, SQ=2, SS=2, SA=1, SB=1, dbg2=False, e0=114, prioL=0, R0=24, WQD=-1, NSP=6, DQV=0, DWV=0, DWO=0, abl=False, XF="", QDELAY=0, DEFER=1, R1=8, R1L=256, TD=0):
    DQV = DQV or DQ; DWV = DWV or DW; DWO = DWO or DW
    a = A()
    POL = " " + pol if pol else ""
    nstamp = [0]
    def stamp(i=None):
        if dbg:
            if i is None:
                i = nstamp[0]; nstamp[0] += 1
            a(f"s_memrealtime s[{70+2*i}:{71+2*i}]")
            a("s_waitcnt lgkmcnt(0)")
    def dump_stamps():
        if dbg:
            a("s_mov_b64 exec, -1")
            a("s_waitcnt vmcnt(0) lgkmcnt(0)")
            for i in range(12):
                a(f"v_mov_b32 v{100+i}, s{70+2*i}")
            a(f"""
            s_mul_i32 s10, s2, 14
            s_add_u32 s10, s10, s3
            s_mul_i32 s10, s10, 64
            s_add_u32 s10, s10, {DBGA}
            v_mov_b32 v99, s10
            s_mov_b64 exec, 1
            buffer_store_dwordx4 v[100:103], v99, s[44:47], 0 offen
            buffer_store_dwordx4 v[104:107], v99, s[44:47], 0 offen offset:16
            buffer_store_dwordx4 v[108:111], v99, s[44:47], 0 offen offset:32
            """)
        nstamp[0] = 0
    def srd(d, ptr, nbytes):
        a(f"""
        s_mov_b32 s{d}, s{ptr}
        s_and_b32 s{d+1}, s{ptr+1}, 0xffff
        s_mov_b32 s{d+2}, {nbytes}
        s_mov_b32 s{d+3}, 0x20000
        """)
    def lds_wait(off, val, vt=3, slp=1, esc=None):
        L = a.label("Lw"); D = a.label("Lwd")
        a(f"""
        s_mov_b32 s13, 0x40000
        {L}:
        ds_read_b32 v{vt}, v2 offset:{off}
        s_waitcnt lgkmcnt(0)
        v_readfirstlane_b32 s12, v{vt}
        s_cmp_ge_u32 s12, {val}
        s_cbranch_scc1 {D}
        s_sub_u32 s13, s13, 1
        s_cbranch_scc1 {D}
        """)
        if esc:
            E = a.label("Le")
            a(f"s_cmp_eq_u32 s13, {0x40000 - R1L}")
            a(f"s_cbranch_scc0 {E}")
            esc()
            a(f"{E}:")
        if slp: a(f"s_sleep {slp}")
        a(f"""
        s_branch {L}
        {D}:
        """)
    def lds_set(off, val, vt=3):
        a(f"""
        v_mov_b32 v{vt}, {val}
        s_mov_b64 exec, 1
        ds_write_b32 v2, v{vt} offset:{off}
        s_mov_b64 exec, -1
        """)
    def lds_count(off, vt=3):
        a(f"""
        v_mov_b32 v{vt}, 1
        s_mov_b64 exec, 1
        ds_add_rtn_u32 v{vt}, v2, v{vt} offset:{off}
        s_mov_b64 exec, -1
        s_waitcnt lgkmcnt(0)
        v_readfirstlane_b32 s12, v{vt}
        """)
    def dual_sel(R0):
        a(f"""
        s_and_b32 s12, s13, 1
        s_cmp_lt_u32 s13, {0x3fff - R0}
        s_cselect_b32 s12, s12, 0
        s_mul_i32 s12, s12, {MIRROR}
        s_add_u32 s67, s12, s66
        """)
    def poll(loads, sleep=2, dual=None, trig=None, nspin=6, esc=None):
        a("s_mov_b32 s13, 0x3fff")
        L = a.label("Lp"); D = a.label("Lpd"); S = a.label("Lps")
        a(f"{L}:")
        if dual: dual_sel(dual)
        for (d, va, so, imm) in loads:
            a(f"buffer_load_dwordx4 v[{d}:{d+3}], v{va}, s[44:47], {'s67' if dual else so} offen offset:{imm}{' nt' if (dual and 'PN' in XF) else ''} sc1")
        a("s_waitcnt vmcnt(0)")
        for i, (d, va, so, imm) in enumerate(loads):
            if i == 0:
                a(f"v_cmp_ne_u64 s[14:15], s[60:61], v[{d+2}:{d+3}]")
            else:
                a(f"v_cmp_ne_u64 vcc, s[60:61], v[{d+2}:{d+3}]")
                a("s_or_b64 s[14:15], s[14:15], vcc")
        a(f"""
        s_cmp_eq_u64 s[14:15], 0
        s_cbranch_scc1 {D}
        s_sub_u32 s13, s13, 1
        s_cbranch_scc1 {D}
        """)
        if esc:
            E = a.label("Le")
            a(f"s_cmp_eq_u32 s13, {0x3fff - R1}")
            a(f"s_cbranch_scc0 {E}")
            esc()
            a(f"{E}:")
        if trig is None:
            a(f"s_sleep {sleep}")
            a(f"s_branch {L}")
        else:
            a(f"""
            s_mov_b32 s14, {nspin}
            {S}:
            s_sleep 1
            ds_read_b32 v3, v2 offset:{trig}
            s_waitcnt lgkmcnt(0)
            v_readfirstlane_b32 s12, v3
            s_cmp_lg_u32 s12, 0
            s_cbranch_scc1 {L}
            s_sub_u32 s14, s14, 1
            s_cbranch_scc0 {S}
            s_branch {L}
            """)
        a(f"{D}:")
    def pub_xcc():
        a(f"""
        s_getreg_b32 s95, hwreg(HW_REG_XCC_ID)
        s_and_b32 s95, s95, 0xf
        s_lshl_b32 s12, s4, 9
        s_lshl_b32 s13, s5, 4
        s_add_u32 s12, s12, s13
        s_add_u32 s12, s12, {XT}
        v_mov_b32 v108, s95
        v_mov_b32 v109, 0
        v_mov_b32 v110, s60
        v_mov_b32 v111, s61
        s_mov_b64 exec, 1
        buffer_store_dwordx4 v[108:111], v109, s[44:47], s12 offen sc1
        s_mov_b64 exec, -1
        """)
    def chk_xcc():
        S = a.label("Lx")
        a(f"""
        s_lshl_b32 s12, s4, 9
        s_add_u32 s12, s12, {XT}
        s_mov_b32 exec_hi, 0
        buffer_load_dwordx4 v[108:111], v4, s[44:47], s12 offen sc1
        s_waitcnt vmcnt(0)
        v_cmp_ne_u64 s[14:15], s[60:61], v[110:111]
        v_cmp_ne_u32 vcc, s95, v108
        s_mov_b64 exec, -1
        s_or_b64 s[14:15], s[14:15], vcc
        s_cmp_eq_u64 s[14:15], 0
        s_cbranch_scc0 {S}
        s_mov_b32 s96, 0
        """)
        lds_set(FL_MIR, 1)
        a(f"{S}:")
    def flushQ():
        S = a.label("Lf")
        a(f"""
        s_cmp_eq_u32 s96, 0
        s_cbranch_scc1 {S}
        buffer_store_dwordx4 v[100:103], v98, s[44:47], s97 offen sc1
        buffer_store_dwordx4 v[104:107], v98, s[44:47], s97 offen offset:2048 sc1
        s_mov_b32 s96, 0
        {S}:
        """)
    def flushW():
        S = a.label("Lf")
        a(f"""
        s_cmp_eq_u32 s96, 0
        s_cbranch_scc1 {S}
        ds_read_b32 v3, v2 offset:{FL_MIR}
        s_waitcnt lgkmcnt(0)
        v_readfirstlane_b32 s12, v3
        s_cmp_eq_u32 s12, 1
        s_cbranch_scc1 {S}
        s_mov_b32 exec_lo, 0x00ff0fff
        s_mov_b32 exec_hi, 0x00ff00ff
        buffer_store_dwordx4 v[100:103], v13, s[44:47], s97 offen sc1
        s_mov_b64 exec, -1
        s_mov_b32 s96, 0
        {S}:
        """)
    def xrow(regs, op, tmps):
        for sw in ("v_permlane16_swap_b32", "v_permlane32_swap_b32"):
            for r, t in zip(regs, tmps): a(f"v_mov_b32 v{t}, v{r}")
            for r, t in zip(regs, tmps): a(f"{sw} v{r}, v{t}")
            for r, t in zip(regs, tmps): a(f"v_{op}_f32 v{r}, v{r}, v{t}")
    def allreduce(regs, op, tmps):
        for m in ("quad_perm:[1,0,3,2]", "quad_perm:[2,3,0,1]", "row_half_mirror", "row_mirror"):
            for r in regs:
                a(f"v_{op}_f32_dpp v{r}, v{r}, v{r} {m} row_mask:0xf bank_mask:0xf")
        xrow(regs, op, tmps)
    def rbf(dst, src):
        a(f"v_cvt_pk_bf16_f32 v{dst}, v{src}, v{src}")
        a(f"v_lshlrev_b32 v{dst}, 16, v{dst}")
    def unpack(dlo, dhi, src):
        a(f"v_lshlrev_b32 v{dlo}, 16, v{src}")
        a(f"v_and_b32 v{dhi}, 0xffff0000, v{src}")
    def layernorm4(rows, tmpb):
        n = len(rows)
        S = [tmpb + i for i in range(n)]; T = [tmpb + n + i for i in range(n)]; Mb = [tmpb + 2*n + i for i in range(n)]
        D = [tmpb + 3*n + 8*i for i in range(n)]
        for x, s, t in zip(rows, S, T):
            a(f"v_add_f32 v{s}, v{x}, v{x+1}"); a(f"v_add_f32 v{t}, v{x+2}, v{x+3}")
        for x, s, t in zip(rows, S, T):
            a(f"v_add_f32 v{s}, v{s}, v{x+4}"); a(f"v_add_f32 v{t}, v{t}, v{x+5}")
        for x, s, t in zip(rows, S, T):
            a(f"v_add_f32 v{s}, v{s}, v{x+6}"); a(f"v_add_f32 v{t}, v{t}, v{x+7}")
        for s, t in zip(S, T): a(f"v_add_f32 v{s}, v{s}, v{t}")
        allreduce(S, "add", T)
        for s in S: a(f"v_mul_f32 v{s}, {f32bits(1/512):#x}, v{s}")
        for x, s, d in zip(rows, S, D):
            for i in range(8): a(f"v_sub_f32 v{d+i}, v{x+i}, v{s}")
        for s, m in zip(S, Mb): rbf(m, s)
        for s, t, d in zip(S, T, D):
            a(f"v_mul_f32 v{s}, v{d}, v{d}"); a(f"v_mul_f32 v{t}, v{d+1}, v{d+1}")
        for i in range(2, 8, 2):
            for s, t, d in zip(S, T, D):
                a(f"v_fmac_f32 v{s}, v{d+i}, v{d+i}"); a(f"v_fmac_f32 v{t}, v{d+i+1}, v{d+i+1}")
        for s, t in zip(S, T): a(f"v_add_f32 v{s}, v{s}, v{t}")
        allreduce(S, "add", T)
        for s in S: a(f"v_mul_f32 v{s}, {f32bits(1/512):#x}, v{s}")
        for s in S: rbf(s, s)
        for s in S: a(f"v_add_f32 v{s}, {f32bits(1e-5):#x}, v{s}")
        for s in S: rbf(s, s)
        for s in S: a(f"v_sqrt_f32 v{s}, v{s}")
        for s in S: rbf(s, s)
        for s in S: a(f"v_rcp_f32 v{s}, v{s}")
        for x, m, d in zip(rows, Mb, D):
            for i in range(8): a(f"v_sub_f32 v{d+i}, v{x+i}, v{m}")
        for x, d in zip(rows, D):
            for i in range(0, 8, 2): a(f"v_cvt_pk_bf16_f32 v{x+i}, v{d+i}, v{d+i+1}")
        for x, d in zip(rows, D):
            for i in range(0, 8, 2): unpack(d+i, d+i+1, x+i)
        for s, d in zip(S, D):
            for i in range(8): a(f"v_mul_f32 v{d+i}, v{d+i}, v{s}")
        return D
    def layernorm1(x, t, outp, shift):
        d = t; s1 = t + 8; s2 = t + 10; u = t + 12
        if shift:
            for i in range(0, 8, 2):
                a(f"v_pk_add_f32 v[{d+i}:{d+i+1}], v[{x+i}:{x+i+1}], {shift} neg_lo:[0,1] neg_hi:[0,1]")
            src = d
        else: src = x
        a(f"""
        v_pk_add_f32 v[{s1}:{s1+1}], v[{src}:{src+1}], v[{src+2}:{src+3}]
        v_pk_mul_f32 v[{s2}:{s2+1}], v[{src}:{src+1}], v[{src}:{src+1}]
        v_pk_add_f32 v[{u}:{u+1}], v[{src+4}:{src+5}], v[{src+6}:{src+7}]
        v_pk_fma_f32 v[{s2}:{s2+1}], v[{src+2}:{src+3}], v[{src+2}:{src+3}], v[{s2}:{s2+1}]
        v_pk_add_f32 v[{s1}:{s1+1}], v[{s1}:{s1+1}], v[{u}:{u+1}]
        v_pk_fma_f32 v[{s2}:{s2+1}], v[{src+4}:{src+5}], v[{src+4}:{src+5}], v[{s2}:{s2+1}]
        v_add_f32 v{s1}, v{s1}, v{s1+1}
        v_pk_fma_f32 v[{s2}:{s2+1}], v[{src+6}:{src+7}], v[{src+6}:{src+7}], v[{s2}:{s2+1}]
        v_add_f32 v{s2}, v{s2}, v{s2+1}
        """)
        allreduce([s1, s2], "add", [u, u + 1])
        a(f"""
        v_mul_f32 v{s1}, {f32bits(1/512):#x}, v{s1}
        v_mul_f32 v{s2}, {f32bits(1/512):#x}, v{s2}
        v_fma_f32 v{s2}, -v{s1}, v{s1}, v{s2}
        v_max_f32 v{s2}, 0, v{s2}
        """)
        if shift: a(f"v_add_f32 v{s1}, {shift.replace('[','').split(':')[0]}, v{s1}")
        a(f"""
        v_cvt_pk_bf16_f32 v{u}, v{s1}, v{s2}
        v_and_b32 v{s2}, 0xffff0000, v{u}
        v_lshlrev_b32 v{s1}, 16, v{u}
        v_add_f32 v{s2}, {f32bits(1e-5):#x}, v{s2}
        v_mov_b32 v{s1+1}, v{s1}
        v_cvt_pk_bf16_f32 v{s2}, v{s2}, v{s2}
        """)
        for i in range(0, 4, 2):
            a(f"v_pk_add_f32 v[{d+i}:{d+i+1}], v[{x+i}:{x+i+1}], v[{s1}:{s1+1}] neg_lo:[0,1] neg_hi:[0,1]")
        a(f"v_lshlrev_b32 v{s2}, 16, v{s2}")
        for i in range(4, 8, 2):
            a(f"v_pk_add_f32 v[{d+i}:{d+i+1}], v[{x+i}:{x+i+1}], v[{s1}:{s1+1}] neg_lo:[0,1] neg_hi:[0,1]")
        a(f"v_sqrt_f32 v{s2}, v{s2}")
        for i in range(2): a(f"v_cvt_pk_bf16_f32 v{outp+i}, v{d+2*i}, v{d+2*i+1}")
        a(f"v_cvt_pk_bf16_f32 v{s2}, v{s2}, v{s2}")
        for i in range(2, 4): a(f"v_cvt_pk_bf16_f32 v{outp+i}, v{d+2*i}, v{d+2*i+1}")
        a(f"v_lshlrev_b32 v{s2}, 16, v{s2}")
        for i in range(2): unpack(d + 2*i, d + 2*i + 1, outp + i)
        a(f"v_rcp_f32 v{s2}, v{s2}")
        for i in range(2, 4): unpack(d + 2*i, d + 2*i + 1, outp + i)
        a(f"v_mov_b32 v{s2+1}, v{s2}")
        for i in range(0, 8, 2):
            a(f"v_pk_mul_f32 v[{d+i}:{d+i+1}], v[{d+i}:{d+i+1}], v[{s2}:{s2+1}]")
        for i in range(4): a(f"v_cvt_pk_bf16_f32 v{outp+i}, v{d+2*i}, v{d+2*i+1}")
    def get_tag():
        a("""
        s_waitcnt lgkmcnt(0)
        s_add_u32 s60, s62, 0x7f4a7c15
        s_addc_u32 s61, s63, 0x9e3779b9
        """)

    a(f"""
    s_cmp_ge_u32 s2, 256
    s_cbranch_scc1 L_end
    s_load_dwordx16 s[16:31], s[0:1], 0
    s_load_dwordx8 s[32:39], s[0:1], 64
    s_load_dwordx2 s[40:41], s[0:1], 96
    v_lshrrev_b32 v1, 6, v0
    v_and_b32 v0, 63, v0
    v_readfirstlane_b32 s3, v1
    v_mov_b32 v2, {MISC}
    v_lshl_add_u32 v3, v0, 2, v2
    v_mov_b32 v4, 0
    ds_write_b32 v3, v4 offset:{FL}
    s_and_b32 s4, s2, 7
    s_lshr_b32 s5, s2, 3
    s_and_b32 s6, s5, 3
    s_lshr_b32 s7, s5, 2
    s_lshl_b32 s8, s6, 3
    s_add_u32 s8, s8, s4
    s_cmp_lt_u32 s5, 16
    s_cselect_b32 s42, 32, 0
    s_waitcnt lgkmcnt(0)
    s_barrier
    s_load_dwordx2 s[62:63], s[40:41], 0
    """)
    srd(44, 40, WS_BYTES)
    a("""
    s_cmp_eq_u32 s3, 0
    s_cbranch_scc1 L_roleL
    """)
    if abl: a("s_endpgm")
    a("""
    v_lshlrev_b32 v4, 4, v0
    s_cmp_eq_u32 s3, 1
    s_cbranch_scc1 L_earlyQ
    s_cmp_eq_u32 s3, 10
    s_cbranch_scc1 L_earlyT
    s_cmp_ge_u32 s3, 10
    s_cbranch_scc1 L_roleT
    s_branch L_roleW
    L_earlyQ:
    """)
    srd(48, 16, 4096)
    for b in range(4):
        a(f"buffer_load_dwordx4 v[{8+4*b}:{11+4*b}], v4, s[48:51], 0 offen offset:{1024*b}")
    a("s_branch L_roleQ")
    a("L_earlyT:")
    for k, (sr, ptr) in enumerate(((48, 28), (52, 30), (56, 32))):
        srd(sr, ptr, 3584)
        a(f"s_mov_b32 m0, {MISC + WT + 4096*k}")
        for i in range(4):
            a(f"buffer_load_dwordx4 v4, s[{sr}:{sr+3}], 0 offen offset:{1024*i} lds")
    a("s_waitcnt vmcnt(0)")
    lds_set(FL_WT, 1)
    a("s_branch L_roleT")

    a("L_roleL:")
    if prioL: a(f"s_setprio {prioL}")
    stamp(0)
    a(f"""
    v_lshrrev_b32 v4, 2, v0
    v_and_b32 v5, 3, v0
    v_lshlrev_b32 v5, 4, v5
    s_mov_b32 s43, 0
    s_mov_b32 s14, 0
    s_cmp_ge_u32 s5, 16
    s_cbranch_scc1 L_L_setup2
    """)
    srd(64, 22, 0x400000)
    a(f"""
    v_lshrrev_b32 v6, 3, v0
    v_and_b32 v7, 7, v0
    v_lshlrev_b32 v7, 4, v7
    v_lshl_add_u32 v32, v6, 13, v7
    s_lshl_b32 s94, s4, 10
    s_and_b32 s10, s5, 7
    s_lshl_b32 s10, s10, 7
    s_add_u32 s94, s94, s10
    s_lshr_b32 s10, s5, 3
    s_lshl_b32 s10, s10, 21
    s_add_u32 s94, s94, s10
    s_mov_b32 s95, {WQ_L}
    v_add_u32 v33, {65536-1024}, v32
    v_add_u32 v34, {2*(65536-1024)}, v32
    v_add_u32 v35, {3*(65536-1024)}, v32
    L_L_wq:
    s_mov_b32 m0, s95
    s_add_u32 s43, s43, 4
    """)
    for n in range(4):
        a(f"buffer_load_dwordx4 v{32+n}, s[64:67], s94 offen offset:{n*1024}{POL} lds")
    a(f"""
    s_add_u32 s94, s94, {4*65536}
    s_add_u32 s95, s95, 4096
    s_cmp_lt_u32 s43, 32
    s_cbranch_scc1 L_L_wq
    L_L_setup2:
    """)
    srd(48, 18, 0x4000000)
    a(f"""
    v_lshrrev_b32 v8, 4, v0
    v_and_b32 v9, 15, v0
    """)
    for n in range(4):
        a(f"""
        v_add_u32 v6, {4*n}, v8
        v_xor_b32 v7, v6, v9
        v_lshlrev_b32 v7, 4, v7
        v_lshl_add_u32 v{20+n}, v8, 8, v7
        """)
    a(f"""
    s_lshl_b32 s9, s8, 21
    s_add_u32 s9, s9, {6144*256}
    s_lshl_b32 s10, s7, 16
    s_add_u32 s96, s9, s10
    s_cmp_lt_u32 s5, 16
    s_cbranch_scc1 L_L_setup3
    s_mov_b32 s94, s96
    s_mov_b32 s95, {K_L}
    L_L_k0:
    s_mov_b32 m0, s95
    s_add_u32 s43, s43, 4
    """)
    for n in range(4):
        a(f"buffer_load_dwordx4 v{20+n}, s[48:51], s94 offen offset:{n*1024}{POL} lds")
    a(f"""
    s_add_u32 s94, s94, 4096
    s_add_u32 s95, s95, 4096
    s_cmp_lt_u32 s43, {DK0}
    s_cbranch_scc1 L_L_k0
    L_L_setup3:
    """)
    srd(52, 20, 0x4000000); srd(56, 24, 0x400000)
    a(f"""
    v_lshl_add_u32 v24, v4, 8, v5
    v_lshl_add_u32 v28, v4, 10, v5
    """)
    for n in range(1, 4):
        a(f"v_add_u32 v{24+n}, {n*(4096-1024)}, v24")
        a(f"v_add_u32 v{28+n}, {n*(16384-1024)}, v28")
    a(f"""
    s_lshr_b32 s10, s7, 2
    s_lshl_b32 s10, s10, 18
    s_add_u32 s97, s9, s10
    s_and_b32 s10, s7, 3
    s_lshl_b32 s10, s10, 6
    s_add_u32 s97, s97, s10
    s_lshl_b32 s98, s4, 19
    s_sub_u32 s10, s5, 16
    s_lshl_b32 s10, s10, 6
    s_add_u32 s98, s98, s10
    """)
    if "PT" in XF:
        a(f"""
        v_mov_b32 v40, 0
        s_lshl_b32 s10, s4, 19
        s_mov_b64 exec, 1
        buffer_load_dword v41, v40, s[52:55], s97 offen{POL}
        buffer_load_dword v42, v40, s[56:59], s10 offen{POL}
        buffer_load_dword v43, v40, s[48:51], s96 offen{POL}
        s_mov_b64 exec, -1
        """)
    a(f"""
    s_cmp_ge_u32 s5, 16
    s_cbranch_scc1 L_L_wo
    """)
    def seg(ngroups, vbase, srdr, soff, ldsbase, gstep, D, first_free=0):
        L = a.label("Ls")
        if soff is not None: a(f"s_mov_b32 s94, {soff}")
        if ldsbase is not None: a(f"s_mov_b32 s95, {ldsbase}")
        a(f"s_mov_b32 s11, {ngroups}")
        a(f"""
        {L}:
        s_mov_b32 m0, s95
        s_sub_i32 s10, s43, {D-4}
        s_max_i32 s14, s10, s14
        v_mov_b32 v3, s14
        s_mov_b64 exec, 1
        s_waitcnt vmcnt({D-4})
        ds_write_b32 v2, v3 offset:{PROG}
        s_mov_b64 exec, -1
        """)
        for n in range(4):
            a(f"buffer_load_dwordx4 v{vbase+n}, s[{srdr}:{srdr+3}], s94 offen offset:{n*1024}{POL} lds")
        a(f"""
        s_add_u32 s94, s94, {gstep}
        s_add_u32 s95, s95, 4096
        s_add_u32 s43, s43, 4
        s_sub_u32 s11, s11, 1
        s_cmp_lg_u32 s11, 0
        s_cbranch_scc1 {L}
        """)
    def drain(D, total, stampat={}):
        for k in range(D - 4, -1, -4):
            a(f"s_waitcnt vmcnt({k})")
            lds_set(PROG, total - k)
            if total - k in stampat: stamp(stampat[total - k])
    if WQD >= 0:
        for k in range(24, WQD - 1, -8):
            a(f"s_waitcnt vmcnt({k})")
            lds_set(PROG, 32 - k)
        a(f"s_mov_b32 s14, {32 - WQD}")
    seg(16, 20, 48, "s96", K_L, 4096, DQ)
    seg(8, 24, 52, "s97", V_L, 16384, DQV)
    stamp(1)
    if not abl: lds_wait(FL_QPROJ, 1)
    seg(8, 24, 52, None, None, 16384, DQV)
    drain(DQV, 160, {160: 2})
    a("s_branch L_L_done")
    a("L_L_wo:")
    if NK0 > DK0: seg((NK0 - DK0) // 4, 20, 48, None, None, 4096, DK0)
    seg(16 - NK0 // 4, 20, 48, None, None, 4096, DW)
    seg(16, 24, 52, "s97", V_L, 16384, DWV)
    stamp(1)
    if not abl: lds_wait(CNT_QK, 8)
    seg(8, 28, 56, "s98", WO_L, 4 * 16384, DWO)
    stamp(2)
    drain(DWO, 160, {160: 3})
    a("L_L_done:")
    dump_stamps()
    a("s_endpgm")

    a("L_roleQ:")
    a("s_setprio 3")
    stamp(0)
    srd(56, 36, 4096)
    a("s_lshl_b32 s10, s6, 10")
    a("buffer_load_dwordx4 v[120:123], v4, s[56:59], s10 offen")
    if prefetch:
        a(f"""
        s_getpc_b64 s[10:11]
        L_pc_here:
        s_sub_u32 s10, s10, L_pc_here - {NAME}_kernel
        s_subb_u32 s11, s11, 0
        s_lshl_b32 s12, s5, 10
        v_add_u32 v7, s12, v4
        v_min_u32 v7, L_code_end - {NAME}_kernel - 16, v7
        global_load_dwordx4 v[124:127], v7, s[10:11]
        """)
    else:
        a("buffer_load_dwordx4 v[124:127], v4, s[56:59], s10 offen")
    a(f"""
    s_cmp_ge_u32 s5, 16
    s_cbranch_scc1 L_Q_gather
    s_waitcnt vmcnt(2)
    """)
    X = [24 + 8*b for b in range(4)]
    for b in range(4):
        for i in range(4): unpack(X[b] + 2*i, X[b] + 2*i + 1, 8 + 4*b + i)
    D = layernorm4(X, 56)
    for b in range(4):
        for i in range(4): a(f"v_cvt_pk_bf16_f32 v{8+4*b+i}, v{D[b]+2*i}, v{D[b]+2*i+1}")
    a("v_add_u32 v5, v4, v2")
    for b in range(4):
        a(f"ds_write_b128 v5, v[{8+4*b}:{11+4*b}] offset:{XN + 1024*b}")
    get_tag()
    pub_xcc()
    stamp(1)
    a(f"""
    v_lshrrev_b32 v5, 2, v0
    v_and_b32 v6, 3, v0
    v_lshlrev_b32 v7, 3, v6
    v_lshl_add_u32 v5, v5, 7, v7
    v_add_u32 v5, {WQ_L}, v5
    v_lshrrev_b32 v7, 4, v0
    v_lshlrev_b32 v7, 3, v7
    v_lshl_add_u32 v6, v6, 10, v7
    s_lshr_b32 s10, s5, 3
    s_lshl_b32 s10, s10, 9
    v_add3_u32 v6, v6, v2, s10
    """)
    for i in range(8):
        a(f"ds_read2_b64 v[{8+4*i}:{11+4*i}], v6 offset0:{8*i} offset1:{8*i+4}")
    a(f"""
    v_and_b32 v6, 3, v0
    v_lshlrev_b32 v6, 16, v6
    v_lshrrev_b32 v7, 4, v0
    v_lshl_add_u32 v6, v7, 4, v6
    v_bfe_u32 v7, v0, 2, 2
    v_lshl_add_u32 v6, v7, 6, v6
    v_cmp_eq_u32 s[64:65], 1, v7
    v_cmp_eq_u32 s[66:67], 2, v7
    v_cmp_eq_u32 s[68:69], 3, v7
    s_lshl_b32 s10, s4, 13
    s_and_b32 s11, s5, 7
    s_lshl_b32 s11, s11, 8
    s_add_u32 s10, s10, s11
    s_lshr_b32 s11, s5, 3
    s_lshl_b32 s11, s11, 12
    s_add_u32 s10, s10, s11
    s_add_u32 s10, s10, {QG}
    s_add_u32 s11, s10, {MIRROR}
    v_mov_b32 v82, s60
    v_mov_b32 v83, s61
    v_mov_b32 v86, s60
    v_mov_b32 v87, s61
    """)
    for h in range(4):
        lds_wait(PROG, 8 * (h + 1), slp=(0 if h == 3 else 1))
        if h == 3: stamp(2)
        for ii in range(2):
            i = 2*h + ii
            for ct in range(4):
                r = 88 + 16*ii + 4*ct
                a(f"ds_read_b64_tr_b16 v[{r}:{r+1}], v5 offset:{4096*i + 32*ct}")
                a(f"ds_read_b64_tr_b16 v[{r+2}:{r+3}], v5 offset:{4096*i + 32*ct + 2048}")
            if ii == 0: a("s_waitcnt lgkmcnt(4)")
        for ii in range(2):
            i = 2*h + ii
            for ct in range(4):
                if ii == 0 and ct == 2: a("s_waitcnt lgkmcnt(8)")
                if ii == 1 and ct == 0: a("s_waitcnt lgkmcnt(4)")
                if ii == 1 and ct == 2: a("s_waitcnt lgkmcnt(0)")
                r = 88 + 16*ii + 4*ct
                cc = "0" if i == 0 else f"v[{48+4*ct}:{51+4*ct}]"
                a(f"v_mfma_f32_16x16x32_bf16 v[{48+4*ct}:{51+4*ct}], v[{r}:{r+3}], v[{8+4*i}:{11+4*i}], {cc}")
    for k, m in enumerate(("s[64:65]", "s[66:67]", "s[68:69]")):
        for j in range(4):
            dst = (80, 81, 84, 85)[j] if k == 2 else 48 + j
            a(f"v_cndmask_b32 v{dst}, v{48+j}, v{52+4*k+j}, {m}")
    a(f"""
    buffer_store_dwordx4 v[80:83], v6, s[44:47], s10 offen
    buffer_store_dwordx4 v[84:87], v6, s[44:47], s10 offen offset:2048
    """)
    stamp(3)
    if DEFER:
        for j in range(8): a(f"v_mov_b32 v{100+j}, v{80+j}")
        a("v_mov_b32 v98, v6"); a("s_mov_b32 s97, s11"); a("s_mov_b32 s96, 1")
    else:
        a(f"""
        buffer_store_dwordx4 v[80:83], v6, s[44:47], s11 offen sc1
        buffer_store_dwordx4 v[84:87], v6, s[44:47], s11 offen offset:2048 sc1
        s_mov_b32 s96, 0
        """)
    lds_set(FL_QPROJ, 1)
    a(f"""
    s_branch L_Q_gather2
    L_Q_gather:
    s_mov_b32 s96, 0
    s_mov_b32 s97, 0
    v_mov_b32 v98, 0
    """)
    get_tag()
    pub_xcc()
    a(f"""
    L_Q_gather2:
    s_lshl_b32 s10, s6, 16
    s_lshl_b32 s11, s4, 13
    s_add_u32 s10, s10, s11
    s_add_u32 s66, s10, {QG}
    v_lshl_add_u32 v5, v0, 3, v2
    v_lshl_add_u32 v6, v0, 2, v2
    v_add_u32 v7, 4096, v4
    """)
    if QDELAY:
        if QDELAY >= 100: a(f"s_mov_b32 s11, {QDELAY - 100}")
        else: a(f"s_add_u32 s11, s42, {QDELAY}")
        lds_wait(PROG, "s11", slp=2)
    poll([(8 + 4*i, 4 if i < 4 else 7, "s66", 1024*(i & 3)) for i in range(8)], sleep=SQ, dual=R0, esc=flushQ)
    for i in range(4):
        a(f"v_pk_add_f32 v[{8+4*i}:{9+4*i}], v[{8+4*i}:{9+4*i}], v[{24+4*i}:{25+4*i}]")
    a(f"""
    v_cvt_pk_bf16_f32 v40, v8, v9
    v_cvt_pk_bf16_f32 v41, v16, v17
    v_cvt_pk_bf16_f32 v42, v12, v13
    v_cvt_pk_bf16_f32 v43, v20, v21
    ds_write_b64 v5, v[40:41] offset:{QI}
    ds_write_b64 v5, v[42:43] offset:{QI + 512}
    """)
    lds_set(FL_QREADY, 1)
    stamp(4)
    chk_xcc()
    a(f"""
    s_lshl_b32 s10, s8, 12
    s_add_u32 s66, s10, {STG}
    s_mov_b32 s10, {f32bits(LOG2E):#x}
    """)
    if "SL" in XF: lds_wait(CNT_QK, 8, slp=2)
    poll([(8 + 4*i, 4, "s66", 1024*i) for i in range(4)], sleep=SS, dual=R0, esc=flushQ)
    a(f"""
    v_max_f32 v24, v8, v12
    v_max3_f32 v24, v24, v16, v20
    v_max_f32_dpp v24, v24, v24 row_ror:4 row_mask:0xf bank_mask:0xf
    v_max_f32_dpp v24, v24, v24 row_ror:8 row_mask:0xf bank_mask:0xf
    """)
    xrow([24], "max", [25])
    for i in range(4): a(f"v_sub_f32 v{26+i}, v{8+4*i}, v24")
    for i in range(4): a(f"v_mul_f32 v{26+i}, s10, v{26+i}")
    for i in range(4): a(f"v_exp_f32 v{26+i}, v{26+i}")
    a(f"""
    v_mul_f32 v30, v26, v9
    v_fmac_f32 v30, v27, v13
    v_fmac_f32 v30, v28, v17
    v_fmac_f32 v30, v29, v21
    v_add_f32_dpp v30, v30, v30 row_ror:4 row_mask:0xf bank_mask:0xf
    v_add_f32_dpp v30, v30, v30 row_ror:8 row_mask:0xf bank_mask:0xf
    """)
    xrow([30], "add", [25])
    a(f"""
    v_rcp_f32 v25, v30
    v_fma_f32 v31, -v30, v25, 1.0
    v_fmac_f32 v25, v31, v25
    s_mov_b64 exec, 15
    ds_write_b64 v5, v[24:25] offset:{ST}
    s_mov_b64 exec, -1
    """)
    lds_set(FL_STATS, 1)
    stamp(5)
    flushQ()
    a(f"""
    s_cmp_lg_u32 s4, 0
    s_cbranch_scc1 L_Q_done
    s_cmp_ge_u32 s5, 4
    s_cbranch_scc1 L_Q_done
    s_setprio 0
    """)
    lds_wait(CNT_WT, 4)
    for bt in range(2):
        a(f"s_mov_b32 s66, {TG + bt * 8192}")
        a(f"s_mov_b32 s67, {TG + bt * 8192 + 4096}")
        poll([(8 + 4*i, 4, "s66" if i < 4 else "s67", 1024*(i & 3)) for i in range(8)], sleep=4)
        for i in range(8):
            a(f"ds_write_b64 v5, v[{8+4*i}:{9+4*i}] offset:{TAB + (bt * 8 + i) * 512}")
    stamp(6)
    FW1 = 64; FB1 = 92; FW2 = 106
    srd(64, 28, 3584); srd(48, 30, 3584); srd(52, 32, 3584)
    a("v_lshlrev_b32 v6, 3, v0")
    for i in range(7):
        a(f"buffer_load_dwordx2 v[{8+2*i}:{9+2*i}], v6, s[64:67], 0 offen offset:{512*i}")
        a(f"buffer_load_dwordx2 v[{FB1+2*i}:{FB1+2*i+1}], v6, s[48:51], 0 offen offset:{512*i}")
        a(f"buffer_load_dwordx2 v[{FW2+2*i}:{FW2+2*i+1}], v6, s[52:55], 0 offen offset:{512*i}")
    srd(64, 34, 2)
    a("v_mov_b32 v7, 0")
    a("buffer_load_ushort v120, v7, s[64:67], 0 offen")
    a("s_waitcnt vmcnt(0)")
    for i in range(14):
        unpack(FW1 + 2*i, FW1 + 2*i + 1, 8 + i)
    a(f"""
    v_lshlrev_b32 v120, 16, v120
    v_lshl_add_u32 v5, v0, 5, v2
    s_mov_b32 s10, 0x08000800
    s_mov_b32 s11, {(e0 << 7) | (e0 << 23):#x}
    s_lshl_b32 s65, s5, 10
    s_setprio 3
    """)
    lds_wait(CNT_ROW, 8, slp=0)
    stamp(7)
    a(f"""
    ds_read_b128 v[32:35], v5 offset:{ROW}
    ds_read_b128 v[36:39], v5 offset:{ROW + 16}
    s_waitcnt lgkmcnt(0)
    v_readfirstlane_b32 s68, v32
    s_mov_b32 s69, s68
    """)
    layernorm1(32, 46, 16, "s[68:69]")
    for i in range(4): unpack(24 + 2*i, 25 + 2*i, 16 + i)
    layernorm1(24, 46, 16, None)
    for i in range(4):
        a(f"v_and_b32 v{40+i}, 0x7fff7fff, v{16+i}")
    for i in range(4):
        a(f"v_pk_sub_u16 v{40+i}, v{40+i}, s11")
    for i in range(4):
        a(f"v_lshrrev_b32 v{44+i}, 4, v{16+i}")
    a("v_or3_b32 v3, v40, v41, v42")
    for i in range(4):
        a(f"v_and_b32 v{44+i}, s10, v{44+i}")
    a("v_or_b32 v3, v3, v43")
    a("v_and_b32 v3, 0xf800f800, v3")
    a("s_mov_b32 s12, 0x07ff07ff")
    for i in range(4):
        a(f"v_and_or_b32 v{40+i}, v{40+i}, s12, v{44+i}")
    a("v_cmp_ne_u32 s[14:15], 0, v3")
    for i in range(4):
        a(f"v_and_b32 v{44+i}, 0xffff, v{40+i}")
        a(f"v_lshrrev_b32 v{40+i}, 16, v{40+i}")
        a(f"v_lshl_add_u32 v{44+i}, v{44+i}, 1, v2")
        a(f"v_lshl_add_u32 v{40+i}, v{40+i}, 1, v2")
        a(f"ds_read_u16 v{48+2*i}, v{44+i} offset:{TAB}")
        a(f"ds_read_u16 v{49+2*i}, v{40+i} offset:{TAB}")
    a(f"""
    s_cmp_eq_u64 s[14:15], 0
    s_waitcnt lgkmcnt(0)
    s_cbranch_scc0 L_Q_fb
    L_Q_nofb:
    """)
    for i in range(8): a(f"v_lshlrev_b32 v{48+i}, 16, v{48+i}")
    for i in range(0, 8, 2): a(f"v_pk_add_f32 v[{48+i}:{49+i}], v[{48+i}:{49+i}], v[{32+i}:{33+i}]")
    for i in range(4): a(f"v_cvt_pk_bf16_f32 v{16+i}, v{48+2*i}, v{49+2*i}")
    a(f"""
    buffer_store_dwordx4 v[16:19], v4, s[56:59], s65 offen
    s_cmp_lg_u32 s5, 0
    s_cbranch_scc1 L_Q_done
    v_mov_b32 v8, s60
    v_mov_b32 v9, s61
    v_mov_b32 v10, 0
    s_mov_b64 exec, 1
    buffer_store_dwordx2 v[8:9], v10, s[44:47], 0 offen
    s_mov_b64 exec, -1
    L_Q_done:
    """)
    stamp(8)
    if dbg2:
        srd(48, 38, 256)
        a("s_cmp_lg_u32 s2, 0")
        a("s_cbranch_scc1 L_Q_nodbg")
        for i in range(9):
            a(f"s_sub_u32 s10, s{70+2*i}, s70")
            a(f"v_mov_b32 v{100+i}, s10")
        a("""
        v_mov_b32 v99, 0
        s_mov_b64 exec, 1
        buffer_store_dwordx4 v[100:103], v99, s[48:51], 0 offen
        buffer_store_dwordx4 v[104:107], v99, s[48:51], 0 offen offset:16
        buffer_store_dword v108, v99, s[48:51], 0 offen offset:32
        s_mov_b64 exec, -1
        L_Q_nodbg:
        """)
    dump_stamps()
    a("s_endpgm")
    a("L_Q_fb:")
    for i in range(4):
        a(f"v_and_b32 v{24+2*i}, 0xffff, v{16+i}")
        a(f"v_lshrrev_b32 v{25+2*i}, 16, v{16+i}")
    a(f"""
    s_movk_i32 s10, 0x800
    v_mov_b32 v42, {f32bits(GC0):#x}
    v_mov_b32 v43, {f32bits(GC0):#x}
    v_mov_b32 v44, 1.0
    v_mov_b32 v45, 1.0
    s_mov_b32 s92, {f32bits(GC1):#x}
    s_mov_b32 s93, {f32bits(GC1):#x}
    """)
    for i in range(8):
        Lf = a.label("Lfb"); Ld = a.label("Lfbd")
        a(f"""
        v_and_b32 v46, 0x7fff, v{24+i}
        v_subrev_u32 v46, {e0 << 7}, v46
        v_cmp_le_u32 s[94:95], s10, v46
        {Lf}:
        s_cmp_eq_u64 s[94:95], 0
        s_cbranch_scc1 {Ld}
        s_ff1_i32_b64 s96, s[94:95]
        s_bitset0_b64 s[94:95], s96
        s_mov_b32 m0, s96
        s_nop 1
        v_readlane_b32 s68, v{24+i}, m0
        s_call_b64 s[98:99], L_eval
        s_nop 3
        v_writelane_b32 v{48+i}, s68, m0
        s_branch {Lf}
        {Ld}:
        """)
    a("s_nop 1")
    a("s_branch L_Q_nofb")
    a(f"""
    L_eval:
    s_nop 3
    s_lshl_b32 s68, s68, 16
    s_mov_b32 s69, s68
    v_mov_b32 v40, 0
    """)
    for p in range(0, 14, 2):
        unpack(14, 15, FB1 + p); unpack(62, 63, FB1 + p + 1)
        gelu_pairs(a, [(FW1 + 2*p, 14, FW2 + p, 8), (FW1 + 2*p + 2, 62, FW2 + p + 1, 56)], 40, "s[68:69]", "s[92:93]", 42, 44)
    allreduce([40], "add", [41])
    rbf(40, 40)
    a(f"""
    v_add_f32 v40, v40, v120
    v_cvt_pk_bf16_f32 v40, v40, v40
    v_and_b32 v40, 0xffff, v40
    v_readfirstlane_b32 s68, v40
    s_setpc_b64 s[98:99]
    """)

    a("L_roleT:")
    stamp(0)
    if "T0" in XF:
        a(f"""
        v_mov_b32 v3, 1
        s_mov_b64 exec, 1
        ds_add_u32 v2, v3 offset:{CNT_WT}
        s_endpgm
        """)
    a("s_sub_u32 s9, s3, 10")
    srd(64, 34, 2)
    W1 = 8; B1 = 36; W2 = 64; TP = 80
    a("v_mov_b32 v5, 0")
    a("buffer_load_ushort v6, v5, s[64:67], 0 offen")
    lds_wait(FL_WT, 1)
    stamp(10)
    a("v_lshl_add_u32 v4, v0, 3, v2")
    for i in range(7):
        a(f"ds_read_b64 v[{TP+2*i}:{TP+2*i+1}], v4 offset:{WT + 512*i}")
        a(f"ds_read_b64 v[{TP+14+2*i}:{TP+15+2*i}], v4 offset:{WT + 4096 + 512*i}")
    a("s_waitcnt lgkmcnt(0)")
    for i in range(7):
        a(f"ds_read_b64 v[{W2+2*i}:{W2+2*i+1}], v4 offset:{WT + 8192 + 512*i}")
    for i in range(14):
        unpack(W1 + 2*i, W1 + 2*i + 1, TP + i)
        unpack(B1 + 2*i, B1 + 2*i + 1, TP + 14 + i)
    a(f"""
    v_mov_b32 v80, {f32bits(GC0):#x}
    v_mov_b32 v81, {f32bits(GC0):#x}
    v_mov_b32 v82, 1.0
    v_mov_b32 v83, 1.0
    s_mov_b32 s92, {f32bits(GC1):#x}
    s_mov_b32 s93, {f32bits(GC1):#x}
    s_lshl_b32 s10, s2, 4
    s_lshl_b32 s11, s9, 2
    s_add_u32 s10, s10, s11
    s_lshr_b32 s11, s10, 11
    s_and_b32 s10, s10, 0x7ff
    s_add_u32 s10, s10, {e0 << 7}
    s_lshl_b32 s10, s10, 16
    s_lshl_b32 s11, s11, 31
    s_or_b32 s68, s10, s11
    s_mov_b32 s69, s68
    s_mov_b32 s11, 0
    """)
    get_tag()
    a(f"""
    v_mov_b32 v3, 1
    s_mov_b64 exec, 1
    ds_add_u32 v2, v3 offset:{CNT_WT}
    s_mov_b64 exec, -1
    """)
    if TD: lds_wait(PROG, TD, slp=8)
    a(f"""
    L_T_tab:
    v_mov_b32 v107, v106
    v_mov_b32 v106, v105
    v_mov_b32 v105, v104
    v_mov_b32 v104, 0
    """)
    for p in range(0, 14, 2):
        gelu_pairs(a, [(W1 + 2*p, B1 + 2*p, W2 + p, 88), (W1 + 2*p + 2, B1 + 2*p + 2, W2 + p + 1, 96)], 104, "s[68:69]", "s[92:93]", 80, 82)
    a(f"""
    s_add_u32 s68, s68, 0x10000
    s_mov_b32 s69, s68
    s_add_u32 s11, s11, 1
    s_cmp_lt_u32 s11, 4
    s_cbranch_scc1 L_T_tab
    s_nop 2
    """)
    allreduce([104, 105, 106, 107], "add", [84, 85, 86, 87])
    for r in (104, 105, 106, 107): rbf(r, r)
    a(f"""
    s_waitcnt vmcnt(0)
    v_lshlrev_b32 v6, 16, v6
    v_add_f32 v104, v104, v6
    v_add_f32 v105, v105, v6
    v_add_f32 v106, v106, v6
    v_add_f32 v107, v107, v6
    v_cvt_pk_bf16_f32 v88, v107, v106
    v_cvt_pk_bf16_f32 v89, v105, v104
    v_mov_b32 v90, s60
    v_mov_b32 v91, s61
    s_lshl_b32 s10, s2, 2
    s_add_u32 s10, s10, s9
    s_lshl_b32 s10, s10, 4
    s_add_u32 s10, s10, {TG}
    s_mov_b64 exec, 1
    buffer_store_dwordx4 v[88:91], v5, s[44:47], s10 offen sc1
    s_mov_b64 exec, -1
    """)
    stamp(1)
    dump_stamps()
    a("s_endpgm")

    a("L_roleW:")
    a("s_setprio 2")
    stamp(0)
    a("s_sub_u32 s9, s3, 2")
    srd(64, 16, 4096)
    a(f"""
    v_and_b32 v7, 31, v0
    v_lshlrev_b32 v7, 2, v7
    s_lshl_b32 s10, s6, 10
    s_lshl_b32 s11, s9, 7
    s_add_u32 s10, s10, s11
    buffer_load_dword v96, v7, s[64:67], s10 offen
    """)
    get_tag()
    stamp(1)
    a(f"""
    v_and_b32 v4, 15, v0
    v_lshrrev_b32 v5, 4, v0
    v_xor_b32 v6, v4, v5
    v_lshlrev_b32 v6, 4, v6
    v_lshl_add_u32 v6, v4, 8, v6
    s_lshl_b32 s10, s9, 13
    v_add_u32 v8, s10, v6
    v_xor_b32 v9, 64, v8
    v_xor_b32 v10, 128, v8
    v_xor_b32 v11, 192, v8
    v_and_b32 v7, 3, v0
    v_lshlrev_b32 v12, 8, v7
    v_lshl_add_u32 v12, v5, 4, v12
    v_add_u32 v12, v12, v2
    v_mov_b32 v74, s60
    v_mov_b32 v75, s61
    s_lshl_b32 s64, s8, 15
    s_lshl_b32 s12, s7, 12
    s_add_u32 s64, s64, s12
    s_lshr_b32 s12, s9, 2
    s_lshl_b32 s12, s12, 11
    s_add_u32 s64, s64, s12
    s_and_b32 s12, s9, 3
    s_lshl_b32 s12, s12, 6
    s_add_u32 s64, s64, s12
    s_add_u32 s64, s64, {SG}
    s_lshl_b32 s65, s8, 12
    s_lshl_b32 s12, s7, 9
    s_add_u32 s65, s65, s12
    s_lshl_b32 s12, s9, 6
    s_add_u32 s65, s65, s12
    s_add_u32 s65, s65, {STG}
    v_lshlrev_b32 v13, 4, v7
    v_add_u32 v15, s65, v13
    v_lshl_add_u32 v13, v5, 8, v13
    v_add_u32 v13, s64, v13
    v_bfe_u32 v14, v0, 2, 2
    v_cmp_eq_u32 s[64:65], 1, v14
    v_cmp_eq_u32 s[68:69], 2, v14
    v_add_u32 v14, 1024, v13
    v_cndmask_b32 v13, v13, v14, s[64:65]
    v_cndmask_b32 v13, v13, v15, s[68:69]
    v_lshlrev_b32 v14, 4, v0
    s_lshl_b32 s11, s9, 3
    s_add_u32 s11, s11, s42
    s_add_u32 s11, s11, 8
    """)
    lds_wait(PROG, "s11")
    for T in range(2):
        for s in range(4):
            a(f"ds_read_b128 v[{32+16*T+4*s}:{35+16*T+4*s}], v{8+s} offset:{4096*T}")
    lds_wait(FL_QREADY, 1)
    stamp(2)
    for s in range(4):
        a(f"ds_read_b128 v[{16+4*s}:{19+4*s}], v12 offset:{QI + 64*s}")
    a(f"""
    v_mov_b32 v3, 1
    s_mov_b64 exec, 1
    ds_add_u32 v2, v3 offset:{CNT_QK}
    s_mov_b64 exec, -1
    s_mov_b32 s10, {f32bits(SCALE):#x}
    s_mov_b32 s11, {f32bits(LOG2E):#x}
    """)
    for s in range(4):
        a(f"s_waitcnt lgkmcnt({4 - s})")
        for T in range(2):
            c = "0" if s == 0 else f"v[{64+4*T}:{67+4*T}]"
            a(f"v_mfma_f32_16x16x32_bf16 v[{64+4*T}:{67+4*T}], v[{32+16*T+4*s}:{35+16*T+4*s}], v[{16+4*s}:{19+4*s}], {c}")
    for T in range(2):
        a(f"v_cvt_pk_bf16_f32 v{80+2*T}, v{64+4*T}, v{65+4*T}")
        a(f"v_cvt_pk_bf16_f32 v{81+2*T}, v{66+4*T}, v{67+4*T}")
    for i in range(4): unpack(64 + 2*i, 65 + 2*i, 80 + i)
    for i in range(8): a(f"v_mul_f32 v{64+i}, s10, v{64+i}")
    for T in range(2):
        a(f"v_cvt_pk_bf16_f32 v{72+4*T}, v{64+4*T}, v{65+4*T}")
        a(f"v_cvt_pk_bf16_f32 v{73+4*T}, v{66+4*T}, v{67+4*T}")
    unpack(64, 65, 72); unpack(66, 67, 73); unpack(68, 69, 76); unpack(70, 71, 77)
    a("v_cndmask_b32 v72, v72, v76, s[64:65]")
    a("v_cndmask_b32 v73, v73, v77, s[64:65]")
    a(f"""
    v_max3_f32 v84, v64, v65, v66
    v_max3_f32 v85, v67, v68, v69
    v_max3_f32 v84, v84, v70, v71
    v_max_f32 v84, v84, v85
    """)
    xrow([84], "max", [88])
    for i in range(8): a(f"v_sub_f32 v{64+i}, v{64+i}, v84")
    for i in range(8): a(f"v_mul_f32 v{64+i}, s11, v{64+i}")
    for i in range(8): a(f"v_exp_f32 v{64+i}, v{64+i}")
    a(f"""
    v_add_f32 v85, v64, v65
    v_add_f32 v88, v66, v67
    v_add_f32 v89, v68, v69
    v_add_f32 v90, v70, v71
    v_add_f32 v85, v85, v88
    v_add_f32 v89, v89, v90
    v_add_f32 v85, v85, v89
    """)
    xrow([85], "add", [88])
    a(f"""
    v_cndmask_b32 v72, v72, v84, s[68:69]
    v_cndmask_b32 v73, v73, v85, s[68:69]
    s_mov_b32 exec_lo, 0x00ff0fff
    s_mov_b32 exec_hi, 0x00ff00ff
    s_mov_b32 s12, {MIRROR}
    buffer_store_dwordx4 v[72:75], v13, s[44:47], 0 offen
    """)
    stamp(3)
    if DEFER:
        a("s_mov_b64 exec, -1")
        for j in range(4): a(f"v_mov_b32 v{100+j}, v{72+j}")
        a(f"s_mov_b32 s97, {MIRROR}"); a("s_mov_b32 s96, 1")
    else:
        a(f"""
        buffer_store_dwordx4 v[72:75], v13, s[44:47], s12 offen sc1
        s_mov_b64 exec, -1
        s_mov_b32 s96, 0
        """)
    a(f"""
    s_lshl_b32 s10, s8, 15
    s_lshr_b32 s12, s7, 2
    s_lshl_b32 s12, s12, 14
    s_add_u32 s10, s10, s12
    s_lshl_b32 s12, s9, 11
    s_add_u32 s10, s10, s12
    s_add_u32 s66, s10, {SG}
    v_lshrrev_b32 v16, 2, v0
    v_lshlrev_b32 v17, 3, v7
    v_lshl_add_u32 v16, v16, 6, v17
    s_lshl_b32 s10, s9, 13
    s_add_u32 s10, s10, {V_L}
    v_add_u32 v17, s10, v16
    v_lshl_add_u32 v18, v7, 3, v2
    v_lshlrev_b32 v19, 7, v7
    v_lshl_add_u32 v19, v5, 4, v19
    s_lshl_b32 s10, s9, 9
    v_add3_u32 v19, v19, v2, s10
    s_lshl_b32 s64, s9, 3
    s_add_u32 s64, s64, s42
    s_add_u32 s64, s64, 72
    """)
    poll([(20, 14, "s66", 0), (24, 14, "s66", 1024)], dual=R0, trig=FL_STATS, nspin=NSP, esc=flushW)
    stamp(4)
    unpack(28, 29, 20); unpack(30, 31, 21); unpack(32, 33, 24); unpack(34, 35, 25)
    a(f"""
    v_max3_f32 v38, v28, v29, v30
    v_max3_f32 v39, v31, v32, v33
    v_max3_f32 v38, v38, v34, v35
    v_max_f32 v38, v38, v39
    """)
    for i in range(8): a(f"v_sub_f32 v{28+i}, v{28+i}, v38")
    for i in range(8): a(f"v_mul_f32 v{28+i}, s11, v{28+i}")
    for i in range(8): a(f"v_exp_f32 v{28+i}, v{28+i}")
    lds_wait(CNT_WT, 4)
    lds_wait(PROG, "s64")
    for c in range(4):
        for dt in range(2):
            r = 56 + 8*c + 4*dt
            a(f"ds_read_b64_tr_b16 v[{r}:{r+1}], v17 offset:{2048*c + 32*dt}")
            a(f"ds_read_b64_tr_b16 v[{r+2}:{r+3}], v17 offset:{2048*c + 32*dt + 1024}")
        if c == 2: a("s_waitcnt lgkmcnt(8)")
    lds_wait(FL_STATS, 1, slp=0, esc=flushW)
    stamp(5)
    a(f"""
    ds_read_b64 v[36:37], v18 offset:{ST}
    s_waitcnt lgkmcnt(0)
    v_sub_f32 v38, v38, v36
    v_mul_f32 v38, s11, v38
    v_exp_f32 v38, v38
    v_mul_f32 v38, v38, v37
    v_mov_b32 v39, v38
    """)
    for i in range(0, 8, 2): a(f"v_pk_mul_f32 v[{28+i}:{29+i}], v[{28+i}:{29+i}], v[38:39]")
    for i in range(4): a(f"v_cvt_pk_bf16_f32 v{40+i}, v{28+2*i}, v{29+2*i}")
    for c in range(4):
        if c:
            for i in range(4):
                a(f"v_mov_b32_dpp v{40+4*c+i}, v{40+i} row_shl:{4*c} row_mask:0xf bank_mask:0xf")
        for dt in range(2):
            r = 56 + 8*c + 4*dt
            cc = "0" if c == 0 else f"v[{88+4*dt}:{91+4*dt}]"
            a(f"v_mfma_f32_16x16x32_bf16 v[{88+4*dt}:{91+4*dt}], v[{r}:{r+3}], v[{40+4*c}:{43+4*c}], {cc}")
    a(f"""
    v_lshl_add_u32 v20, v0, 3, v2
    v_and_b32 v21, 1, v4
    v_lshlrev_b32 v21, 10, v21
    v_lshl_add_u32 v21, v5, 13, v21
    v_bfe_u32 v22, v4, 1, 2
    v_lshl_add_u32 v21, v22, 8, v21
    v_lshrrev_b32 v22, 3, v4
    v_lshl_add_u32 v21, v22, 6, v21
    s_lshl_b32 s10, s4, 15
    s_and_b32 s11, s7, 3
    s_lshl_b32 s11, s11, 11
    s_add_u32 s10, s10, s11
    s_lshr_b32 s11, s7, 2
    s_lshl_b32 s11, s11, 7
    s_add_u32 s10, s10, s11
    s_lshl_b32 s11, s6, 4
    s_add_u32 s10, s10, s11
    s_add_u32 s10, s10, {OG}
    s_add_u32 s11, s10, {MIRROR}
    s_mov_b32 exec_lo, {MASK4}
    s_mov_b32 exec_hi, {MASK4}
    ds_write_b128 v19, v[88:91] offset:{OS}
    ds_write_b128 v19, v[92:95] offset:{OS + 64}
    s_mov_b64 exec, -1
    """)
    lds_count(CNT_O)
    a(f"""
    s_cmp_lg_u32 s12, 7
    s_cbranch_scc1 L_W_onot
    """)
    def slot_sum(base):
        for w in range(8):
            a(f"ds_read_b64 v[{24+2*w}:{25+2*w}], v20 offset:{base + 512*w}")
        a("s_waitcnt lgkmcnt(0)")
        a("""
        v_pk_add_f32 v[24:25], v[24:25], v[26:27]
        v_pk_add_f32 v[28:29], v[28:29], v[30:31]
        v_pk_add_f32 v[32:33], v[32:33], v[34:35]
        v_pk_add_f32 v[36:37], v[36:37], v[38:39]
        v_mov_b32 v26, s60
        v_pk_add_f32 v[24:25], v[24:25], v[28:29]
        v_pk_add_f32 v[32:33], v[32:33], v[36:37]
        v_mov_b32 v27, s61
        v_pk_add_f32 v[24:25], v[24:25], v[32:33]
        """)
    slot_sum(OS)
    a(f"""
    buffer_store_dwordx4 v[24:27], v21, s[44:47], s10 offen
    """)
    lds_set(FL_OPUB, 1)
    a(f"""
    ds_read_b32 v3, v2 offset:{FL_MIR}
    s_waitcnt lgkmcnt(0)
    v_readfirstlane_b32 s12, v3
    s_cmp_eq_u32 s12, 1
    s_cbranch_scc1 L_W_onot
    buffer_store_dwordx4 v[24:27], v21, s[44:47], s11 offen sc1
    """)
    a("L_W_onot:")
    stamp(6)
    a("s_cmp_lt_u32 s5, 16")
    a("s_cbranch_scc1 L_W_qwg")
    a(f"""
    s_lshl_b32 s10, s4, 15
    s_lshl_b32 s11, s9, 12
    s_add_u32 s10, s10, s11
    s_add_u32 s66, s10, {OG}
    s_lshl_b32 s10, s9, 12
    v_add_u32 v17, s10, v16
    v_lshlrev_b32 v22, 4, v4
    v_lshl_add_u32 v22, v5, 15, v22
    s_lshl_b32 s10, s4, 12
    s_sub_u32 s11, s5, 16
    s_lshl_b32 s11, s11, 8
    s_add_u32 s10, s10, s11
    s_add_u32 s65, s10, {AG}
    """)
    lds_wait(PROG, 160)
    for e in range(2):
        for ct in range(2):
            r = 56 + 8*e + 4*ct
            a(f"ds_read_b64_tr_b16 v[{r}:{r+1}], v17 offset:{WO_L + 2048*e + 32*ct}")
            a(f"ds_read_b64_tr_b16 v[{r+2}:{r+3}], v17 offset:{WO_L + 2048*e + 32*ct + 1024}")
    lds_wait(FL_OPUB, 1, esc=flushW)
    poll([(24, 14, "s66", 0), (28, 14, "s66", 1024), (32, 14, "s66", 2048), (36, 14, "s66", 3072)], sleep=SA, dual=R0, esc=flushW)
    stamp(7)
    for r in (24, 25, 28, 29, 32, 33, 36, 37):
        a(f"v_add_f32_dpp v{r}, v{r}, v{r} row_ror:8 row_mask:0xf bank_mask:0xf")
    a(f"""
    v_cvt_pk_bf16_f32 v40, v24, v25
    v_cvt_pk_bf16_f32 v41, v28, v29
    v_cvt_pk_bf16_f32 v44, v32, v33
    v_cvt_pk_bf16_f32 v45, v36, v37
    v_mov_b32_dpp v42, v40 row_shl:4 row_mask:0xf bank_mask:0xf
    v_mov_b32_dpp v43, v41 row_shl:4 row_mask:0xf bank_mask:0xf
    v_mov_b32_dpp v46, v44 row_shl:4 row_mask:0xf bank_mask:0xf
    v_mov_b32_dpp v47, v45 row_shl:4 row_mask:0xf bank_mask:0xf
    """)
    for e in range(2):
        for ct in range(2):
            r = 56 + 8*e + 4*ct
            cc = "0" if e == 0 else f"v[{88+4*ct}:{91+4*ct}]"
            a(f"v_mfma_f32_16x16x32_bf16 v[{88+4*ct}:{91+4*ct}], v[{r}:{r+3}], v[{40+4*e}:{43+4*e}], {cc}")
    a(f"""
    s_mov_b32 exec_lo, {MASK4}
    s_mov_b32 exec_hi, {MASK4}
    ds_write_b128 v19, v[88:91] offset:{AS}
    ds_write_b128 v19, v[92:95] offset:{AS + 64}
    s_mov_b64 exec, -1
    """)
    lds_count(CNT_A)
    a(f"""
    s_cmp_lg_u32 s12, 7
    s_cbranch_scc1 L_W_done
    """)
    slot_sum(AS)
    a(f"""
    buffer_store_dwordx4 v[24:27], v22, s[44:47], s65 offen sc1
    s_branch L_W_done
    L_W_qwg:
    s_cmp_lg_u32 s4, 0
    s_cbranch_scc1 L_W_done
    s_cmp_ge_u32 s5, 4
    s_cbranch_scc1 L_W_done
    v_and_b32 v21, 31, v0
    v_lshlrev_b32 v22, 4, v21
    v_lshrrev_b32 v23, 5, v0
    v_lshl_add_u32 v22, v23, 14, v22
    s_lshl_b32 s10, s5, 15
    s_lshl_b32 s11, s9, 9
    s_add_u32 s10, s10, s11
    s_add_u32 s66, s10, {AG}
    s_add_u32 s67, s66, 4096
    s_add_u32 s68, s66, 8192
    s_add_u32 s69, s66, 12288
    s_lshl_b32 s10, s9, 8
    v_lshl_add_u32 v21, v21, 3, v2
    v_add_u32 v21, s10, v21
    v_lshlrev_b32 v44, 16, v96
    v_and_b32 v45, 0xffff0000, v96
    """)
    lds_wait(FL_OPUB, 1, esc=flushW)
    poll([(24 + 4*i, 22, f"s{66+i}", 0) for i in range(4)], sleep=SB, esc=flushW)
    stamp(8)
    a(f"""
    v_pk_add_f32 v[24:25], v[24:25], v[28:29]
    v_pk_add_f32 v[32:33], v[32:33], v[36:37]
    v_pk_add_f32 v[24:25], v[24:25], v[32:33]
    v_mov_b32 v26, v24
    v_mov_b32 v27, v25
    v_permlane32_swap_b32 v24, v26
    v_permlane32_swap_b32 v25, v27
    v_pk_add_f32 v[24:25], v[24:25], v[26:27]
    v_cvt_pk_bf16_f32 v26, v24, v25
    v_lshlrev_b32 v24, 16, v26
    v_and_b32 v25, 0xffff0000, v26
    v_pk_add_f32 v[24:25], v[24:25], v[44:45]
    v_cvt_pk_bf16_f32 v26, v24, v25
    v_lshlrev_b32 v24, 16, v26
    v_and_b32 v25, 0xffff0000, v26
    ds_write_b64 v21, v[24:25] offset:{ROW}
    v_mov_b32 v3, 1
    s_mov_b64 exec, 1
    ds_add_u32 v2, v3 offset:{CNT_ROW}
    s_mov_b64 exec, -1
    L_W_done:
    """)
    stamp(9)
    flushW()
    dump_stamps()
    a("L_end:")
    a("s_endpgm")
    a("L_code_end:")
    txt = a.text().split("\n")
    out = []
    for l in txt:
        if "M0" in XF and "buffer_store_dwordx4" in l and l.rstrip().endswith("sc1") and ("s11 offen" in l or "s12 offen" in l):
            continue
        if "SN" in XF and ("buffer_load" in l or "global_load" in l) and " nt" not in l and "sc1" not in l:
            l = l.replace(" lds", " nt lds") if l.rstrip().endswith("lds") else l.rstrip() + " nt"
        if "PN" in XF and "buffer_load" in l and l.rstrip().endswith("sc1") and "DUAL" in l:
            l = l.rstrip() + " nt"
        out.append(l)
    return wrap("\n".join(out), 256, 896, LDS_TOTAL, 128, denorm=True)

if __name__ == "__main__":
    import argparse
    ap = argparse.ArgumentParser()
    ap.add_argument("-o", default="t/k7.s"); ap.add_argument("--dbg", action="store_true"); ap.add_argument("--dbg2", action="store_true")
    ap.add_argument("--abl", action="store_true"); ap.add_argument("--x", default=""); ap.add_argument("--pol", default="nt"); ap.add_argument("--nopf", action="store_true")
    for n, d in (("dq", 20), ("dw", 16), ("dwq", 32), ("dk0", 8), ("nk0", 16), ("sq", 2), ("ss", 2), ("sa", 1), ("sb", 1), ("e0", 114), ("priol", 0), ("r0", 24), ("wqd", -1), ("nsp", 6), ("dqv", 0), ("dwv", 0), ("dwo", 0), ("qdelay", 0), ("defer", 1), ("td", 0)):
        ap.add_argument("--" + n, type=int, default=d)
    g = ap.parse_args()
    open(g.o, "w").write(gen(dbg=g.dbg, dbg2=g.dbg2, pol=g.pol, prefetch=not g.nopf, DQ=g.dq, DW=g.dw, DWQ=g.dwq, DK0=g.dk0, NK0=g.nk0,
                             SQ=g.sq, SS=g.ss, SA=g.sa, SB=g.sb, e0=g.e0, prioL=g.priol, R0=g.r0, WQD=g.wqd, NSP=g.nsp, DQV=g.dqv, DWV=g.dwv, DWO=g.dwo, abl=g.abl, XF=g.x, QDELAY=g.qdelay, DEFER=g.defer, TD=g.td))
```
